```python
import torch

def _softmax(x, axis=-1):
    return torch.softmax(x, dim=axis)

def _gelu(x):
    return torch.nn.functional.gelu(x, approximate='tanh')

def _silu(x):
    return torch.nn.functional.silu(x)

def _sigmoid(x):
    return torch.sigmoid(x)

def _layernorm(x, axis=-1, eps=1e-05):
    m = x.mean(dim=axis, keepdim=True)
    v = x.var(dim=axis, keepdim=True, unbiased=False)
    return (x - m) / torch.sqrt(v + eps)

def _scatter_add(tgt, idx, src, axis=0):
    return tgt.clone().index_add_(axis, idx, src)

def _segment_sum(src, seg, n):
    out = torch.zeros((n,) + src.shape[1:], dtype=src.dtype)
    return out.index_add_(0, seg, src)

def _pad(x, pw):
    flat = tuple((v for pair in reversed(pw) for v in pair))
    return torch.nn.functional.pad(x, flat)
kernel_name = 'standalone__dilated_atrous__vision'

def setup_inputs():

    _w = lambda a: (lambda t: t.to(torch.bfloat16) if t.is_floating_point() else t)(torch.as_tensor(a))
    H = W = 384
    C = 96
    k = 3
    return {'x': _w((lambda *s: torch.randn(*s, dtype=torch.bfloat16) * 0.05)(1, H, W, C)), 'w': _w((lambda *s: torch.randn(*s, dtype=torch.bfloat16) * 0.05)(k, k, C, C) * (1.0 / (k * C ** 0.5)))}

def reference(x, w):
    B, H, W, C = x.shape
    k = 3
    rate = 2
    pad = (k - 1) * rate // 2
    xp = _pad(x, ((0, 0), (pad, pad), (pad, pad), (0, 0)))
    out = torch.zeros_like(x)
    for i in range(k):
        for j in range(k):
            tap = xp[:, i * rate:i * rate + H, j * rate:j * rate + W, :].clone()
            out = out + torch.einsum('bhwc,co->bhwo', tap, w[i, j])
    return out
```

```python
import sys

KNAME = "standalone__dilated_atrous__vision_kernel"
X_BYTES = 384*384*96*2
W_BYTES = 9*96*96*2
ROWB = 384*192
SLOT = 10240
W0 = 6*SLOT
W1 = W0 + 8*6144
NB = 6
D = 4

out = []
def e(s): out.append("    " + s)
def lab(s): out.append(s + ":")
def cm(s): out.append("    ; " + s)

V_TID = 0
V_T = list(range(1, 16))
V_XOFF = 16
V_WOFF = 21
V_WTR = 22
V_BADDR = 24
V_OADDR = 27
V_ACC = 32
V_PK = 56
V_B = 72
V_W = 188

def wfrag(f):
    if f < 64: return "a[%d:%d]" % (4*f, 4*f+3)
    b = V_W + 4*(f-64)
    return "v[%d:%d]" % (b, b+3)
def wfrag_half(f, hf):
    if f < 64: return "a[%d:%d]" % (4*f+2*hf, 4*f+2*hf+1)
    b = V_W + 4*(f-64) + 2*hf
    return "v[%d:%d]" % (b, b+1)
def vr(b, n): return "v[%d:%d]" % (b, b+n-1)

S_X = 8
S_Wd = 12
S_O = 16
S_WAVE = 20
S_HH = 21
S_S = 22
S_CS = 23
S_PAR = 24
S_G = 25
S_T0 = 26; S_T1 = 27; S_T2 = 28; S_T3 = 29
S_M1 = 30; S_M2 = 31
S_XM0 = 32
S_WM0 = 33
S_COL0 = 34

def header():
    out.append("""; Kernarg layout for this problem (40 bytes, ptrs only, base s[0:1]):
;   offset   0: d_in[0] x  shape=(1, 384, 384, 96) dtype=bfloat16
;   offset   8: d_in[1] w  shape=(3, 3, 96, 96) dtype=bfloat16
;   offset  16: d_out     shape=(1, 384, 384, 96) dtype=bfloat16 (2 bytes/elem)
;   offset  24: d_debug   256 bytes
;   offset  32: d_ws      268435456 bytes workspace
; @launch grid=(256,1,1) block=(256,1,1) lds=163840
.amdgcn_target "amdgcn-amd-amdhsa--gfx950"
.text
.globl %s
.p2align 8
.type %s,@function
%s:""" % (KNAME, KNAME, KNAME))

def footer():
    out.append("""L_end:
    s_endpgm
.section .rodata,"a"
.p2align 6
.amdhsa_kernel %s
  .amdhsa_next_free_vgpr 512
  .amdhsa_next_free_sgpr 64
  .amdhsa_accum_offset 256
  .amdhsa_group_segment_fixed_size 0
  .amdhsa_kernarg_size 40
  .amdhsa_user_sgpr_count 2
  .amdhsa_user_sgpr_kernarg_segment_ptr 1
  .amdhsa_system_sgpr_workgroup_id_x 1
.end_amdhsa_kernel""" % KNAME)

def setup():
    e("s_cmp_ge_u32 s2, 256")
    e("s_cbranch_scc1 L_end")
    e("s_load_dwordx4 s[4:7], s[0:1], 0")
    e("s_load_dwordx2 s[36:37], s[0:1], 16")
    e("v_lshrrev_b32 v1, 6, v0")
    e("v_and_b32 v2, 63, v0")
    e("s_nop 0")
    e("v_readfirstlane_b32 s%d, v1" % S_WAVE)
    e("s_and_b32 s%d, s2, 7" % S_CS)
    e("s_lshr_b32 s%d, s2, 3" % S_T0)
    e("s_and_b32 s%d, s%d, 1" % (S_PAR, S_T0))
    e("s_lshr_b32 s%d, s%d, 1" % (S_G, S_T0))
    e("s_mul_i32 s%d, s%d, 48" % (S_COL0, S_CS))
    e("s_and_b32 s%d, s%d, 1" % (S_HH, S_WAVE))
    e("s_lshr_b32 s%d, s%d, 1" % (S_S, S_WAVE))
    e("s_mov_b32 s%d, 3072" % S_M1)
    e("s_mov_b32 s%d, 6144" % S_M2)
    e("s_mul_i32 s%d, s%d, 5120" % (S_XM0, S_WAVE))
    e("s_mul_i32 s%d, s%d, 12288" % (S_WM0, S_WAVE))
    e("s_waitcnt lgkmcnt(0)")
    e("s_mov_b32 s%d, s4" % S_X)
    e("s_and_b32 s%d, s5, 0xffff" % (S_X+1))
    e("s_mov_b32 s%d, %d" % (S_X+2, X_BYTES))
    e("s_mov_b32 s%d, 0x20000" % (S_X+3))
    e("s_mov_b32 s%d, s6" % S_Wd)
    e("s_and_b32 s%d, s7, 0xffff" % (S_Wd+1))
    e("s_mov_b32 s%d, %d" % (S_Wd+2, W_BYTES))
    e("s_mov_b32 s%d, 0x20000" % (S_Wd+3))
    e("s_mov_b32 s%d, s36" % S_O)
    e("s_and_b32 s%d, s37, 0xffff" % (S_O+1))
    e("s_mov_b32 s%d, %d" % (S_O+2, X_BYTES))
    e("s_mov_b32 s%d, 0x20000" % (S_O+3))
    e("v_lshlrev_b32 v%d, 4, v2" % V_WOFF)
    e("v_add_u32 v%d, s%d, v%d" % (V_WOFF, S_WM0, V_WOFF))
    e("s_mul_i32 s%d, s%d, 24" % (S_T0, S_G))
    e("s_add_u32 s%d, s%d, s%d" % (S_T0, S_T0, S_PAR))
    e("s_sub_u32 s%d, s%d, 2" % (S_T0, S_T0))
    e("s_mul_i32 s%d, s%d, %d" % (S_T0, S_T0, ROWB))
    e("s_mul_i32 s%d, s%d, 5" % (S_T1, S_WAVE))
    for t in range(5):
        e("s_add_u32 s%d, s%d, %d" % (S_T2, S_T1, t))
        e("s_cmp_ge_u32 s%d, 10" % S_T2)
        e("s_cselect_b32 s42, 10, 0")
        e("s_cselect_b32 s%d, %d, 0" % (S_T3, 2*ROWB))
        e("s_sub_u32 s%d, s%d, s42" % (S_T2, S_T2))
        e("s_add_u32 s%d, s%d, s%d" % (S_T3, S_T3, S_T0))
        e("s_lshl_b32 s%d, s%d, 6" % (S_T2, S_T2))
        e("v_add_u32 v3, s%d, v2" % S_T2)
        e("v_mul_u32_u24 v4, 43691, v3")
        e("v_lshrrev_b32 v4, 19, v4")
        e("v_mul_u32_u24 v5, 12, v4")
        e("v_sub_u32 v5, v3, v5")
        e("v_lshrrev_b32 v6, 1, v4")
        e("v_and_b32 v6, 2, v6")
        e("v_xor_b32 v5, v5, v6")
        e("v_add_u32 v6, s%d, v4" % S_COL0)
        e("v_subrev_u32 v6, 2, v6")
        e("v_mul_u32_u24 v7, 192, v6")
        e("v_lshl_add_u32 v7, v5, 4, v7")
        e("v_add_u32 v7, s%d, v7" % S_T3)
        e("v_mov_b32 v8, 0x80000000")
        e("v_add_u32 v8, s%d, v8" % S_T3)
        e("v_cmp_gt_u32 vcc, 384, v6")
        e("v_cmp_gt_u32 s[40:41], 52, v4")
        e("s_and_b64 vcc, vcc, s[40:41]")
        e("s_nop 1")
        e("v_cndmask_b32 v%d, v8, v7, vcc" % (V_XOFF+t))
    e("v_lshrrev_b32 v3, 4, v2")
    e("v_lshrrev_b32 v4, 2, v2")
    e("v_and_b32 v4, 3, v4")
    e("v_lshl_add_u32 v4, v3, 3, v4")
    e("v_mul_u32_u24 v4, 192, v4")
    e("v_and_b32 v5, 3, v2")
    e("v_mul_u32_u24 v5, 24, v5")
    e("v_add_u32 v4, v4, v5")
    e("s_mul_i32 s%d, s%d, 96" % (S_T2, S_HH))
    e("v_add_u32 v%d, s%d, v4" % (V_WTR, S_T2))
    e("v_and_b32 v4, 15, v2")
    e("s_mul_i32 s%d, s%d, %d" % (S_T2, S_S, SLOT))
    for j in range(3):
        e("v_add_u32 v5, %d, v4" % (2*j))
        e("v_lshrrev_b32 v6, 1, v5")
        e("v_and_b32 v6, 2, v6")
        e("v_xor_b32 v6, v6, v3")
        e("v_mul_u32_u24 v5, 192, v5")
        e("v_lshl_add_u32 v5, v6, 4, v5")
        e("v_add_u32 v%d, s%d, v5" % (V_BADDR+j, S_T2))
    e("s_mul_i32 s%d, s%d, 12" % (S_T2, S_G))
    e("s_add_u32 s%d, s%d, s%d" % (S_T2, S_T2, S_S))
    e("s_lshl_b32 s%d, s%d, 1" % (S_T2, S_T2))
    e("s_add_u32 s%d, s%d, s%d" % (S_T2, S_T2, S_PAR))
    e("s_mul_i32 s%d, s%d, 384" % (S_T2, S_T2))
    e("s_add_u32 s%d, s%d, s%d" % (S_T2, S_T2, S_COL0))
    e("s_mul_i32 s%d, s%d, 192" % (S_T2, S_T2))
    e("s_mul_i32 s%d, s%d, 96" % (S_T3, S_HH))
    e("s_add_u32 s%d, s%d, s%d" % (S_T2, S_T2, S_T3))
    e("v_mul_u32_u24 v5, 192, v4")
    e("v_mul_u32_u24 v6, 24, v3")
    e("v_add3_u32 v%d, v5, v6, s%d" % (V_OADDR, S_T2))

def dma_w(rnd, n):
    base = W0 if rnd % 2 == 0 else W1
    for t in range(n):
        if n == 12:
            e("s_add_u32 s%d, s%d, %d" % (S_T0, S_WM0, base + t*1024))
            e("v_add_u32 v1, %d, v%d" % (rnd*49152 + t*1024, V_WOFF))
        else:
            e("s_add_u32 s%d, s%d, %d" % (S_T0, S_XM0, base + t*1024))
            e("s_sub_u32 s%d, s%d, s%d" % (S_T1, S_XM0, S_WM0))
            e("s_add_u32 s%d, s%d, %d" % (S_T1, S_T1, rnd*49152 + t*1024))
            e("v_add_u32 v1, s%d, v%d" % (S_T1, V_WOFF))
        e("s_mov_b32 m0, s%d" % S_T0)
        e("s_nop 0")
        e("buffer_load_dwordx4 v1, s[%d:%d], 0 offen lds" % (S_Wd, S_Wd+3))

def dma_x_one(u, t):
    e("s_add_u32 s%d, s%d, %d" % (S_T0, S_XM0, 2*u*SLOT + t*1024))
    e("s_mov_b32 m0, s%d" % S_T0)
    e("s_nop 0")
    e("buffer_load_dwordx4 v%d, s[%d:%d], 0 offen lds" % (V_XOFF+t, S_X, S_X+3))
    e("v_add_u32 v%d, %d, v%d" % (V_XOFF+t, 4*ROWB, V_XOFF+t))

def tr_read(rnd, nks):
    base = W0 if rnd % 2 == 0 else W1
    for kl in range(nks):
        ks = rnd*8 + kl
        for tp in range(3):
            f = ks*3 + tp
            for hf in range(2):
                off = base + kl*6144 + hf*4*192 + tp*8
                e("ds_read_b64_tr_b16 %s, v%d offset:%d" % (wfrag_half(f, hf), 1 if rnd % 2 == 0 else 2, off - base))

def prologue():
    dma_w(0, 12)
    dma_w(1, 12)
    for u in range(3):
        for t in range(5):
            dma_x_one(u, t)
    e("v_add_u32 v1, %d, v%d" % (W0, V_WTR))
    e("v_add_u32 v2, %d, v%d" % (W1, V_WTR))
    e("s_waitcnt vmcnt(27)")
    e("s_barrier")
    tr_read(0, 8)
    e("s_waitcnt lgkmcnt(0)")
    e("s_barrier")
    dma_w_v3(2, 12)
    e("s_waitcnt vmcnt(27)")
    e("s_barrier")
    tr_read(1, 8)
    e("s_waitcnt lgkmcnt(0)")
    e("s_barrier")
    dma_w_v3(3, 5)
    e("s_waitcnt vmcnt(5)")
    e("s_barrier")
    tr_read(2, 8)
    e("s_waitcnt vmcnt(0)")
    e("s_barrier")
    tr_read(3, 3)
    e("s_waitcnt lgkmcnt(0)")
    e("s_barrier")

def dma_w_v3(rnd, n):
    start = len(out)
    dma_w(rnd, n)
    for i in range(start, len(out)):
        out[i] = out[i].replace("v_add_u32 v1,", "v_add_u32 v3,").replace("buffer_load_dwordx4 v1,", "buffer_load_dwordx4 v3,")

def main_loop():
    items = []
    for t in range(6):
        for m in range(3):
            for ks in range(27):
                items.append((t, m, ks))
    N = len(items)
    def load(n):
        t, m, ks = items[n]
        i, j, kk = ks // 9, (ks // 3) % 3, ks % 3
        row = 2*t + i
        off = row*SLOT + m*3072 + kk*64
        off_rel = i*SLOT + m*3072 + kk*64 + (2*(t - cur_base[0]))*SLOT
        assert 0 <= off_rel < 65536
        e("ds_read_b128 %s, v%d offset:%d" % (vr(V_B + 4*(n % NB), 4), V_BADDR + j, off_rel))
    cur_base = [0]
    vm_since = []
    def vm(tag): vm_since.append(tag)
    for n in range(D):
        load(n)
    tile = 0
    pending_epi = None
    for n in range(N):
        t, m, ks = items[n]
        tile = t*3 + m
        acc = V_ACC + 12*(tile % 2)
        if ks == 0 and m == 0 and t > 0:
            if t >= 2:
                idx = max(k for k, tg in enumerate(vm_since) if tg == ('x', t+1))
                cnt = len(vm_since) - 1 - idx
                e("s_waitcnt vmcnt(%d)" % min(cnt, 63))
            e("s_barrier")
        if n + D < N:
            t2 = items[n+D][0]
            if t2 - cur_base[0] >= 2:
                for j in range(3):
                    e("v_add_u32 v%d, %d, v%d" % (V_BADDR+j, 4*SLOT, V_BADDR+j))
                cur_base[0] += 2
            load(n + D)
            e("s_waitcnt lgkmcnt(%d)" % D)
        else:
            e("s_waitcnt lgkmcnt(%d)" % (N - 1 - n))
        b = vr(V_B + 4*(n % NB), 4)
        for tp in range(3):
            f = ks*3 + tp
            a = vr(acc + 4*tp, 4)
            c = "0" if ks == 0 else a
            e("v_mfma_f32_16x16x32_bf16 %s, %s, %s, %s" % (a, wfrag(f), b, c))
        if t <= 3 and m == 0 and ks in (3, 8, 13, 18, 23):
            dma_x_one(t+3, (ks-3)//5)
            vm(('x', t+3))
        if ks == 4 and pending_epi is not None:
            epi(pending_epi, vm)
            pending_epi = None
        if ks == 26:
            pending_epi = (t, m, acc, tile)
    e("s_nop 7")
    e("s_nop 7")
    epi(pending_epi, vm)

def epi(p, vm):
    t, m, acc, tile = p
    pk = V_PK + 6*(tile % 2)
    for d in range(6):
        e("v_cvt_pk_bf16_f32 v%d, v%d, v%d" % (pk+d, acc+2*d, acc+2*d+1))
    so = ["0", "s%d" % S_M1, "s%d" % S_M2][m]
    e("buffer_store_dwordx4 %s, v%d, s[%d:%d], %s offen" % (vr(pk, 4), V_OADDR, S_O, S_O+3, so))
    e("buffer_store_dwordx2 %s, v%d, s[%d:%d], %s offen offset:16" % (vr(pk+4, 2), V_OADDR, S_O, S_O+3, so))
    vm(('st',)); vm(('st',))
    if m == 2:
        e("v_add_u32 v%d, %d, v%d" % (V_OADDR, 4*ROWB, V_OADDR))

header()
setup()
prologue()
main_loop()
footer()
open(sys.argv[1], "w").write("\n".join(out) + "\n")
print("lines", len(out))
```

```python
import sys, os

KNAME = "standalone__dilated_atrous__vision_kernel"
X_BYTES = 384*384*96*2
W_BYTES = 9*96*96*2
ROWB = 384*192
SLOT = 10240
WA = 0
WB = 55296
XC = 110592
SPARE = 151552
PSLOT = [XC, XC+20480, WB, WB+20480, 0, 20480, XC]
NB = 6
D = int(os.environ.get("D", "4"))
DW = 3

STAMP = len(sys.argv) > 2 and sys.argv[2] == "stamp"
out = []
def e(s): out.append("    " + s)

V_XOFF = 16
V_WOFF = 21
V_WTR = 22
V_WTRA = 23
V_BL = 24
V_OADDR = 27
V_BA = 28
V_PK = 36
V_B = 48
V_ACC = 72
V_W = 188

def wfrag(f):
    if f < 64: return "a[%d:%d]" % (4*f, 4*f+3)
    b = V_W + 4*(f-64)
    return "v[%d:%d]" % (b, b+3)
def wfrag_half(f, hf):
    if f < 64: return "a[%d:%d]" % (4*f+2*hf, 4*f+2*hf+1)
    b = V_W + 4*(f-64) + 2*hf
    return "v[%d:%d]" % (b, b+1)
def vr(b, n): return "v[%d:%d]" % (b, b+n-1)

S_X = 8; S_Wd = 12; S_O = 16
S_WAVE = 20; S_HH = 21; S_S = 22; S_CS = 23; S_PAR = 24; S_G = 25
S_T0 = 26; S_T1 = 27; S_T2 = 28; S_T3 = 29
S_M1 = 30; S_M2 = 31
S_XM0 = 32
S_WM0 = 33
S_COL0 = 34
S_W2L = 35
S_ROW = 38

nstamp = [0]
def stamp():
    if not STAMP: return
    k = nstamp[0]; nstamp[0] += 1
    e("s_memtime s[44:45]")
    e("s_waitcnt lgkmcnt(0)")
    lg.clear()
    e("s_mov_b32 s%d, s44" % (64 + k))
def dump_stamps():
    if not STAMP: return
    e("s_load_dwordx2 s[46:47], s[0:1], 24")
    e("s_waitcnt lgkmcnt(0)")
    e("s_mov_b32 s48, s46")
    e("s_and_b32 s49, s47, 0xffff")
    e("s_mov_b32 s50, 256")
    e("s_mov_b32 s51, 0x20000")
    e("s_mov_b32 s52, 1024")
    e("s_lshl_b32 s53, s2, 2")
    e("s_add_u32 s53, s53, s%d" % S_WAVE)
    e("s_cmp_eq_u32 s53, 0")
    e("s_cselect_b32 s52, 0, s52")
    e("s_cmp_eq_u32 s53, %d" % (133*4+3))
    e("s_cselect_b32 s52, 128, s52")
    e("v_mov_b32 v1, s52")
    for k in range(nstamp[0]):
        e("v_mov_b32 v2, s%d" % (64+k))
        e("buffer_store_dword v2, v1, s[48:51], 0 offen offset:%d" % (4*k))
    e("s_waitcnt vmcnt(0)")

class Tracker:
    def __init__(self, name, maxv):
        self.name = name; self.maxv = maxv; self.ops = []; self.done = 0; self.n = 0
    def issue(self, tag=None):
        self.n += 1
        return self.n
    def wait(self, opid):
        if opid is None or opid <= self.done: return
        cnt = self.n - opid
        cnt = min(cnt, self.maxv)
        e("s_waitcnt %s(%d)" % (self.name, cnt))
        self.done = self.n - cnt
    def clear(self):
        self.done = self.n
lg = Tracker("lgkmcnt", 15)
vm = Tracker("vmcnt", 63)

def header():
    out.append("""; Kernarg layout for this problem (40 bytes, ptrs only, base s[0:1]):
;   offset   0: d_in[0] x  shape=(1, 384, 384, 96) dtype=bfloat16
;   offset   8: d_in[1] w  shape=(3, 3, 96, 96) dtype=bfloat16
;   offset  16: d_out     shape=(1, 384, 384, 96) dtype=bfloat16 (2 bytes/elem)
;   offset  24: d_debug   256 bytes
;   offset  32: d_ws      268435456 bytes workspace
; @launch grid=(256,1,1) block=(256,1,1) lds=163840
.amdgcn_target "amdgcn-amd-amdhsa--gfx950"
.text
.globl %s
.p2align 8
.type %s,@function
%s:""" % (KNAME, KNAME, KNAME))

def footer():
    out.append("""L_end:
    s_endpgm
.section .rodata,"a"
.p2align 6
.amdhsa_kernel %s
  .amdhsa_next_free_vgpr 512
  .amdhsa_next_free_sgpr 100
  .amdhsa_accum_offset 256
  .amdhsa_group_segment_fixed_size 0
  .amdhsa_kernarg_size 40
  .amdhsa_user_sgpr_count 2
  .amdhsa_user_sgpr_kernarg_segment_ptr 1
  .amdhsa_system_sgpr_workgroup_id_x 1
.end_amdhsa_kernel""" % KNAME)

def dma_w(k, region_base, src_base, last=False):
    if last:
        e("s_mov_b32 m0, s%d" % S_W2L)
    else:
        e("s_add_u32 m0, s%d, %d" % (S_WM0, region_base + k*4096))
    e("s_nop 0")
    e("buffer_load_dwordx4 v%d, s[%d:%d], 0 offen lds" % (V_WOFF, S_Wd, S_Wd+3))
    e("v_add_u32 v%d, 0x1000, v%d" % (V_WOFF, V_WOFF))
    return vm.issue()

def dma_x(u, t):
    e("s_add_u32 m0, s%d, %d" % (S_XM0, PSLOT[u] + t*1024))
    e("s_nop 0")
    e("buffer_load_dwordx4 v%d, s[%d:%d], 0 offen lds" % (V_XOFF+t, S_X, S_X+3))
    e("v_add_u32 v%d, %d, v%d" % (V_XOFF+t, 4*ROWB, V_XOFF+t))
    return vm.issue()

def xoff_calc(t):
    e("s_add_u32 s%d, s%d, %d" % (S_T2, S_T1, t))
    e("s_cmp_ge_u32 s%d, 10" % S_T2)
    e("s_cselect_b32 s42, 10, 0")
    e("s_cselect_b32 s%d, %d, 0" % (S_T3, 2*ROWB))
    e("s_sub_u32 s%d, s%d, s42" % (S_T2, S_T2))
    e("s_add_u32 s%d, s%d, s%d" % (S_T3, S_T3, S_T0))
    e("s_lshl_b32 s%d, s%d, 6" % (S_T2, S_T2))
    e("v_add_u32 v3, s%d, v2" % S_T2)
    e("v_mul_u32_u24 v4, 43691, v3")
    e("v_lshrrev_b32 v4, 19, v4")
    e("v_mul_u32_u24 v5, 12, v4")
    e("v_sub_u32 v5, v3, v5")
    e("v_lshrrev_b32 v6, 1, v4")
    e("v_and_b32 v6, 2, v6")
    e("v_xor_b32 v5, v5, v6")
    e("v_add_u32 v6, s%d, v4" % S_COL0)
    e("v_subrev_u32 v6, 2, v6")
    e("v_mul_u32_u24 v7, 192, v6")
    e("v_lshl_add_u32 v7, v5, 4, v7")
    e("v_add_u32 v7, s%d, v7" % S_T3)
    e("v_mov_b32 v8, 0x80000000")
    e("v_add_u32 v8, s%d, v8" % S_T3)
    e("v_cmp_gt_u32 vcc, 384, v6")
    e("v_cmp_gt_u32 s[40:41], 52, v4")
    e("s_and_b64 vcc, vcc, s[40:41]")
    e("s_nop 1")
    e("v_cndmask_b32 v%d, v8, v7, vcc" % (V_XOFF+t))

ids = {}
def setup_and_issue():
    e("s_cmp_ge_u32 s2, 256")
    e("s_cbranch_scc1 L_end")
    stamp()
    e("s_load_dwordx4 s[4:7], s[0:1], 0")
    e("s_load_dwordx2 s[36:37], s[0:1], 16")
    e("v_lshrrev_b32 v1, 6, v0")
    e("v_and_b32 v2, 63, v0")
    e("s_and_b32 s%d, s2, 7" % S_CS)
    e("v_readfirstlane_b32 s%d, v1" % S_WAVE)
    e("s_lshr_b32 s%d, s2, 3" % S_T0)
    e("s_and_b32 s%d, s%d, 1" % (S_PAR, S_T0))
    e("s_lshr_b32 s%d, s%d, 1" % (S_G, S_T0))
    e("s_mul_i32 s%d, s%d, 48" % (S_COL0, S_CS))
    e("s_and_b32 s%d, s%d, 1" % (S_HH, S_WAVE))
    e("s_lshr_b32 s%d, s%d, 1" % (S_S, S_WAVE))
    e("s_mul_i32 s%d, s%d, 5120" % (S_XM0, S_WAVE))
    e("s_lshl_b32 s%d, s%d, 10" % (S_WM0, S_WAVE))
    e("v_lshlrev_b32 v%d, 4, v2" % V_WOFF)
    e("v_add_u32 v%d, s%d, v%d" % (V_WOFF, S_WM0, V_WOFF))
    e("s_mul_i32 s%d, s%d, 24" % (S_T0, S_G))
    e("s_add_u32 s%d, s%d, s%d" % (S_T0, S_T0, S_PAR))
    e("s_sub_u32 s%d, s%d, 2" % (S_T0, S_T0))
    e("s_mul_i32 s%d, s%d, %d" % (S_T0, S_T0, ROWB))
    e("s_mul_i32 s%d, s%d, 5" % (S_T1, S_WAVE))
    xoff_calc(0)
    e("s_waitcnt lgkmcnt(0)")
    e("s_mov_b32 s%d, s4" % S_X)
    e("s_and_b32 s%d, s5, 0xffff" % (S_X+1))
    e("s_mov_b32 s%d, %d" % (S_X+2, X_BYTES))
    e("s_mov_b32 s%d, 0x20000" % (S_X+3))
    e("s_mov_b32 s%d, s6" % S_Wd)
    e("s_and_b32 s%d, s7, 0xffff" % (S_Wd+1))
    e("s_mov_b32 s%d, %d" % (S_Wd+2, W_BYTES))
    e("s_mov_b32 s%d, 0x20000" % (S_Wd+3))
    k = 0
    for t in range(5):
        ids[('x', 0)] = dma_x(0, t)
        if t < 4: xoff_calc(t+1)
        ids['w0'] = dma_w(k, WA, 0); k += 1
        ids['w0'] = dma_w(k, WA, 0); k += 1
    while k < 14:
        ids['w0'] = dma_w(k, WA, 0); k += 1
    for t in range(5):
        ids[('x', 1)] = dma_x(1, t)
    while k < 27:
        ids['w1'] = dma_w(k, WA, 0); k += 1
    e("s_mov_b32 s%d, s36" % S_O)
    e("s_and_b32 s%d, s37, 0xffff" % (S_O+1))
    e("s_mov_b32 s%d, %d" % (S_O+2, X_BYTES))
    e("s_mov_b32 s%d, 0x20000" % (S_O+3))
    e("s_mov_b32 s%d, 3072" % S_M1)
    e("s_mov_b32 s%d, 6144" % S_M2)
    e("s_add_u32 s%d, s%d, %d" % (S_W2L, S_WM0, WA + 13*4096))
    e("s_cmp_ge_u32 s%d, 2" % S_WAVE)
    e("s_cselect_b32 s%d, %d, s%d" % (S_W2L, SPARE, S_W2L))
    e("v_lshrrev_b32 v3, 4, v2")
    e("v_lshrrev_b32 v4, 2, v2")
    e("v_and_b32 v4, 3, v4")
    e("v_lshl_add_u32 v4, v3, 3, v4")
    e("v_mul_u32_u24 v4, 192, v4")
    e("v_and_b32 v5, 3, v2")
    e("v_mul_u32_u24 v5, 24, v5")
    e("v_add_u32 v4, v4, v5")
    e("s_mul_i32 s%d, s%d, 96" % (S_T2, S_HH))
    e("v_add_u32 v%d, s%d, v4" % (V_WTR, S_T2))
    e("v_add_u32 v%d, %d, v%d" % (V_WTRA, WB, V_WTR))
    e("v_and_b32 v4, 15, v2")
    for j in range(3):
        e("v_add_u32 v5, %d, v4" % (2*j))
        e("v_lshrrev_b32 v6, 1, v5")
        e("v_and_b32 v6, 2, v6")
        e("v_xor_b32 v6, v6, v3")
        e("v_mul_u32_u24 v5, 192, v5")
        e("v_lshl_add_u32 v%d, v6, 4, v5" % (V_BL+j))
    e("s_mul_i32 s%d, s%d, 12" % (S_T2, S_G))
    e("s_add_u32 s%d, s%d, s%d" % (S_T2, S_T2, S_S))
    e("s_lshl_b32 s%d, s%d, 1" % (S_T2, S_T2))
    e("s_add_u32 s%d, s%d, s%d" % (S_T2, S_T2, S_PAR))
    e("s_mul_i32 s%d, s%d, 384" % (S_T2, S_T2))
    e("s_add_u32 s%d, s%d, s%d" % (S_T2, S_T2, S_COL0))
    e("s_mul_i32 s%d, s%d, 192" % (S_T2, S_T2))
    e("s_mul_i32 s%d, s%d, 96" % (S_T3, S_HH))
    e("s_add_u32 s%d, s%d, s%d" % (S_T2, S_T2, S_T3))
    e("v_mul_u32_u24 v5, 192, v4")
    e("v_mul_u32_u24 v6, 24, v3")
    e("v_add3_u32 v%d, v5, v6, s%d" % (V_OADDR, S_T2))
    e("s_cmp_eq_u32 s%d, 0" % S_S)

def rowaddr(r): return PSLOT[r//2] + (r % 2)*SLOT

GROUPS = [(0,0),(1,0),(0,1),(0,2),(1,1),(1,2)] + [(t,i) for t in range(2,6) for i in range(3)]

wid = {}
def tr_read_frag(f):
    i = f // 27
    ks_l = (f // 3) % 9
    tp = f % 3
    reg = V_WTRA if i == 1 else V_WTR
    for hf in range(2):
        off = ks_l*6144 + hf*768 + tp*8
        e("ds_read_b64_tr_b16 %s, v%d offset:%d" % (wfrag_half(f, hf), reg, off))
        wid[f] = lg.issue()

def main_loop():
    items = []
    first = {}
    for gi, (t, i) in enumerate(GROUPS):
        first[gi] = len(items)
        for m in range(3):
            for kq in range(9):
                items.append((gi, t, i, m, kq))
    N = len(items)
    ev = {}
    def at(n, fn):
        ev.setdefault(max(n, -1), []).append(fn)
    gidx = {g: k for k, g in enumerate(GROUPS)}
    def set_baddr(gi):
        t, i = GROUPS[gi]
        r0 = 2*t + i
        def fn():
            e("s_mul_i32 s%d, s%d, %d" % (S_ROW, S_S, rowaddr(r0+1) - rowaddr(r0)))
            e("s_add_u32 s%d, s%d, %d" % (S_ROW, S_ROW, rowaddr(r0)))
            for j in range(3):
                e("v_add_u32 v%d, s%d, v%d" % (V_BA + 3*(gi % 2) + j, S_ROW, V_BL + j))
        return fn
    ldid = {}
    def load(n):
        gi, t, i, m, kq = items[n]
        j, kk = kq // 3, kq % 3
        e("ds_read_b128 %s, v%d offset:%d" % (vr(V_B + 4*(n % NB), 4), V_BA + 3*(gi % 2) + j, m*3072 + kk*64))
        ldid[n] = lg.issue()
    def barrier(vmids=(), lgids=()):
        def fn():
            for x in lgids: lg.wait(x() if callable(x) else x)
            for x in vmids: vm.wait(x() if callable(x) else x)
            e("s_barrier")
            stamp()
        return fn
    L = lambda gi: first[gi] - D
    for gi in range(1, len(GROUPS)):
        at(L(gi), set_baddr(gi))
    g00, g10, g01, g02, g11, g12 = 0, 1, 2, 3, 4, 5
    for kq in range(DW, 9):
        at(first[g00] + kq - DW, (lambda kq=kq: [tr_read_frag(kq*3 + tp) for tp in range(3)]))
    at(L(g10), barrier(vmids=[lambda: ids['w1'], lambda: ids[('x',1)]], lgids=[lambda: wid[26]]))
    for k in range(14):
        def fn(k=k):
            ids['w2'] = dma_w(k, WA, 0, last=(k == 13))
        at(L(g10) + 1 + 2*k, fn)
    for f in range(27):
        at(L(g10) + 1 + f, (lambda f=f: tr_read_frag(27 + f)))
    at(L(g01) + 1, barrier(lgids=[lambda: wid[53]]))
    for u in (2, 3):
        for t in range(5):
            def fn(u=u, t=t): ids[('x', u)] = dma_x(u, t)
            at(L(g01) + 2 + 2*((u-2)*5 + t), fn)
    at(first[g02] - DW - 1, barrier(vmids=[lambda: ids['w2']]))
    for kq in range(9):
        at(first[g02] + kq - DW, (lambda kq=kq: [tr_read_frag(54 + kq*3 + tp) for tp in range(3)]))
    at(L(g11), barrier(vmids=[lambda: ids[('x',2)]], lgids=[lambda: wid[80]]))
    kx = 0
    for u in (4, 5, 6):
        for t in range(5):
            def fn(u=u, t=t): ids[('x', u)] = dma_x(u, t)
            at(L(g11) + 1 + 3*kx, fn); kx += 1
    for u in (3, 4, 5, 6):
        at(L(gidx[(u-1, 1)]), barrier(vmids=[lambda u=u: ids[('x', u)]]))
    vm.wait(ids['w0'])
    e("s_barrier")
    stamp()
    set_baddr(0)()
    for kq in range(DW):
        for tp in range(3): tr_read_frag(kq*3 + tp)
    for n in range(D): load(n)
    pend = []
    for n in range(N):
        gi, t, i, m, kq = items[n]
        for fn in ev.get(n, []): fn()
        if n + D < N: load(n + D)
        acc = V_ACC + 36*(t % 2) + 12*m
        ks = 9*i + kq
        lg.wait(max(ldid[n], wid[ks*3], wid[ks*3+1], wid[ks*3+2]))
        b = vr(V_B + 4*(n % NB), 4)
        for tp in range(3):
            a = vr(acc + 4*tp, 4)
            c = "0" if (i == 0 and kq == 0) else a
            e("v_mfma_f32_16x16x32_bf16 %s, %s, %s, %s" % (a, wfrag(ks*3+tp), b, c))
        if kq == 3 and pend:
            epi(*pend.pop(0))
        if i == 2 and kq == 8:
            pend.append((t, m, acc))
    e("s_nop 7")
    e("s_nop 7")
    epi(*pend.pop(0))
    stamp()
    e("s_waitcnt vmcnt(0)")
    stamp()
    dump_stamps()

epi_n = [0]
def epi(t, m, acc):
    pk = V_PK + 6*(epi_n[0] % 2); epi_n[0] += 1
    for d in range(6):
        e("v_cvt_pk_bf16_f32 v%d, v%d, v%d" % (pk+d, acc+2*d, acc+2*d+1))
    so = ["0", "s%d" % S_M1, "s%d" % S_M2][m]
    e("buffer_store_dwordx4 %s, v%d, s[%d:%d], %s offen" % (vr(pk, 4), V_OADDR, S_O, S_O+3, so))
    e("buffer_store_dwordx2 %s, v%d, s[%d:%d], %s offen offset:16" % (vr(pk+4, 2), V_OADDR, S_O, S_O+3, so))
    vm.issue(); vm.issue()
    if m == 2:
        e("v_add_u32 v%d, %d, v%d" % (V_OADDR, 4*ROWB, V_OADDR))

header()
setup_and_issue()
main_loop()
footer()
open(sys.argv[1], "w").write("\n".join(out) + "\n")
print("lines", len(out))
```

```python
import sys, os

KNAME = "standalone__dilated_atrous__vision_kernel"
X_BYTES = 384*384*96*2
W_BYTES = 9*96*96*2
ROWB = 384*192
SLOT = 10240
WA = 0
WB = 55296
XC = 110592
SPARE = 151552
PSLOT = [XC, XC+20480, WB, WB+20480, 0, 20480, XC]
NB = 6
D = int(os.environ.get("D", "4"))
DW = 3

STAMP = len(sys.argv) > 2 and sys.argv[2] == "stamp"
out = []
def e(s): out.append("    " + s)

V_XOFF = 16
V_WOFF = 21
V_WTR = 22
V_WTRA = 23
V_BL = 24
V_OADDR = 27
V_BA = 28
V_PK = 36
V_B = 48
V_ACC = 72
V_W = 188

def wfrag(f):
    if f < 64: return "a[%d:%d]" % (4*f, 4*f+3)
    b = V_W + 4*(f-64)
    return "v[%d:%d]" % (b, b+3)
def wfrag_half(f, hf):
    if f < 64: return "a[%d:%d]" % (4*f+2*hf, 4*f+2*hf+1)
    b = V_W + 4*(f-64) + 2*hf
    return "v[%d:%d]" % (b, b+1)
def vr(b, n): return "v[%d:%d]" % (b, b+n-1)

S_X = 8; S_Wd = 12; S_O = 16
S_WAVE = 20; S_HH = 21; S_S = 22; S_CS = 23; S_PAR = 24; S_G = 25
S_T0 = 26; S_T1 = 27; S_T2 = 28; S_T3 = 29
S_M1 = 30; S_M2 = 31
S_XM0 = 32
S_WM0 = 33
S_COL0 = 34
S_W2L = 35
S_ROW = 38

nstamp = [0]
def stamp():
    if not STAMP: return
    k = nstamp[0]; nstamp[0] += 1
    e("s_memtime s[44:45]")
    e("s_waitcnt lgkmcnt(0)")
    lg.clear()
    e("s_mov_b32 s%d, s44" % (64 + k))
def rstamp():
    if not STAMP: return
    k = nstamp[0]; nstamp[0] += 1
    e("s_memrealtime s[44:45]")
    e("s_waitcnt lgkmcnt(0)")
    lg.clear()
    e("s_mov_b32 s%d, s44" % (64 + k))
def dump_stamps():
    if not STAMP: return
    e("s_load_dwordx2 s[46:47], s[0:1], 24")
    e("s_waitcnt lgkmcnt(0)")
    e("s_mov_b32 s48, s46")
    e("s_and_b32 s49, s47, 0xffff")
    e("s_mov_b32 s50, 256")
    e("s_mov_b32 s51, 0x20000")
    e("s_mov_b32 s52, 1024")
    e("s_lshl_b32 s53, s2, 2")
    e("s_add_u32 s53, s53, s%d" % S_WAVE)
    e("s_cmp_eq_u32 s53, 0")
    e("s_cselect_b32 s52, 0, s52")
    e("s_cmp_eq_u32 s53, %d" % (133*4+3))
    e("s_cselect_b32 s52, 128, s52")
    e("v_mov_b32 v1, s52")
    for k in range(nstamp[0]):
        e("v_mov_b32 v2, s%d" % (64+k))
        e("buffer_store_dword v2, v1, s[48:51], 0 offen offset:%d" % (4*k))
    e("s_waitcnt vmcnt(0)")

class Tracker:
    def __init__(self, name, maxv):
        self.name = name; self.maxv = maxv; self.ops = []; self.done = 0; self.n = 0
    def issue(self, tag=None):
        self.n += 1
        return self.n
    def wait(self, opid):
        if opid is None or opid <= self.done: return
        cnt = self.n - opid
        cnt = min(cnt, self.maxv)
        e("s_waitcnt %s(%d)" % (self.name, cnt))
        self.done = self.n - cnt
    def clear(self):
        self.done = self.n
lg = Tracker("lgkmcnt", 15)
vm = Tracker("vmcnt", 63)

def header():
    out.append("""; Kernarg layout for this problem (40 bytes, ptrs only, base s[0:1]):
;   offset   0: d_in[0] x  shape=(1, 384, 384, 96) dtype=bfloat16
;   offset   8: d_in[1] w  shape=(3, 3, 96, 96) dtype=bfloat16
;   offset  16: d_out     shape=(1, 384, 384, 96) dtype=bfloat16 (2 bytes/elem)
;   offset  24: d_debug   256 bytes
;   offset  32: d_ws      268435456 bytes workspace
; @launch grid=(256,1,1) block=(256,1,1) lds=163840
.amdgcn_target "amdgcn-amd-amdhsa--gfx950"
.text
.globl %s
.p2align 8
.type %s,@function
%s:""" % (KNAME, KNAME, KNAME))

def footer():
    out.append("""L_end:
    s_endpgm
.section .rodata,"a"
.p2align 6
.amdhsa_kernel %s
  .amdhsa_next_free_vgpr 512
  .amdhsa_next_free_sgpr 100
  .amdhsa_accum_offset 256
  .amdhsa_group_segment_fixed_size 0
  .amdhsa_kernarg_size 40
  .amdhsa_user_sgpr_count 2
  .amdhsa_user_sgpr_kernarg_segment_ptr 1
  .amdhsa_system_sgpr_workgroup_id_x 1
.end_amdhsa_kernel""" % KNAME)

def dma_w(k, region_base, src_base, last=False):
    if last:
        e("s_mov_b32 m0, s%d" % S_W2L)
    else:
        e("s_add_u32 m0, s%d, %d" % (S_WM0, region_base + k*4096))
    e("s_nop 0")
    e("buffer_load_dwordx4 v%d, s[%d:%d], 0 offen lds" % (V_WOFF, S_Wd, S_Wd+3))
    e("v_add_u32 v%d, 0x1000, v%d" % (V_WOFF, V_WOFF))
    return vm.issue()

def dma_x(u, t):
    e("s_add_u32 m0, s%d, %d" % (S_XM0, PSLOT[u] + t*1024))
    e("s_nop 0")
    e("buffer_load_dwordx4 v%d, s[%d:%d], 0 offen lds" % (V_XOFF+t, S_X, S_X+3))
    e("v_add_u32 v%d, %d, v%d" % (V_XOFF+t, 4*ROWB, V_XOFF+t))
    return vm.issue()

def xoff_calc(t):
    e("s_add_u32 s%d, s%d, %d" % (S_T2, S_T1, t))
    e("s_cmp_ge_u32 s%d, 10" % S_T2)
    e("s_cselect_b32 s42, 10, 0")
    e("s_cselect_b32 s%d, %d, 0" % (S_T3, 2*ROWB))
    e("s_sub_u32 s%d, s%d, s42" % (S_T2, S_T2))
    e("s_add_u32 s%d, s%d, s%d" % (S_T3, S_T3, S_T0))
    e("s_lshl_b32 s%d, s%d, 6" % (S_T2, S_T2))
    e("v_add_u32 v3, s%d, v2" % S_T2)
    e("v_mul_u32_u24 v4, 43691, v3")
    e("v_lshrrev_b32 v4, 19, v4")
    e("v_mul_u32_u24 v5, 12, v4")
    e("v_sub_u32 v5, v3, v5")
    e("v_lshrrev_b32 v6, 1, v4")
    e("v_and_b32 v6, 2, v6")
    e("v_xor_b32 v5, v5, v6")
    e("v_add_u32 v6, s%d, v4" % S_COL0)
    e("v_subrev_u32 v6, 2, v6")
    e("v_mul_u32_u24 v7, 192, v6")
    e("v_lshl_add_u32 v7, v5, 4, v7")
    e("v_add_u32 v7, s%d, v7" % S_T3)
    e("v_mov_b32 v8, 0x80000000")
    e("v_add_u32 v8, s%d, v8" % S_T3)
    e("v_cmp_gt_u32 vcc, 384, v6")
    e("v_cmp_gt_u32 s[40:41], 52, v4")
    e("s_and_b64 vcc, vcc, s[40:41]")
    e("s_nop 1")
    e("v_cndmask_b32 v%d, v8, v7, vcc" % (V_XOFF+t))

ids = {}
def setup_and_issue():
    e("s_cmp_ge_u32 s2, 256")
    e("s_cbranch_scc1 L_end")
    stamp()
    if STAMP:
        e("s_memrealtime s[44:45]")
        e("s_waitcnt lgkmcnt(0)")
        e("s_mov_b32 s90, s44")
    e("s_load_dwordx4 s[4:7], s[0:1], 0")
    e("s_load_dwordx2 s[36:37], s[0:1], 16")
    e("v_lshrrev_b32 v1, 6, v0")
    e("v_and_b32 v2, 63, v0")
    e("s_and_b32 s%d, s2, 7" % S_CS)
    e("v_readfirstlane_b32 s%d, v1" % S_WAVE)
    e("s_lshr_b32 s%d, s2, 3" % S_T0)
    e("s_and_b32 s%d, s%d, 1" % (S_PAR, S_T0))
    e("s_lshr_b32 s%d, s%d, 1" % (S_G, S_T0))
    e("s_mul_i32 s%d, s%d, 48" % (S_COL0, S_CS))
    e("s_and_b32 s%d, s%d, 1" % (S_HH, S_WAVE))
    e("s_lshr_b32 s%d, s%d, 1" % (S_S, S_WAVE))
    e("s_mul_i32 s%d, s%d, 5120" % (S_XM0, S_WAVE))
    e("s_lshl_b32 s%d, s%d, 10" % (S_WM0, S_WAVE))
    e("v_lshlrev_b32 v%d, 4, v2" % V_WOFF)
    e("v_add_u32 v%d, s%d, v%d" % (V_WOFF, S_WM0, V_WOFF))
    e("s_mul_i32 s%d, s%d, 24" % (S_T0, S_G))
    e("s_add_u32 s%d, s%d, s%d" % (S_T0, S_T0, S_PAR))
    e("s_sub_u32 s%d, s%d, 2" % (S_T0, S_T0))
    e("s_mul_i32 s%d, s%d, %d" % (S_T0, S_T0, ROWB))
    e("s_mul_i32 s%d, s%d, 5" % (S_T1, S_WAVE))
    xoff_calc(0)
    e("s_waitcnt lgkmcnt(0)")
    e("s_mov_b32 s%d, s4" % S_X)
    e("s_and_b32 s%d, s5, 0xffff" % (S_X+1))
    e("s_mov_b32 s%d, %d" % (S_X+2, X_BYTES))
    e("s_mov_b32 s%d, 0x20000" % (S_X+3))
    e("s_mov_b32 s%d, s6" % S_Wd)
    e("s_and_b32 s%d, s7, 0xffff" % (S_Wd+1))
    e("s_mov_b32 s%d, %d" % (S_Wd+2, W_BYTES))
    e("s_mov_b32 s%d, 0x20000" % (S_Wd+3))
    k = 0
    for t in range(5):
        ids[('x', 0)] = dma_x(0, t)
        if t < 4: xoff_calc(t+1)
        ids['w0'] = dma_w(k, WA, 0); k += 1
        ids['w0'] = dma_w(k, WA, 0); k += 1
    while k < 14:
        ids['w0'] = dma_w(k, WA, 0); k += 1
    for t in range(5):
        ids[('x', 1)] = dma_x(1, t)
    while k < 27:
        ids['w1'] = dma_w(k, WA, 0); k += 1
    e("s_mov_b32 s%d, s36" % S_O)
    e("s_and_b32 s%d, s37, 0xffff" % (S_O+1))
    e("s_mov_b32 s%d, %d" % (S_O+2, X_BYTES))
    e("s_mov_b32 s%d, 0x20000" % (S_O+3))
    e("s_mov_b32 s%d, 3072" % S_M1)
    e("s_mov_b32 s%d, 6144" % S_M2)
    e("s_add_u32 s%d, s%d, %d" % (S_W2L, S_WM0, WA + 13*4096))
    e("s_cmp_ge_u32 s%d, 2" % S_WAVE)
    e("s_cselect_b32 s%d, %d, s%d" % (S_W2L, SPARE, S_W2L))
    e("v_lshrrev_b32 v3, 4, v2")
    e("v_lshrrev_b32 v4, 2, v2")
    e("v_and_b32 v4, 3, v4")
    e("v_lshl_add_u32 v4, v3, 3, v4")
    e("v_mul_u32_u24 v4, 192, v4")
    e("v_and_b32 v5, 3, v2")
    e("v_mul_u32_u24 v5, 24, v5")
    e("v_add_u32 v4, v4, v5")
    e("s_mul_i32 s%d, s%d, 96" % (S_T2, S_HH))
    e("v_add_u32 v%d, s%d, v4" % (V_WTR, S_T2))
    e("v_add_u32 v%d, %d, v%d" % (V_WTRA, WB, V_WTR))
    e("v_and_b32 v4, 15, v2")
    for j in range(3):
        e("v_add_u32 v5, %d, v4" % (2*j))
        e("v_lshrrev_b32 v6, 1, v5")
        e("v_and_b32 v6, 2, v6")
        e("v_xor_b32 v6, v6, v3")
        e("v_mul_u32_u24 v5, 192, v5")
        e("v_lshl_add_u32 v%d, v6, 4, v5" % (V_BL+j))
    e("s_mul_i32 s%d, s%d, 12" % (S_T2, S_G))
    e("s_add_u32 s%d, s%d, s%d" % (S_T2, S_T2, S_S))
    e("s_lshl_b32 s%d, s%d, 1" % (S_T2, S_T2))
    e("s_add_u32 s%d, s%d, s%d" % (S_T2, S_T2, S_PAR))
    e("s_mul_i32 s%d, s%d, 384" % (S_T2, S_T2))
    e("s_add_u32 s%d, s%d, s%d" % (S_T2, S_T2, S_COL0))
    e("s_mul_i32 s%d, s%d, 192" % (S_T2, S_T2))
    e("s_mul_i32 s%d, s%d, 96" % (S_T3, S_HH))
    e("s_add_u32 s%d, s%d, s%d" % (S_T2, S_T2, S_T3))
    e("v_mul_u32_u24 v5, 192, v4")
    e("v_mul_u32_u24 v6, 24, v3")
    e("v_add3_u32 v%d, v5, v6, s%d" % (V_OADDR, S_T2))
    e("s_cmp_eq_u32 s%d, 0" % S_S)

def rowaddr(r): return PSLOT[r//2] + (r % 2)*SLOT

GROUPS = [(0,0),(1,0),(0,1),(0,2),(1,1),(1,2)] + [(t,i) for t in range(2,6) for i in range(3)]

wid = {}
def tr_read_frag(f):
    i = f // 27
    ks_l = (f // 3) % 9
    tp = f % 3
    reg = V_WTRA if i == 1 else V_WTR
    for hf in range(2):
        off = ks_l*6144 + hf*768 + tp*8
        e("ds_read_b64_tr_b16 %s, v%d offset:%d" % (wfrag_half(f, hf), reg, off))
        wid[f] = lg.issue()

def main_loop():
    items = []
    first = {}
    for gi, (t, i) in enumerate(GROUPS):
        first[gi] = len(items)
        for m in range(3):
            for kq in range(9):
                items.append((gi, t, i, m, kq))
    N = len(items)
    ev = {}
    def at(n, fn):
        ev.setdefault(max(n, -1), []).append(fn)
    gidx = {g: k for k, g in enumerate(GROUPS)}
    def set_baddr(gi):
        t, i = GROUPS[gi]
        r0 = 2*t + i
        def fn():
            e("s_mul_i32 s%d, s%d, %d" % (S_ROW, S_S, rowaddr(r0+1) - rowaddr(r0)))
            e("s_add_u32 s%d, s%d, %d" % (S_ROW, S_ROW, rowaddr(r0)))
            for j in range(3):
                e("v_add_u32 v%d, s%d, v%d" % (V_BA + 3*(gi % 2) + j, S_ROW, V_BL + j))
        return fn
    ldid = {}
    def load(n):
        gi, t, i, m, kq = items[n]
        j, kk = kq // 3, kq % 3
        e("ds_read_b128 %s, v%d offset:%d" % (vr(V_B + 4*(n % NB), 4), V_BA + 3*(gi % 2) + j, m*3072 + kk*64))
        ldid[n] = lg.issue()
    def barrier(vmids=(), lgids=()):
        def fn():
            for x in lgids: lg.wait(x() if callable(x) else x)
            for x in vmids: vm.wait(x() if callable(x) else x)
            e("s_barrier")
            stamp()
        return fn
    L = lambda gi: first[gi] - D
    for gi in range(1, len(GROUPS)):
        at(L(gi), set_baddr(gi))
    g00, g10, g01, g02, g11, g12 = 0, 1, 2, 3, 4, 5
    for kq in range(DW, 9):
        at(first[g00] + kq - DW, (lambda kq=kq: [tr_read_frag(kq*3 + tp) for tp in range(3)]))
    at(L(g10), barrier(vmids=[lambda: ids['w1'], lambda: ids[('x',1)]], lgids=[lambda: wid[26]]))
    for k in range(14):
        def fn(k=k):
            ids['w2'] = dma_w(k, WA, 0, last=(k == 13))
        at(L(g10) + 1 + 2*k, fn)
    for f in range(27):
        at(L(g10) + 1 + f, (lambda f=f: tr_read_frag(27 + f)))
    at(L(g01) + 1, barrier(lgids=[lambda: wid[53]]))
    for u in (2, 3):
        for t in range(5):
            def fn(u=u, t=t): ids[('x', u)] = dma_x(u, t)
            at(L(g01) + 2 + 2*((u-2)*5 + t), fn)
    at(first[g02] - DW - 1, barrier(vmids=[lambda: ids['w2']]))
    for kq in range(9):
        at(first[g02] + kq - DW, (lambda kq=kq: [tr_read_frag(54 + kq*3 + tp) for tp in range(3)]))
    at(L(g11), barrier(vmids=[lambda: ids[('x',2)]], lgids=[lambda: wid[80]]))
    kx = 0
    for u in (4, 5, 6):
        for t in range(5):
            def fn(u=u, t=t): ids[('x', u)] = dma_x(u, t)
            at(L(g11) + 1 + 3*kx, fn); kx += 1
    for u in (3, 4, 5, 6):
        at(L(gidx[(u-1, 1)]), barrier(vmids=[lambda u=u: ids[('x', u)]]))
    vm.wait(ids['w0'])
    e("s_barrier")
    stamp()
    set_baddr(0)()
    for kq in range(DW):
        for tp in range(3): tr_read_frag(kq*3 + tp)
    for n in range(D): load(n)
    pend = []
    for n in range(N):
        gi, t, i, m, kq = items[n]
        for fn in ev.get(n, []): fn()
        if n + D < N: load(n + D)
        acc = V_ACC + 36*(t % 2) + 12*m
        ks = 9*i + kq
        lg.wait(max(ldid[n], wid[ks*3], wid[ks*3+1], wid[ks*3+2]))
        b = vr(V_B + 4*(n % NB), 4)
        for tp in range(3):
            a = vr(acc + 4*tp, 4)
            c = "0" if (i == 0 and kq == 0) else a
            e("v_mfma_f32_16x16x32_bf16 %s, %s, %s, %s" % (a, wfrag(ks*3+tp), b, c))
        if kq == 3 and pend:
            epi(*pend.pop(0))
        if i == 2 and kq == 8:
            pend.append((t, m, acc))
    e("s_nop 7")
    e("s_nop 7")
    epi(*pend.pop(0))
    stamp()
    e("s_waitcnt vmcnt(0)")
    stamp()
    rstamp()
    e("s_mov_b32 s%d, s90" % (64 + nstamp[0])); nstamp[0] += 1
    dump_stamps()

epi_n = [0]
def epi(t, m, acc):
    pk = V_PK + 6*(epi_n[0] % 2); epi_n[0] += 1
    for d in range(6):
        e("v_cvt_pk_bf16_f32 v%d, v%d, v%d" % (pk+d, acc+2*d, acc+2*d+1))
    so = ["0", "s%d" % S_M1, "s%d" % S_M2][m]
    e("buffer_store_dwordx4 %s, v%d, s[%d:%d], %s offen" % (vr(pk, 4), V_OADDR, S_O, S_O+3, so))
    e("buffer_store_dwordx2 %s, v%d, s[%d:%d], %s offen offset:16" % (vr(pk+4, 2), V_OADDR, S_O, S_O+3, so))
    vm.issue(); vm.issue()
    if m == 2:
        e("v_add_u32 v%d, %d, v%d" % (V_OADDR, 4*ROWB, V_OADDR))

header()
setup_and_issue()
main_loop()
footer()
open(sys.argv[1], "w").write("\n".join(out) + "\n")
print("lines", len(out))
```

```python
import sys, os
from collections import deque

KNAME = "standalone__dilated_atrous__vision_kernel"
X_BYTES = 384*384*96*2
W_BYTES = 9*96*96*2
ROWB = 384*192
SLOT = 10240
WA = 0
XB = 55296
SPARE = 157696
PSLOT = [XB, XB+20480, XB+40960, XB+61440, XB+81920, XB, XB+20480]
SB = [0, 20480]
OPITCH = 208
NB = 6
D = int(os.environ.get("D", "4"))
DW = int(os.environ.get("DW", "3"))
FPG = int(os.environ.get("FPG", "1"))
XNT = os.environ.get("XNT", "nt ")
SNT = os.environ.get("SNT", "sc1")

STAMP = len(sys.argv) > 2 and sys.argv[2] == "stamp"
out = []
def e(s): out.append("    " + s)

V_XOFF = 16
V_WOFF = 21
V_WTR = 24
V_BL = 27
V_BA = 30
V_PK = 36
V_B = 48
V_ACC = 72
V_SW = 180
V_SR = 181
V_OA = 186
V_W = 188
V_RB = 1

def wfrag(f):
    if f < 64: return "a[%d:%d]" % (4*f, 4*f+3)
    b = V_W + 4*(f-64)
    return "v[%d:%d]" % (b, b+3)
def wfrag_half(f, hf):
    if f < 64: return "a[%d:%d]" % (4*f+2*hf, 4*f+2*hf+1)
    b = V_W + 4*(f-64) + 2*hf
    return "v[%d:%d]" % (b, b+1)
def vr(b, n): return "v[%d:%d]" % (b, b+n-1)

S_X = 8; S_Wd = 12; S_O = 16
S_WAVE = 20; S_HH = 21; S_S = 22; S_CS = 23; S_PAR = 24; S_G = 25
S_T0 = 26; S_T1 = 27; S_T2 = 28; S_T3 = 29
S_XM0 = 32; S_WM0 = 33; S_COL0 = 34; S_W2L = 35; S_ROW = 38

nstamp = [0]
def stamp():
    if not STAMP: return
    k = nstamp[0]; nstamp[0] += 1
    e("s_memtime s[44:45]")
    e("s_waitcnt lgkmcnt(0)")
    lg.clear()
    e("s_mov_b32 s%d, s44" % (64 + k))
def rstamp():
    if not STAMP: return
    k = nstamp[0]; nstamp[0] += 1
    e("s_memrealtime s[44:45]")
    e("s_waitcnt lgkmcnt(0)")
    lg.clear()
    e("s_mov_b32 s%d, s44" % (64 + k))
def dump_stamps():
    if not STAMP: return
    e("s_load_dwordx2 s[46:47], s[0:1], 24")
    e("s_waitcnt lgkmcnt(0)")
    e("s_mov_b32 s48, s46")
    e("s_and_b32 s49, s47, 0xffff")
    e("s_mov_b32 s50, 256")
    e("s_mov_b32 s51, 0x20000")
    e("s_mov_b32 s52, 1024")
    e("s_lshl_b32 s53, s2, 2")
    e("s_add_u32 s53, s53, s%d" % S_WAVE)
    e("s_cmp_eq_u32 s53, 0")
    e("s_cselect_b32 s52, 0, s52")
    e("s_cmp_eq_u32 s53, %d" % (133*4+3))
    e("s_cselect_b32 s52, 128, s52")
    e("v_mov_b32 v1, s52")
    for k in range(nstamp[0]):
        e("v_mov_b32 v2, s%d" % (64+k))
        e("buffer_store_dword v2, v1, s[48:51], 0 offen offset:%d" % (4*k))
    e("s_waitcnt vmcnt(0)")

class Tracker:
    def __init__(self, name, maxv):
        self.name = name; self.maxv = maxv; self.done = 0; self.n = 0
    def issue(self):
        self.n += 1
        return self.n
    def wait(self, opid):
        if opid is None or opid <= self.done: return
        cnt = min(self.n - opid, self.maxv)
        e("s_waitcnt %s(%d)" % (self.name, cnt))
        self.done = self.n - cnt
    def clear(self):
        self.done = self.n
lg = Tracker("lgkmcnt", 15)
vm = Tracker("vmcnt", 63)

def header():
    out.append("""; Kernarg layout for this problem (40 bytes, ptrs only, base s[0:1]):
;   offset   0: d_in[0] x  shape=(1, 384, 384, 96) dtype=bfloat16
;   offset   8: d_in[1] w  shape=(3, 3, 96, 96) dtype=bfloat16
;   offset  16: d_out     shape=(1, 384, 384, 96) dtype=bfloat16 (2 bytes/elem)
;   offset  24: d_debug   256 bytes
;   offset  32: d_ws      268435456 bytes workspace
; @launch grid=(256,1,1) block=(256,1,1) lds=163840
.amdgcn_target "amdgcn-amd-amdhsa--gfx950"
.text
.globl %s
.p2align 8
.type %s,@function
%s:""" % (KNAME, KNAME, KNAME))

def footer():
    out.append("""L_end:
    s_endpgm
.section .rodata,"a"
.p2align 6
.amdhsa_kernel %s
  .amdhsa_next_free_vgpr 512
  .amdhsa_next_free_sgpr 100
  .amdhsa_accum_offset 256
  .amdhsa_group_segment_fixed_size 0
  .amdhsa_kernarg_size 40
  .amdhsa_user_sgpr_count 2
  .amdhsa_user_sgpr_kernarg_segment_ptr 1
  .amdhsa_system_sgpr_workgroup_id_x 1
.end_amdhsa_kernel""" % KNAME)

ids = {}
fq = deque()
def fill(k=FPG):
    for _ in range(k):
        if fq: fq.popleft()()
def flush():
    while fq: fq.popleft()()

def w_units(k, key):
    r = V_WOFF + (k % 3)
    def u0():
        if k == 13: e("s_mov_b32 m0, s%d" % S_W2L)
        else: e("s_add_u32 m0, s%d, %d" % (S_WM0, WA + k*4096))
    def u1():
        if " m0," in out[-1]: e("s_nop 0")
        e("buffer_load_dwordx4 v%d, s[%d:%d], 0 offen lds" % (r, S_Wd, S_Wd+3))
        ids[key] = vm.issue()
    def u2():
        c = k % 3
        if k + 3 <= 13: adv = 12288
        else: adv = 55296 - (k - c)*4096
        e("v_add_u32 v%d, 0x%x, v%d" % (r, adv, r))
    return [u0, u1, u2]
def x_units(u, t):
    def u0(): e("s_add_u32 m0, s%d, %d" % (S_XM0, PSLOT[u] + t*1024))
    def u1():
        if " m0," in out[-1]: e("s_nop 0")
        e("buffer_load_dwordx4 v%d, s[%d:%d], 0 offen %slds" % (V_XOFF+t, S_X, S_X+3, XNT))
        ids[('x', u)] = vm.issue()
    def u2(): e("v_add_u32 v%d, %d, v%d" % (V_XOFF+t, 4*ROWB, V_XOFF+t))
    return [u0, u1, u2]
def direct(units):
    for u in units: u()

def div12(dst, src):
    e("v_mul_u32_u24 v%d, 43691, v%d" % (dst, src))
    e("v_lshrrev_b32 v%d, 19, v%d" % (dst, dst))

def xoff_calc(t):
    e("s_add_u32 s%d, s%d, %d" % (S_T2, S_T1, t))
    e("s_cmp_ge_u32 s%d, 10" % S_T2)
    e("s_cselect_b32 s42, 10, 0")
    e("s_cselect_b32 s%d, %d, 0" % (S_T3, 2*ROWB))
    e("s_sub_u32 s%d, s%d, s42" % (S_T2, S_T2))
    e("s_add_u32 s%d, s%d, s%d" % (S_T3, S_T3, S_T0))
    e("s_lshl_b32 s%d, s%d, 6" % (S_T2, S_T2))
    e("v_add_u32 v3, s%d, v2" % S_T2)
    div12(4, 3)
    e("v_mul_u32_u24 v5, 12, v4")
    e("v_sub_u32 v5, v3, v5")
    e("v_lshrrev_b32 v6, 1, v4")
    e("v_and_b32 v6, 2, v6")
    e("v_xor_b32 v5, v5, v6")
    e("v_add_u32 v6, s%d, v4" % S_COL0)
    e("v_subrev_u32 v6, 2, v6")
    e("v_mul_u32_u24 v7, 192, v6")
    e("v_lshl_add_u32 v7, v5, 4, v7")
    e("v_add_u32 v7, s%d, v7" % S_T3)
    e("v_mov_b32 v8, 0x80000000")
    e("v_add_u32 v8, s%d, v8" % S_T3)
    e("v_cmp_gt_u32 vcc, 384, v6")
    e("v_cmp_gt_u32 s[40:41], 52, v4")
    e("s_and_b64 vcc, vcc, s[40:41]")
    e("s_nop 1")
    e("v_cndmask_b32 v%d, v8, v7, vcc" % (V_XOFF+t))

def woff_calc(c):
    e("s_lshl_b32 s%d, s%d, 6" % (S_T2, S_WAVE))
    e("s_add_u32 s%d, s%d, %d" % (S_T2, S_T2, c*256))
    e("v_add_u32 v3, s%d, v2" % S_T2)
    div12(4, 3)
    e("v_mul_u32_u24 v5, 12, v4")
    e("v_sub_u32 v5, v3, v5")
    e("v_lshrrev_b32 v6, 2, v4")
    e("v_and_b32 v6, 2, v6")
    e("v_sub_u32 v5, v5, v6")
    e("v_add_u32 v6, 12, v5")
    e("v_cmp_gt_i32 vcc, 0, v5")
    e("v_mul_u32_u24 v7, 192, v4")
    e("s_nop 0")
    e("v_cndmask_b32 v5, v5, v6, vcc")
    e("v_lshl_add_u32 v%d, v5, 4, v7" % (V_WOFF + c))

def setup_and_issue():
    e("s_cmp_ge_u32 s2, 256")
    e("s_cbranch_scc1 L_end")
    stamp()
    if STAMP:
        e("s_memrealtime s[44:45]")
        e("s_waitcnt lgkmcnt(0)")
        e("s_mov_b32 s90, s44")
    e("s_load_dwordx4 s[4:7], s[0:1], 0")
    e("s_load_dwordx2 s[36:37], s[0:1], 16")
    e("v_lshrrev_b32 v1, 6, v0")
    e("v_and_b32 v2, 63, v0")
    e("s_and_b32 s%d, s2, 7" % S_CS)
    e("v_readfirstlane_b32 s%d, v1" % S_WAVE)
    e("s_lshr_b32 s%d, s2, 3" % S_T0)
    e("s_and_b32 s%d, s%d, 1" % (S_PAR, S_T0))
    e("s_lshr_b32 s%d, s%d, 1" % (S_G, S_T0))
    e("s_mul_i32 s%d, s%d, 48" % (S_COL0, S_CS))
    e("s_and_b32 s%d, s%d, 1" % (S_HH, S_WAVE))
    e("s_lshr_b32 s%d, s%d, 1" % (S_S, S_WAVE))
    e("s_mul_i32 s%d, s%d, 5120" % (S_XM0, S_WAVE))
    e("s_lshl_b32 s%d, s%d, 10" % (S_WM0, S_WAVE))
    e("s_add_u32 s%d, s%d, %d" % (S_W2L, S_WM0, WA + 13*4096))
    e("s_cmp_ge_u32 s%d, 2" % S_WAVE)
    e("s_cselect_b32 s%d, %d, s%d" % (S_W2L, SPARE, S_W2L))
    e("s_mul_i32 s%d, s%d, 24" % (S_T0, S_G))
    e("s_add_u32 s%d, s%d, s%d" % (S_T0, S_T0, S_PAR))
    e("s_sub_u32 s%d, s%d, 2" % (S_T0, S_T0))
    e("s_mul_i32 s%d, s%d, %d" % (S_T0, S_T0, ROWB))
    e("s_mul_i32 s%d, s%d, 5" % (S_T1, S_WAVE))
    for t in range(5): xoff_calc(t)
    for c in range(3): woff_calc(c)
    e("s_waitcnt lgkmcnt(0)")
    e("s_mov_b32 s%d, s4" % S_X)
    e("s_and_b32 s%d, s5, 0xffff" % (S_X+1))
    e("s_mov_b32 s%d, %d" % (S_X+2, X_BYTES))
    e("s_mov_b32 s%d, 0x20000" % (S_X+3))
    e("s_mov_b32 s%d, s6" % S_Wd)
    e("s_and_b32 s%d, s7, 0xffff" % (S_Wd+1))
    e("s_mov_b32 s%d, %d" % (S_Wd+2, W_BYTES))
    e("s_mov_b32 s%d, 0x20000" % (S_Wd+3))
    for t in range(5): direct(x_units(0, t))
    for k in range(14): direct(w_units(k, 'w0'))
    for t in range(5): direct(x_units(1, t))
    e("s_mov_b32 s%d, s36" % S_O)
    e("s_and_b32 s%d, s37, 0xffff" % (S_O+1))
    e("s_mov_b32 s%d, %d" % (S_O+2, X_BYTES))
    e("s_mov_b32 s%d, 0x20000" % (S_O+3))
    e("v_lshrrev_b32 v3, 4, v2")
    e("v_lshrrev_b32 v4, 2, v2")
    e("v_and_b32 v4, 3, v4")
    e("v_lshl_add_u32 v4, v3, 3, v4")
    e("v_mul_u32_u24 v4, 192, v4")
    e("v_and_b32 v5, 3, v2")
    e("v_mul_u32_u24 v5, 24, v5")
    e("s_mul_i32 s%d, s%d, 96" % (S_T2, S_HH))
    e("v_add_u32 v5, s%d, v5" % S_T2)
    e("v_and_b32 v6, 1, v3")
    e("v_lshlrev_b32 v6, 5, v6")
    e("v_add_u32 v5, v5, v6")
    for tp in range(3):
        e("v_add_u32 v6, %d, v5" % (8*tp))
        e("v_subrev_u32 v7, 192, v6")
        e("v_cmp_le_u32 vcc, 192, v6")
        e("s_nop 1")
        e("v_cndmask_b32 v6, v6, v7, vcc")
        e("v_add_u32 v%d, v4, v6" % (V_WTR + tp))
    e("v_and_b32 v4, 15, v2")
    for j in range(3):
        e("v_add_u32 v5, %d, v4" % (2*j))
        e("v_lshrrev_b32 v6, 1, v5")
        e("v_and_b32 v6, 2, v6")
        e("v_xor_b32 v6, v6, v3")
        e("v_mul_u32_u24 v5, 192, v5")
        e("v_lshl_add_u32 v%d, v6, 4, v5" % (V_BL+j))
    e("s_mul_i32 s%d, s%d, 9984" % (S_T3, S_S))
    e("s_add_u32 s%d, s%d, s%d" % (S_T2, S_T2, S_T3))
    e("v_mul_u32_u24 v5, %d, v4" % OPITCH)
    e("v_mul_u32_u24 v6, 24, v3")
    e("v_add3_u32 v%d, v5, v6, s%d" % (V_SW, S_T2))
    e("s_mul_i32 s%d, s%d, 320" % (S_T2, S_HH))
    for i in range(5):
        e("s_add_u32 s%d, s%d, %d" % (S_T1, S_T2, 64*i))
        e("v_add_u32 v5, s%d, v2" % S_T1)
        div12(6, 5)
        e("v_mul_u32_u24 v7, 12, v6")
        e("v_sub_u32 v7, v5, v7")
        e("v_mul_u32_u24 v6, %d, v6" % OPITCH)
        e("v_lshl_add_u32 v6, v7, 4, v6")
        e("v_add_u32 v%d, s%d, v6" % (V_SR + i, S_T3))
    e("s_mul_i32 s%d, s%d, 12" % (S_T2, S_G))
    e("s_add_u32 s%d, s%d, s%d" % (S_T2, S_T2, S_S))
    e("s_lshl_b32 s%d, s%d, 1" % (S_T2, S_T2))
    e("s_add_u32 s%d, s%d, s%d" % (S_T2, S_T2, S_PAR))
    e("s_mul_i32 s%d, s%d, 384" % (S_T2, S_T2))
    e("s_add_u32 s%d, s%d, s%d" % (S_T2, S_T2, S_COL0))
    e("s_mul_i32 s%d, s%d, 192" % (S_T2, S_T2))
    e("s_mul_i32 s%d, s%d, 5120" % (S_T3, S_HH))
    e("s_add_u32 s%d, s%d, s%d" % (S_T2, S_T2, S_T3))
    e("v_lshlrev_b32 v5, 4, v2")
    e("v_add_u32 v%d, s%d, v5" % (V_OA, S_T2))
    e("s_mul_i32 s%d, s%d, 0x40000000" % (S_T3, S_HH))
    e("s_add_u32 s%d, s%d, 4096" % (S_T3, S_T3))
    e("v_add_u32 v%d, s%d, v%d" % (V_OA+1, S_T3, V_OA))

def rowaddr(r): return PSLOT[r//2] + (r % 2)*SLOT

GROUPS = [(0,0),(1,0),(2,0),(0,1),(1,1),(2,1),(0,2),(1,2),(2,2)] + [(t,i) for t in range(3,6) for i in range(3)]

wid = {}
def tr_units(f):
    ks_l = (f // 3) % 9
    tp = f % 3
    us = []
    for hf in range(2):
        def u(hf=hf):
            off = WA + ks_l*6144 + hf*768
            e("ds_read_b64_tr_b16 %s, v%d offset:%d" % (wfrag_half(f, hf), V_WTR + tp, off))
            i = lg.issue()
            if hf == 1: wid[f] = i
        us.append(u)
    return us

epi_n = [0]
swid = {}
def epi_units(t, m, acc):
    pk = V_PK + 6*(epi_n[0] % 2); epi_n[0] += 1
    us = []
    for d in range(3):
        us.append(lambda d=d: e("v_cvt_pk_bf16_f32 v%d, v%d, v%d" % (pk+2*d, acc+4*d, acc+4*d+1)))
        us.append(lambda d=d: e("v_cvt_pk_bf16_f32 v%d, v%d, v%d" % (pk+2*d+1, acc+4*d+2, acc+4*d+3)))
        def w(d=d):
            e("ds_write_b64 v%d, %s offset:%d" % (V_SW, vr(pk+2*d, 2), SB[t % 2] + m*16*OPITCH + 8*d))
            swid[t] = lg.issue()
        us.append(w)
    return us

def readback_units(t):
    us = []
    rid = {}
    for i in range(5):
        def r(i=i):
            e("ds_read_b128 %s, v%d offset:%d" % (vr(4 + 4*(i % 3), 4), V_SR + i, SB[t % 2]))
            rid[i] = lg.issue()
        def s(i=i):
            lg.wait(rid[i])
            if i < 4: e("buffer_store_dwordx4 %s, v%d, s[%d:%d], 0 offen offset:%d %s" % (vr(4 + 4*(i % 3), 4), V_OA, S_O, S_O+3, 1024*i, SNT))
            else: e("buffer_store_dwordx4 %s, v%d, s[%d:%d], 0 offen %s" % (vr(4 + 4*(i % 3), 4), V_OA+1, S_O, S_O+3, SNT))
            vm.issue()
        us.append((r, s))
    nop = lambda: None
    seq = [us[0][0], us[1][0], us[2][0], nop, nop, nop, nop, nop, nop, us[0][1], nop, us[3][0], us[1][1], nop, us[4][0], us[2][1], nop, nop, nop, nop, nop, us[3][1], us[4][1]]
    seq.append(lambda: e("v_add_u32 v%d, %d, v%d" % (V_OA, 4*ROWB, V_OA)))
    seq.append(lambda: e("v_add_u32 v%d, %d, v%d" % (V_OA+1, 4*ROWB, V_OA+1)))
    return seq

def main_loop():
    items = []
    first = {}
    for gi, (t, i) in enumerate(GROUPS):
        first[gi] = len(items)
        for m in range(3):
            for kq in range(9):
                items.append((gi, t, i, m, kq))
    N = len(items)
    ev = {}
    def at(n, fn): ev.setdefault(max(n, -1), []).append(fn)
    def atq(n, units): at(n, lambda: fq.extend(units))
    G = {g: k for k, g in enumerate(GROUPS)}
    F = lambda t, i: first[G[(t, i)]]
    L = lambda t, i: first[G[(t, i)]] - D
    def baddr_units(gi):
        t, i = GROUPS[gi]
        r0 = 2*t + i
        us = [lambda: (e("s_mul_i32 s%d, s%d, %d" % (S_ROW, S_S, rowaddr(r0+1) - rowaddr(r0))),
                       e("s_add_u32 s%d, s%d, %d" % (S_ROW, S_ROW, rowaddr(r0))))]
        for j in range(3):
            us.append(lambda j=j: e("v_add_u32 v%d, s%d, v%d" % (V_BA + 3*(gi % 2) + j, S_ROW, V_BL + j)))
        return us
    ldid = {}
    def load(n):
        gi, t, i, m, kq = items[n]
        j, kk = kq // 3, kq % 3
        e("ds_read_b128 %s, v%d offset:%d" % (vr(V_B + 4*(n % NB), 4), V_BA + 3*(gi % 2) + j, m*3072 + kk*64))
        ldid[n] = lg.issue()
    def barrier(vmids=(), lgids=()):
        def fn():
            flush()
            for x in lgids: lg.wait(x())
            for x in vmids: vm.wait(x())
            e("s_barrier")
            stamp()
        return fn
    for gi in range(1, len(GROUPS)):
        atq(first[gi] - D - 6, baddr_units(gi))
        at(first[gi] - D, flush)
    for kq in range(DW, 9):
        us = []
        for tp in range(3): us += tr_units(kq*3 + tp)
        atq(kq - DW, us)
    nb = 9
    at(nb, barrier(lgids=[lambda: wid[26]]))
    pos = nb
    for k in range(14): atq(pos, w_units(k, 'w1')); pos += 1
    at(L(1,0), barrier(vmids=[lambda: ids[('x',1)]]))
    pos = F(1,0)
    for t in range(5): atq(pos, x_units(3, t)); pos += 3
    at(L(2,0), barrier(vmids=[lambda: ids['w1'], lambda: ids[('x',2)]]))
    for f in range(27): atq(L(2,0) + 1 + f - (f // 9), tr_units(27 + f))
    at(L(0,1) + 1, barrier(lgids=[lambda: wid[53]]))
    pos = L(0,1) + 1
    for k in range(14): atq(pos, w_units(k, 'w2')); pos += 1
    pos += 2
    for t in range(5): atq(pos, x_units(4, t)); pos += 3
    at(L(2,1), barrier(vmids=[lambda: ids['w2'], lambda: ids[('x',3)]]))
    for f in range(27): atq(L(2,1) + 1 + f - (f // 9), tr_units(54 + f))
    at(L(0,2) + 1, barrier(lgids=[lambda: wid[80]]))
    pos = L(0,2) + 2
    for t in range(5): atq(pos, x_units(5, t)); pos += 2
    at(F(1,2) + 9, barrier(lgids=[lambda: swid[0]]))
    atq(F(1,2) + 9, readback_units(0))
    pos = F(1,2) + 18
    for t in range(5): atq(pos, x_units(6, t)); pos += 2
    at(F(2,2) + 9, barrier(lgids=[lambda: swid[1]]))
    atq(F(2,2) + 9, readback_units(1))
    for t in (3, 4, 5):
        at(L(t,1), barrier(vmids=[lambda t=t: ids[('x', t+1)]], lgids=[lambda t=t: swid[t-1]]))
        atq(L(t,1), readback_units(t-1))
    for t in range(5): direct(x_units(2, t))
    vm.wait(ids['w0'])
    e("s_barrier")
    stamp()
    for u in baddr_units(0): u()
    for kq in range(DW):
        for tp in range(3):
            for u in tr_units(kq*3 + tp): u()
    for n in range(D): load(n)
    for n in range(N):
        gi, t, i, m, kq = items[n]
        for fn in ev.get(n, []): fn()
        if n + D < N: load(n + D)
        acc = V_ACC + 36*(t % 3) + 12*m
        ks = 9*i + kq
        while any((ks*3+tp) not in wid for tp in range(3)): fq.popleft()()
        lg.wait(max(ldid[n], wid[ks*3], wid[ks*3+1], wid[ks*3+2]))
        b = vr(V_B + 4*(n % NB), 4)
        for tp in range(3):
            a = vr(acc + 4*tp, 4)
            c = "0" if (i == 0 and kq == 0) else a
            e("v_mfma_f32_16x16x32_bf16 %s, %s, %s, %s" % (a, wfrag(ks*3+tp), b, c))
            fill(FPG if tp < 2 else 1)
        if i == 2 and kq == 8:
            if n + 3 < N: atq(n + 3, epi_units(t, m, acc))
            else: last = (t, m, acc)
    flush()
    e("s_nop 7")
    e("s_nop 7")
    for u in epi_units(*last): u()
    barrier(lgids=[lambda: swid[5]])()
    for u in readback_units(5): u()
    stamp()
    e("s_waitcnt vmcnt(0)")
    stamp()
    rstamp()
    if STAMP:
        e("s_mov_b32 s%d, s90" % (64 + nstamp[0])); nstamp[0] += 1
    dump_stamps()

header()
setup_and_issue()
main_loop()
footer()
open(sys.argv[1], "w").write("\n".join(out) + "\n")
print("lines", len(out), "stamps", nstamp[0])
```

```python
import sys, os
from collections import deque

KNAME = "standalone__dilated_atrous__vision_kernel"
X_BYTES = 384*384*96*2
W_BYTES = 9*96*96*2
ROWB = 384*192
SLOT = 10240
WA = 0
XB = 55296
SPARE = 157696
PSLOT = [XB, XB+20480, XB+40960, XB+61440, XB+81920, XB, XB+20480]
SB = [0, 20480]
OPITCH = 208
NB = 6
D = int(os.environ.get("D", "4"))
DW = int(os.environ.get("DW", "3"))
FPG = int(os.environ.get("FPG", "1"))
XNT = os.environ.get("XNT", "nt ")
SNT = os.environ.get("SNT", "sc1")

STAMP = len(sys.argv) > 2 and sys.argv[2] == "stamp"
out = []
def e(s): out.append("    " + s)

V_XOFF = 16
V_WOFF = 21
V_WTR = 24
V_BL = 27
V_BA = 30
V_PK = 36
V_B = 48
V_ACC = 72
V_SW = 180
V_SR = 181
V_OA = 186
V_W = 188
V_RB = 1

def wfrag(f):
    if f < 64: return "a[%d:%d]" % (4*f, 4*f+3)
    b = V_W + 4*(f-64)
    return "v[%d:%d]" % (b, b+3)
def wfrag_half(f, hf):
    if f < 64: return "a[%d:%d]" % (4*f+2*hf, 4*f+2*hf+1)
    b = V_W + 4*(f-64) + 2*hf
    return "v[%d:%d]" % (b, b+1)
def vr(b, n): return "v[%d:%d]" % (b, b+n-1)

S_X = 8; S_Wd = 12; S_O = 16
S_WAVE = 20; S_HH = 21; S_S = 22; S_CS = 23; S_PAR = 24; S_G = 25
S_T0 = 26; S_T1 = 27; S_T2 = 28; S_T3 = 29
S_XM0 = 32; S_WM0 = 33; S_COL0 = 34; S_W2L = 35; S_ROW = 38

nstamp = [0]
def stamp():
    if not STAMP: return
    k = nstamp[0]; nstamp[0] += 1
    e("s_memtime s[44:45]")
    e("s_waitcnt lgkmcnt(0)")
    lg.clear()
    e("s_mov_b32 s%d, s44" % (64 + k))
def rstamp():
    if not STAMP: return
    k = nstamp[0]; nstamp[0] += 1
    e("s_memrealtime s[44:45]")
    e("s_waitcnt lgkmcnt(0)")
    lg.clear()
    e("s_mov_b32 s%d, s44" % (64 + k))
def dump_stamps():
    if not STAMP: return
    e("s_load_dwordx2 s[46:47], s[0:1], 24")
    e("s_waitcnt lgkmcnt(0)")
    e("s_mov_b32 s48, s46")
    e("s_and_b32 s49, s47, 0xffff")
    e("s_mov_b32 s50, 256")
    e("s_mov_b32 s51, 0x20000")
    e("s_mov_b32 s52, 1024")
    e("s_lshl_b32 s53, s2, 2")
    e("s_add_u32 s53, s53, s%d" % S_WAVE)
    e("s_cmp_eq_u32 s53, 0")
    e("s_cselect_b32 s52, 0, s52")
    e("s_cmp_eq_u32 s53, %d" % (133*4+3))
    e("s_cselect_b32 s52, 128, s52")
    e("v_mov_b32 v1, s52")
    n = nstamp[0]
    e("s_sub_u32 s92, s%d, s%d" % (64+n-2, 64+n-1))
    e("v_mov_b32 v2, s92")
    e("buffer_store_dword v2, v1, s[48:51], 0 offen offset:0")
    for k in range(1, n-2):
        e("s_sub_u32 s92, s%d, s64" % (64+k))
        e("v_mov_b32 v2, s92")
        e("buffer_store_dword v2, v1, s[48:51], 0 offen offset:%d" % (4*k))
    e("s_waitcnt vmcnt(0)")

class Tracker:
    def __init__(self, name, maxv):
        self.name = name; self.maxv = maxv; self.done = 0; self.n = 0
    def issue(self):
        self.n += 1
        return self.n
    def wait(self, opid):
        if opid is None or opid <= self.done: return
        cnt = min(self.n - opid, self.maxv)
        e("s_waitcnt %s(%d)" % (self.name, cnt))
        self.done = self.n - cnt
    def clear(self):
        self.done = self.n
lg = Tracker("lgkmcnt", 15)
vm = Tracker("vmcnt", 63)

def header():
    out.append("""; Kernarg layout for this problem (40 bytes, ptrs only, base s[0:1]):
;   offset   0: d_in[0] x  shape=(1, 384, 384, 96) dtype=bfloat16
;   offset   8: d_in[1] w  shape=(3, 3, 96, 96) dtype=bfloat16
;   offset  16: d_out     shape=(1, 384, 384, 96) dtype=bfloat16 (2 bytes/elem)
;   offset  24: d_debug   256 bytes
;   offset  32: d_ws      268435456 bytes workspace
; @launch grid=(256,1,1) block=(256,1,1) lds=163840
.amdgcn_target "amdgcn-amd-amdhsa--gfx950"
.text
.globl %s
.p2align 8
.type %s,@function
%s:""" % (KNAME, KNAME, KNAME))

def footer():
    out.append("""L_end:
    s_endpgm
.section .rodata,"a"
.p2align 6
.amdhsa_kernel %s
  .amdhsa_next_free_vgpr 512
  .amdhsa_next_free_sgpr 100
  .amdhsa_accum_offset 256
  .amdhsa_group_segment_fixed_size 0
  .amdhsa_kernarg_size 40
  .amdhsa_user_sgpr_count 2
  .amdhsa_user_sgpr_kernarg_segment_ptr 1
  .amdhsa_system_sgpr_workgroup_id_x 1
.end_amdhsa_kernel""" % KNAME)

ids = {}
fq = deque()
def fill(k=FPG):
    for _ in range(k):
        if fq: fq.popleft()()
def flush():
    while fq: fq.popleft()()

def w_units(k, key):
    r = V_WOFF + (k % 3)
    def u0():
        if k == 13: e("s_mov_b32 m0, s%d" % S_W2L)
        else: e("s_add_u32 m0, s%d, %d" % (S_WM0, WA + k*4096))
    def u1():
        if " m0," in out[-1]: e("s_nop 0")
        e("buffer_load_dwordx4 v%d, s[%d:%d], 0 offen lds" % (r, S_Wd, S_Wd+3))
        ids[key] = vm.issue()
    def u2():
        c = k % 3
        if k + 3 <= 13: adv = 12288
        else: adv = 55296 - (k - c)*4096
        e("v_add_u32 v%d, 0x%x, v%d" % (r, adv, r))
    return [u0, u1, u2]
def x_units(u, t):
    def u0(): e("s_add_u32 m0, s%d, %d" % (S_XM0, PSLOT[u] + t*1024))
    def u1():
        if " m0," in out[-1]: e("s_nop 0")
        e("buffer_load_dwordx4 v%d, s[%d:%d], 0 offen %slds" % (V_XOFF+t, S_X, S_X+3, XNT))
        ids[('x', u)] = vm.issue()
    def u2(): e("v_add_u32 v%d, %d, v%d" % (V_XOFF+t, 4*ROWB, V_XOFF+t))
    return [u0, u1, u2]
def direct(units):
    for u in units: u()

def div12(dst, src):
    e("v_mul_u32_u24 v%d, 43691, v%d" % (dst, src))
    e("v_lshrrev_b32 v%d, 19, v%d" % (dst, dst))

def xoff_calc(t):
    e("s_add_u32 s%d, s%d, %d" % (S_T2, S_T1, t))
    e("s_cmp_ge_u32 s%d, 10" % S_T2)
    e("s_cselect_b32 s42, 10, 0")
    e("s_cselect_b32 s%d, %d, 0" % (S_T3, 2*ROWB))
    e("s_sub_u32 s%d, s%d, s42" % (S_T2, S_T2))
    e("s_add_u32 s%d, s%d, s%d" % (S_T3, S_T3, S_T0))
    e("s_lshl_b32 s%d, s%d, 6" % (S_T2, S_T2))
    e("v_add_u32 v3, s%d, v2" % S_T2)
    div12(4, 3)
    e("v_mul_u32_u24 v5, 12, v4")
    e("v_sub_u32 v5, v3, v5")
    e("v_lshrrev_b32 v6, 1, v4")
    e("v_and_b32 v6, 2, v6")
    e("v_xor_b32 v5, v5, v6")
    e("v_add_u32 v6, s%d, v4" % S_COL0)
    e("v_subrev_u32 v6, 2, v6")
    e("v_mul_u32_u24 v7, 192, v6")
    e("v_lshl_add_u32 v7, v5, 4, v7")
    e("v_add_u32 v7, s%d, v7" % S_T3)
    e("v_mov_b32 v8, 0x80000000")
    e("v_add_u32 v8, s%d, v8" % S_T3)
    e("v_cmp_gt_u32 vcc, 384, v6")
    e("v_cmp_gt_u32 s[40:41], 52, v4")
    e("s_and_b64 vcc, vcc, s[40:41]")
    e("s_nop 1")
    e("v_cndmask_b32 v%d, v8, v7, vcc" % (V_XOFF+t))

def woff_calc(c):
    e("s_lshl_b32 s%d, s%d, 6" % (S_T2, S_WAVE))
    e("s_add_u32 s%d, s%d, %d" % (S_T2, S_T2, c*256))
    e("v_add_u32 v3, s%d, v2" % S_T2)
    div12(4, 3)
    e("v_mul_u32_u24 v5, 12, v4")
    e("v_sub_u32 v5, v3, v5")
    e("v_lshrrev_b32 v6, 2, v4")
    e("v_and_b32 v6, 2, v6")
    e("v_sub_u32 v5, v5, v6")
    e("v_add_u32 v6, 12, v5")
    e("v_cmp_gt_i32 vcc, 0, v5")
    e("v_mul_u32_u24 v7, 192, v4")
    e("s_nop 0")
    e("v_cndmask_b32 v5, v5, v6, vcc")
    e("v_lshl_add_u32 v%d, v5, 4, v7" % (V_WOFF + c))

def setup_and_issue():
    e("s_cmp_ge_u32 s2, 256")
    e("s_cbranch_scc1 L_end")
    stamp()
    if STAMP:
        e("s_memrealtime s[44:45]")
        e("s_waitcnt lgkmcnt(0)")
        e("s_mov_b32 s90, s44")
    e("s_load_dwordx4 s[4:7], s[0:1], 0")
    e("s_load_dwordx2 s[36:37], s[0:1], 16")
    e("v_lshrrev_b32 v1, 6, v0")
    e("v_and_b32 v2, 63, v0")
    e("s_and_b32 s%d, s2, 7" % S_CS)
    e("v_readfirstlane_b32 s%d, v1" % S_WAVE)
    e("s_lshr_b32 s%d, s2, 3" % S_T0)
    e("s_and_b32 s%d, s%d, 1" % (S_PAR, S_T0))
    e("s_lshr_b32 s%d, s%d, 1" % (S_G, S_T0))
    e("s_mul_i32 s%d, s%d, 48" % (S_COL0, S_CS))
    e("s_and_b32 s%d, s%d, 1" % (S_HH, S_WAVE))
    e("s_lshr_b32 s%d, s%d, 1" % (S_S, S_WAVE))
    e("s_mul_i32 s%d, s%d, 5120" % (S_XM0, S_WAVE))
    e("s_lshl_b32 s%d, s%d, 10" % (S_WM0, S_WAVE))
    e("s_add_u32 s%d, s%d, %d" % (S_W2L, S_WM0, WA + 13*4096))
    e("s_cmp_ge_u32 s%d, 2" % S_WAVE)
    e("s_cselect_b32 s%d, %d, s%d" % (S_W2L, SPARE, S_W2L))
    e("s_mul_i32 s%d, s%d, 24" % (S_T0, S_G))
    e("s_add_u32 s%d, s%d, s%d" % (S_T0, S_T0, S_PAR))
    e("s_sub_u32 s%d, s%d, 2" % (S_T0, S_T0))
    e("s_mul_i32 s%d, s%d, %d" % (S_T0, S_T0, ROWB))
    e("s_mul_i32 s%d, s%d, 5" % (S_T1, S_WAVE))
    for t in range(5): xoff_calc(t)
    for c in range(3): woff_calc(c)
    e("s_waitcnt lgkmcnt(0)")
    e("s_mov_b32 s%d, s4" % S_X)
    e("s_and_b32 s%d, s5, 0xffff" % (S_X+1))
    e("s_mov_b32 s%d, %d" % (S_X+2, X_BYTES))
    e("s_mov_b32 s%d, 0x20000" % (S_X+3))
    e("s_mov_b32 s%d, s6" % S_Wd)
    e("s_and_b32 s%d, s7, 0xffff" % (S_Wd+1))
    e("s_mov_b32 s%d, %d" % (S_Wd+2, W_BYTES))
    e("s_mov_b32 s%d, 0x20000" % (S_Wd+3))
    for t in range(5): direct(x_units(0, t))
    for k in range(14): direct(w_units(k, 'w0'))
    for t in range(5): direct(x_units(1, t))
    e("s_mov_b32 s%d, s36" % S_O)
    e("s_and_b32 s%d, s37, 0xffff" % (S_O+1))
    e("s_mov_b32 s%d, %d" % (S_O+2, X_BYTES))
    e("s_mov_b32 s%d, 0x20000" % (S_O+3))
    e("v_lshrrev_b32 v3, 4, v2")
    e("v_lshrrev_b32 v4, 2, v2")
    e("v_and_b32 v4, 3, v4")
    e("v_lshl_add_u32 v4, v3, 3, v4")
    e("v_mul_u32_u24 v4, 192, v4")
    e("v_and_b32 v5, 3, v2")
    e("v_mul_u32_u24 v5, 24, v5")
    e("s_mul_i32 s%d, s%d, 96" % (S_T2, S_HH))
    e("v_add_u32 v5, s%d, v5" % S_T2)
    e("v_and_b32 v6, 1, v3")
    e("v_lshlrev_b32 v6, 5, v6")
    e("v_add_u32 v5, v5, v6")
    for tp in range(3):
        e("v_add_u32 v6, %d, v5" % (8*tp))
        e("v_subrev_u32 v7, 192, v6")
        e("v_cmp_le_u32 vcc, 192, v6")
        e("s_nop 1")
        e("v_cndmask_b32 v6, v6, v7, vcc")
        e("v_add_u32 v%d, v4, v6" % (V_WTR + tp))
    e("v_and_b32 v4, 15, v2")
    for j in range(3):
        e("v_add_u32 v5, %d, v4" % (2*j))
        e("v_lshrrev_b32 v6, 1, v5")
        e("v_and_b32 v6, 2, v6")
        e("v_xor_b32 v6, v6, v3")
        e("v_mul_u32_u24 v5, 192, v5")
        e("v_lshl_add_u32 v%d, v6, 4, v5" % (V_BL+j))
    e("s_mul_i32 s%d, s%d, 9984" % (S_T3, S_S))
    e("s_add_u32 s%d, s%d, s%d" % (S_T2, S_T2, S_T3))
    e("v_mul_u32_u24 v5, %d, v4" % OPITCH)
    e("v_mul_u32_u24 v6, 24, v3")
    e("v_add3_u32 v%d, v5, v6, s%d" % (V_SW, S_T2))
    e("s_mul_i32 s%d, s%d, 320" % (S_T2, S_HH))
    for i in range(5):
        e("s_add_u32 s%d, s%d, %d" % (S_T1, S_T2, 64*i))
        e("v_add_u32 v5, s%d, v2" % S_T1)
        div12(6, 5)
        e("v_mul_u32_u24 v7, 12, v6")
        e("v_sub_u32 v7, v5, v7")
        e("v_mul_u32_u24 v6, %d, v6" % OPITCH)
        e("v_lshl_add_u32 v6, v7, 4, v6")
        e("v_add_u32 v%d, s%d, v6" % (V_SR + i, S_T3))
    e("s_mul_i32 s%d, s%d, 12" % (S_T2, S_G))
    e("s_add_u32 s%d, s%d, s%d" % (S_T2, S_T2, S_S))
    e("s_lshl_b32 s%d, s%d, 1" % (S_T2, S_T2))
    e("s_add_u32 s%d, s%d, s%d" % (S_T2, S_T2, S_PAR))
    e("s_mul_i32 s%d, s%d, 384" % (S_T2, S_T2))
    e("s_add_u32 s%d, s%d, s%d" % (S_T2, S_T2, S_COL0))
    e("s_mul_i32 s%d, s%d, 192" % (S_T2, S_T2))
    e("s_mul_i32 s%d, s%d, 5120" % (S_T3, S_HH))
    e("s_add_u32 s%d, s%d, s%d" % (S_T2, S_T2, S_T3))
    e("v_lshlrev_b32 v5, 4, v2")
    e("v_add_u32 v%d, s%d, v5" % (V_OA, S_T2))
    e("s_mul_i32 s%d, s%d, 0x40000000" % (S_T3, S_HH))
    e("s_add_u32 s%d, s%d, 4096" % (S_T3, S_T3))
    e("v_add_u32 v%d, s%d, v%d" % (V_OA+1, S_T3, V_OA))

def rowaddr(r): return PSLOT[r//2] + (r % 2)*SLOT

GROUPS = [(0,0),(1,0),(2,0),(0,1),(1,1),(2,1),(0,2),(1,2),(2,2)] + [(t,i) for t in range(3,6) for i in range(3)]

wid = {}
def tr_units(f):
    ks_l = (f // 3) % 9
    tp = f % 3
    us = []
    for hf in range(2):
        def u(hf=hf):
            off = WA + ks_l*6144 + hf*768
            e("ds_read_b64_tr_b16 %s, v%d offset:%d" % (wfrag_half(f, hf), V_WTR + tp, off))
            i = lg.issue()
            if hf == 1: wid[f] = i
        us.append(u)
    return us

epi_n = [0]
swid = {}
def epi_units(t, m, acc):
    pk = V_PK + 6*(epi_n[0] % 2); epi_n[0] += 1
    us = []
    for d in range(3):
        us.append(lambda d=d: e("v_cvt_pk_bf16_f32 v%d, v%d, v%d" % (pk+2*d, acc+4*d, acc+4*d+1)))
        us.append(lambda d=d: e("v_cvt_pk_bf16_f32 v%d, v%d, v%d" % (pk+2*d+1, acc+4*d+2, acc+4*d+3)))
        def w(d=d):
            e("ds_write_b64 v%d, %s offset:%d" % (V_SW, vr(pk+2*d, 2), SB[t % 2] + m*16*OPITCH + 8*d))
            swid[t] = lg.issue()
        us.append(w)
    return us

def readback_units(t):
    us = []
    rid = {}
    for i in range(5):
        def r(i=i):
            e("ds_read_b128 %s, v%d offset:%d" % (vr(4 + 4*(i % 3), 4), V_SR + i, SB[t % 2]))
            rid[i] = lg.issue()
        def s(i=i):
            lg.wait(rid[i])
            if i < 4: e("buffer_store_dwordx4 %s, v%d, s[%d:%d], 0 offen offset:%d %s" % (vr(4 + 4*(i % 3), 4), V_OA, S_O, S_O+3, 1024*i, SNT))
            else: e("buffer_store_dwordx4 %s, v%d, s[%d:%d], 0 offen %s" % (vr(4 + 4*(i % 3), 4), V_OA+1, S_O, S_O+3, SNT))
            vm.issue()
        us.append((r, s))
    nop = lambda: None
    seq = [us[0][0], us[1][0], us[2][0], nop, nop, nop, nop, nop, nop, us[0][1], nop, us[3][0], us[1][1], nop, us[4][0], us[2][1], nop, nop, nop, nop, nop, us[3][1], us[4][1]]
    seq.append(lambda: e("v_add_u32 v%d, %d, v%d" % (V_OA, 4*ROWB, V_OA)))
    seq.append(lambda: e("v_add_u32 v%d, %d, v%d" % (V_OA+1, 4*ROWB, V_OA+1)))
    return seq

def main_loop():
    items = []
    first = {}
    for gi, (t, i) in enumerate(GROUPS):
        first[gi] = len(items)
        for m in range(3):
            for kq in range(9):
                items.append((gi, t, i, m, kq))
    N = len(items)
    ev = {}
    def at(n, fn): ev.setdefault(max(n, -1), []).append(fn)
    def atq(n, units): at(n, lambda: fq.extend(units))
    G = {g: k for k, g in enumerate(GROUPS)}
    F = lambda t, i: first[G[(t, i)]]
    L = lambda t, i: first[G[(t, i)]] - D
    def baddr_units(gi):
        t, i = GROUPS[gi]
        r0 = 2*t + i
        us = [lambda: (e("s_mul_i32 s%d, s%d, %d" % (S_ROW, S_S, rowaddr(r0+1) - rowaddr(r0))),
                       e("s_add_u32 s%d, s%d, %d" % (S_ROW, S_ROW, rowaddr(r0))))]
        for j in range(3):
            us.append(lambda j=j: e("v_add_u32 v%d, s%d, v%d" % (V_BA + 3*(gi % 2) + j, S_ROW, V_BL + j)))
        return us
    ldid = {}
    def load(n):
        gi, t, i, m, kq = items[n]
        j, kk = kq // 3, kq % 3
        e("ds_read_b128 %s, v%d offset:%d" % (vr(V_B + 4*(n % NB), 4), V_BA + 3*(gi % 2) + j, m*3072 + kk*64))
        ldid[n] = lg.issue()
    def barrier(vmids=(), lgids=()):
        def fn():
            flush()
            for x in lgids: lg.wait(x())
            for x in vmids: vm.wait(x())
            e("s_barrier")
            stamp()
        return fn
    for gi in range(1, len(GROUPS)):
        atq(first[gi] - D - 6, baddr_units(gi))
        at(first[gi] - D, flush)
    for kq in range(DW, 9):
        us = []
        for tp in range(3): us += tr_units(kq*3 + tp)
        atq(kq - DW, us)
    nb = 9
    at(nb, barrier(lgids=[lambda: wid[26]]))
    pos = nb
    for k in range(14): atq(pos, w_units(k, 'w1')); pos += 1
    at(L(1,0), barrier(vmids=[lambda: ids[('x',1)]]))
    pos = F(1,0)
    for t in range(5): atq(pos, x_units(3, t)); pos += 3
    at(L(2,0), barrier(vmids=[lambda: ids['w1'], lambda: ids[('x',2)]]))
    for f in range(27): atq(L(2,0) + 1 + f - (f // 9), tr_units(27 + f))
    at(L(0,1) + 1, barrier(lgids=[lambda: wid[53]]))
    pos = L(0,1) + 1
    for k in range(14): atq(pos, w_units(k, 'w2')); pos += 1
    pos += 2
    for t in range(5): atq(pos, x_units(4, t)); pos += 3
    at(L(2,1), barrier(vmids=[lambda: ids['w2'], lambda: ids[('x',3)]]))
    for f in range(27): atq(L(2,1) + 1 + f - (f // 9), tr_units(54 + f))
    at(L(0,2) + 1, barrier(lgids=[lambda: wid[80]]))
    pos = L(0,2) + 2
    for t in range(5): atq(pos, x_units(5, t)); pos += 2
    at(F(1,2) + 9, barrier(lgids=[lambda: swid[0]]))
    atq(F(1,2) + 9, readback_units(0))
    pos = F(1,2) + 18
    for t in range(5): atq(pos, x_units(6, t)); pos += 2
    at(F(2,2) + 9, barrier(lgids=[lambda: swid[1]]))
    atq(F(2,2) + 9, readback_units(1))
    for t in (3, 4, 5):
        at(L(t,1), barrier(vmids=[lambda t=t: ids[('x', t+1)]], lgids=[lambda t=t: swid[t-1]]))
        atq(L(t,1), readback_units(t-1))
    for t in range(5): direct(x_units(2, t))
    vm.wait(ids['w0'])
    e("s_barrier")
    stamp()
    for u in baddr_units(0): u()
    for kq in range(DW):
        for tp in range(3):
            for u in tr_units(kq*3 + tp): u()
    for n in range(D): load(n)
    for n in range(N):
        gi, t, i, m, kq = items[n]
        for fn in ev.get(n, []): fn()
        if n + D < N: load(n + D)
        acc = V_ACC + 36*(t % 3) + 12*m
        ks = 9*i + kq
        while any((ks*3+tp) not in wid for tp in range(3)): fq.popleft()()
        lg.wait(max(ldid[n], wid[ks*3], wid[ks*3+1], wid[ks*3+2]))
        b = vr(V_B + 4*(n % NB), 4)
        for tp in range(3):
            a = vr(acc + 4*tp, 4)
            c = "0" if (i == 0 and kq == 0) else a
            e("v_mfma_f32_16x16x32_bf16 %s, %s, %s, %s" % (a, wfrag(ks*3+tp), b, c))
            fill(FPG if tp < 2 else 1)
        if i == 2 and kq == 8:
            if n + 3 < N: atq(n + 3, epi_units(t, m, acc))
            else: last = (t, m, acc)
    flush()
    e("s_nop 7")
    e("s_nop 7")
    for u in epi_units(*last): u()
    barrier(lgids=[lambda: swid[5]])()
    for u in readback_units(5): u()
    stamp()
    e("s_waitcnt vmcnt(0)")
    stamp()
    rstamp()
    if STAMP:
        e("s_mov_b32 s%d, s90" % (64 + nstamp[0])); nstamp[0] += 1
    dump_stamps()

header()
setup_and_issue()
main_loop()
footer()
open(sys.argv[1], "w").write("\n".join(out) + "\n")
print("lines", len(out), "stamps", nstamp[0])
```

```python
import sys, os
from collections import deque

KNAME = "standalone__dilated_atrous__vision_kernel"
X_BYTES = 384*384*96*2
W_BYTES = 9*96*96*2
ROWB = 384*192
SLOT = 10240
WA = 0
XB = 55296
SPARE = 157696
PSLOT = [XB, XB+20480, XB+40960, XB+61440, XB+81920, XB, XB+20480]
SBT = [XB, 0, 20480, 0, 20480, 0]
OPITCH = 208
NB = 6
def P(n, d): return int(os.environ.get(n, str(d)))
D = P("D", 4)
PRO = P("PRO", 24)
QUO = P("QUO", 8)
SPX = P("SPX", 2)
SPW = P("SPW", 2)
WLEAD = P("WLEAD", 6)
QPOS = P("QPOS", 10)
SSP = P("SSP", 3)
LASTP = P("LASTP", 0)
XNT = os.environ.get("XNT", "nt ")
SNT = os.environ.get("SNT", "sc1")

ONEW = P("ONEW", 0); NOBAR = P("NOBAR", 0); NOST = P("NOST", 0); NOEPI = P("NOEPI", 0); NORB = P("NORB", 0); NOCVT = P("NOCVT", 0); NOWR = P("NOWR", 0)
STAMP = len(sys.argv) > 2 and sys.argv[2] == "stamp"
out = []
def e(s): out.append("    " + s)

V_XOFF = 16
V_WOFF = 21
V_WTR = 24
V_LO = 27
V_HI = 30
V_IRR = 33
V_PK = 36
V_B = 48
V_ACC = 72
V_SW = 180
V_SR = 181
V_OA = 186
V_W = 188

def wfrag(f):
    if f < 64: return "a[%d:%d]" % (4*f, 4*f+3)
    b = V_W + 4*(f-64)
    return "v[%d:%d]" % (b, b+3)
def wfrag_half(f, hf):
    if f < 64: return "a[%d:%d]" % (4*f+2*hf, 4*f+2*hf+1)
    b = V_W + 4*(f-64) + 2*hf
    return "v[%d:%d]" % (b, b+1)
def vr(b, n): return "v[%d:%d]" % (b, b+n-1)

S_X = 8; S_Wd = 12; S_O = 16
S_WAVE = 20; S_HH = 21; S_S = 22; S_CS = 23; S_PAR = 24; S_G = 25
S_T0 = 26; S_T1 = 27; S_T2 = 28; S_T3 = 29
S_XM0 = 32; S_WM0 = 33; S_COL0 = 34; S_W2L = 35; S_LO = 38; S_N = 39; S_XBASE = 42; S_IRR = 43

nstamp = [0]
def stamp():
    if not STAMP: return
    k = nstamp[0]; nstamp[0] += 1
    e("s_memtime s[44:45]")
    e("s_waitcnt lgkmcnt(0)")
    lg.clear()
    e("s_mov_b32 s%d, s44" % (64 + k))
def rstamp():
    if not STAMP: return
    k = nstamp[0]; nstamp[0] += 1
    e("s_memrealtime s[44:45]")
    e("s_waitcnt lgkmcnt(0)")
    lg.clear()
    e("s_mov_b32 s%d, s44" % (64 + k))
def dump_stamps():
    if not STAMP: return
    e("s_load_dwordx2 s[46:47], s[0:1], 24")
    e("s_waitcnt lgkmcnt(0)")
    e("s_mov_b32 s48, s46")
    e("s_and_b32 s49, s47, 0xffff")
    e("s_mov_b32 s50, 256")
    e("s_mov_b32 s51, 0x20000")
    e("s_mov_b32 s52, 1024")
    e("s_lshl_b32 s53, s2, 2")
    e("s_add_u32 s53, s53, s%d" % S_WAVE)
    e("s_cmp_eq_u32 s53, 0")
    e("s_cselect_b32 s52, 0, s52")
    e("s_cmp_eq_u32 s53, %d" % (133*4+3))
    e("s_cselect_b32 s52, 128, s52")
    e("v_mov_b32 v1, s52")
    n = nstamp[0]
    e("s_sub_u32 s92, s%d, s%d" % (64+n-2, 64+n-1))
    e("v_mov_b32 v2, s92")
    e("buffer_store_dword v2, v1, s[48:51], 0 offen offset:0")
    for k in range(1, n-2):
        e("s_sub_u32 s92, s%d, s64" % (64+k))
        e("v_mov_b32 v2, s92")
        e("buffer_store_dword v2, v1, s[48:51], 0 offen offset:%d" % (4*k))
    e("s_waitcnt vmcnt(0)")

class Tracker:
    def __init__(self, name, maxv):
        self.name = name; self.maxv = maxv; self.done = 0; self.n = 0
    def issue(self):
        self.n += 1
        return self.n
    def wait(self, opid):
        if opid is None or opid <= self.done: return
        cnt = min(self.n - opid, self.maxv)
        e("s_waitcnt %s(%d)" % (self.name, cnt))
        self.done = self.n - cnt
    def clear(self):
        self.done = self.n
lg = Tracker("lgkmcnt", 15)
vm = Tracker("vmcnt", 63)

def header():
    out.append("""; Kernarg layout for this problem (40 bytes, ptrs only, base s[0:1]):
;   offset   0: d_in[0] x  shape=(1, 384, 384, 96) dtype=bfloat16
;   offset   8: d_in[1] w  shape=(3, 3, 96, 96) dtype=bfloat16
;   offset  16: d_out     shape=(1, 384, 384, 96) dtype=bfloat16 (2 bytes/elem)
;   offset  24: d_debug   256 bytes
;   offset  32: d_ws      268435456 bytes workspace
; @launch grid=(256,1,1) block=(256,1,1) lds=163840
.amdgcn_target "amdgcn-amd-amdhsa--gfx950"
.text
.globl %s
.p2align 8
.type %s,@function
%s:""" % (KNAME, KNAME, KNAME))

def footer():
    out.append("""L_end:
    s_endpgm
.section .rodata,"a"
.p2align 6
.amdhsa_kernel %s
  .amdhsa_next_free_vgpr 512
  .amdhsa_next_free_sgpr 100
  .amdhsa_accum_offset 256
  .amdhsa_group_segment_fixed_size 0
  .amdhsa_kernarg_size 40
  .amdhsa_user_sgpr_count 2
  .amdhsa_user_sgpr_kernarg_segment_ptr 1
  .amdhsa_system_sgpr_workgroup_id_x 1
.end_amdhsa_kernel""" % KNAME)

ids = {}
fq = deque()
def fill(k=1):
    if len(fq) > 7: k += 1
    for _ in range(k):
        if fq: fq.popleft()()
def flush():
    while fq: fq.popleft()()

def w_units(k, key):
    r = V_WOFF + (k % 3)
    def u0():
        if k == 13: e("s_mov_b32 m0, s%d" % S_W2L)
        else: e("s_add_u32 m0, s%d, %d" % (S_WM0, WA + k*4096))
    def u1():
        if " m0," in out[-1]: e("s_nop 0")
        e("buffer_load_dwordx4 v%d, s[%d:%d], 0 offen lds" % (r, S_Wd, S_Wd+3))
        ids[(key, k)] = vm.issue()
    def u2():
        c = k % 3
        if k + 3 <= 13: adv = 12288
        else: adv = 55296 - (k - c)*4096
        e("v_add_u32 v%d, 0x%x, v%d" % (r, adv, r))
    return [u0, u1, u2]
def x_units(u, t):
    def u0(): e("s_add_u32 m0, s%d, %d" % (S_XM0, PSLOT[u] + t*1024))
    def u1():
        if " m0," in out[-1]: e("s_nop 0")
        e("buffer_load_dwordx4 v%d, s[%d:%d], 0 offen %slds" % (V_XOFF+t, S_X, S_X+3, XNT))
        ids[('x', u)] = vm.issue()
    def u2(): e("v_add_u32 v%d, %d, v%d" % (V_XOFF+t, 4*ROWB, V_XOFF+t))
    return [u0, u1, u2]

def xoff_calc(t):
    L = []
    if t > 0: L.append("v_add_u32 v3, 64, v3")
    L += ["v_mul_u32_u24 v4, 43691, v3",
          "v_lshrrev_b32 v4, 19, v4",
          "v_mul_u32_u24 v5, 12, v4",
          "v_sub_u32 v5, v3, v5",
          "v_lshrrev_b32 v6, 1, v4",
          "v_and_b32 v6, 2, v6",
          "v_xor_b32 v5, v5, v6",
          "v_mul_u32_u24 v7, 192, v4",
          "v_subrev_u32 v6, s%d, v4" % S_LO,
          "v_lshl_add_u32 v7, v5, 4, v7",
          "v_cmp_gt_u32 vcc, s%d, v6" % S_N,
          "v_add_u32 v7, s%d, v7" % S_XBASE,
          "v_cndmask_b32 v%d, v8, v7, vcc" % (V_XOFF+t)]
    return L
def woff_calc(c):
    L = []
    if c > 0: L.append("v_add_u32 v9, 0x100, v9")
    L += ["v_mul_u32_u24 v10, 43691, v9",
          "v_lshrrev_b32 v10, 19, v10",
          "v_mul_u32_u24 v11, 12, v10",
          "v_sub_u32 v11, v9, v11",
          "v_lshrrev_b32 v12, 2, v10",
          "v_and_b32 v12, 2, v12",
          "v_sub_u32 v11, v11, v12",
          "v_add_u32 v12, 12, v11",
          "v_cmp_gt_i32 vcc, 0, v11",
          "v_mul_u32_u24 v13, 192, v10",
          "v_cndmask_b32 v11, v11, v12, vcc",
          "v_lshl_add_u32 v%d, v11, 4, v13" % (V_WOFF + c)]
    return L
def must_setup():
    L = []
    L += ["v_lshrrev_b32 v3, 4, v2",
          "v_lshrrev_b32 v4, 2, v2",
          "v_and_b32 v4, 3, v4",
          "v_lshl_add_u32 v4, v3, 3, v4",
          "v_mul_u32_u24 v4, 192, v4",
          "v_and_b32 v5, 3, v2",
          "v_mul_u32_u24 v5, 24, v5",
          "s_mul_i32 s%d, s%d, 96" % (S_T2, S_HH),
          "v_add_u32 v5, s%d, v5" % S_T2,
          "v_and_b32 v6, 1, v3",
          "v_lshlrev_b32 v6, 5, v6",
          "v_add_u32 v5, v5, v6"]
    for tp in range(3):
        L += ["v_add_u32 v6, %d, v5" % (8*tp),
              "v_subrev_u32 v7, 192, v6",
              "v_cmp_le_u32 vcc, 192, v6",
              "v_cndmask_b32 v6, v6, v7, vcc",
              "v_add_u32 v%d, v4, v6" % (V_WTR + tp)]
    L += ["v_and_b32 v4, 15, v2",
          "s_mul_i32 s%d, s%d, %d" % (S_T3, S_S, SLOT),
          "s_add_u32 s%d, s%d, %d" % (S_T3, S_T3, XB)]
    for j in range(3):
        L += ["v_add_u32 v5, %d, v4" % (2*j),
              "v_lshrrev_b32 v6, 1, v5",
              "v_and_b32 v6, 2, v6",
              "v_xor_b32 v6, v6, v3",
              "v_mul_u32_u24 v5, 192, v5",
              "v_lshl_add_u32 v5, v6, 4, v5",
              "v_add_u32 v%d, s%d, v5" % (V_LO+j, S_T3)]
    return L
def later_setup():
    L = []
    L += ["s_mul_i32 s%d, s%d, %d" % (S_IRR, S_S, 10*SLOT),
          "s_sub_u32 s%d, %d, s%d" % (S_IRR, 9*SLOT, S_IRR)]
    for j in range(3):
        L += ["v_add_u32 v%d, %d, v%d" % (V_HI+j, 5*SLOT, V_LO+j),
              "v_add_u32 v%d, s%d, v%d" % (V_IRR+j, S_IRR, V_LO+j)]
    L += ["s_mov_b32 s%d, s36" % S_O,
          "s_and_b32 s%d, s37, 0xffff" % (S_O+1),
          "s_mov_b32 s%d, %d" % (S_O+2, X_BYTES),
          "s_mov_b32 s%d, 0x20000" % (S_O+3),
          "s_mul_i32 s%d, s%d, 9984" % (S_T3, S_S),
          "s_add_u32 s%d, s%d, s%d" % (S_T2, S_T2, S_T3),
          "v_mul_u32_u24 v5, %d, v4" % OPITCH,
          "v_mul_u32_u24 v6, 24, v3",
          "v_add3_u32 v%d, v5, v6, s%d" % (V_SW, S_T2),
          "s_mul_i32 s%d, s%d, 320" % (S_T2, S_HH),
          "v_add_u32 v5, s%d, v2" % S_T2]
    for i in range(5):
        if i: L.append("v_add_u32 v5, 64, v5")
        L += ["v_mul_u32_u24 v6, 43691, v5",
              "v_lshrrev_b32 v6, 19, v6",
              "v_mul_u32_u24 v7, 12, v6",
              "v_sub_u32 v7, v5, v7",
              "v_mul_u32_u24 v6, %d, v6" % OPITCH,
              "v_lshl_add_u32 v6, v7, 4, v6",
              "v_add_u32 v%d, s%d, v6" % (V_SR + i, S_T3)]
    L += ["s_mul_i32 s%d, s%d, 12" % (S_T2, S_G),
          "s_add_u32 s%d, s%d, s%d" % (S_T2, S_T2, S_S),
          "s_lshl_b32 s%d, s%d, 1" % (S_T2, S_T2),
          "s_add_u32 s%d, s%d, s%d" % (S_T2, S_T2, S_PAR),
          "s_mul_i32 s%d, s%d, 384" % (S_T2, S_T2),
          "s_add_u32 s%d, s%d, s%d" % (S_T2, S_T2, S_COL0),
          "s_mul_i32 s%d, s%d, 192" % (S_T2, S_T2),
          "s_mul_i32 s%d, s%d, 5120" % (S_T3, S_HH),
          "s_add_u32 s%d, s%d, s%d" % (S_T2, S_T2, S_T3),
          "v_lshlrev_b32 v5, 4, v2",
          "v_add_u32 v%d, s%d, v5" % (V_OA, S_T2),
          "s_mul_i32 s%d, s%d, 0x40000000" % (S_T3, S_HH),
          "s_add_u32 s%d, s%d, 4096" % (S_T3, S_T3),
          "v_add_u32 v%d, s%d, v%d" % (V_OA+1, S_T3, V_OA)]
    return L

left_dma = []
left_setup = []
def prologue():
    e("s_cmp_ge_u32 s2, 256")
    e("s_cbranch_scc1 L_end")
    stamp()
    if STAMP:
        e("s_memrealtime s[44:45]")
        e("s_waitcnt lgkmcnt(0)")
        e("s_mov_b32 s90, s44")
    for s in ["s_load_dwordx4 s[4:7], s[0:1], 0",
              "s_load_dwordx2 s[36:37], s[0:1], 16",
              "v_lshrrev_b32 v1, 6, v0",
              "v_and_b32 v2, 63, v0",
              "s_and_b32 s%d, s2, 7" % S_CS,
              "v_readfirstlane_b32 s%d, v1" % S_WAVE,
              "s_lshr_b32 s%d, s2, 3" % S_T0,
              "s_and_b32 s%d, s%d, 1" % (S_PAR, S_T0),
              "s_lshr_b32 s%d, s%d, 1" % (S_G, S_T0),
              "s_mul_i32 s%d, s%d, 48" % (S_COL0, S_CS),
              "s_and_b32 s%d, s%d, 1" % (S_HH, S_WAVE),
              "s_lshr_b32 s%d, s%d, 1" % (S_S, S_WAVE),
              "s_mul_i32 s%d, s%d, 320" % (S_T1, S_HH),
              "v_add_u32 v3, s%d, v2" % S_T1,
              "v_mov_b32 v9, v0",
              "v_bfrev_b32 v8, 1",
              "s_mul_i32 s%d, s%d, 24" % (S_T0, S_G),
              "s_add_u32 s%d, s%d, s%d" % (S_T0, S_T0, S_PAR),
              "s_lshl_b32 s%d, s%d, 1" % (S_T1, S_S),
              "s_add_u32 s%d, s%d, s%d" % (S_T0, S_T0, S_T1),
              "s_sub_u32 s%d, s%d, 2" % (S_T0, S_T0),
              "s_mul_i32 s%d, s%d, 384" % (S_T0, S_T0),
              "s_add_u32 s%d, s%d, s%d" % (S_T0, S_T0, S_COL0),
              "s_sub_u32 s%d, s%d, 2" % (S_T0, S_T0),
              "s_mul_i32 s%d, s%d, 192" % (S_XBASE, S_T0),
              "s_cmp_eq_u32 s%d, 0" % S_CS,
              "s_cselect_b32 s%d, 2, 0" % S_LO,
              "s_cmp_eq_u32 s%d, 7" % S_CS,
              "s_cselect_b32 s%d, 50, 52" % S_N,
              "s_sub_u32 s%d, s%d, s%d" % (S_N, S_N, S_LO),
              "s_mul_i32 s%d, s%d, 5120" % (S_XM0, S_WAVE),
              "s_lshl_b32 s%d, s%d, 10" % (S_WM0, S_WAVE)]: e(s)
    for s in woff_calc(0): e(s)
    for s in xoff_calc(0): e(s)
    for s in ["s_mov_b32 s%d, %d" % (S_X+2, X_BYTES),
              "s_mov_b32 s%d, 0x20000" % (S_X+3),
              "s_mov_b32 s%d, %d" % (S_Wd+2, W_BYTES),
              "s_mov_b32 s%d, 0x20000" % (S_Wd+3),
              "s_waitcnt lgkmcnt(0)",
              "s_mov_b32 s%d, s4" % S_X,
              "s_and_b32 s%d, s5, 0xffff" % (S_X+1),
              "s_mov_b32 s%d, s6" % S_Wd,
              "s_and_b32 s%d, s7, 0xffff" % (S_Wd+1)]: e(s)
    stamp()
    S = []
    need = {}
    S += xoff_calc(1); need[('x',0,1)] = len(S)
    S += woff_calc(1); need[('w',1)] = len(S)
    S += xoff_calc(2); need[('x',0,2)] = len(S)
    S += woff_calc(2); need[('w',2)] = len(S)
    S += xoff_calc(3); need[('x',0,3)] = len(S)
    S += xoff_calc(4); need[('x',0,4)] = len(S)
    S += ["s_add_u32 s%d, s%d, %d" % (S_W2L, S_WM0, WA + 13*4096),
          "s_cmp_ge_u32 s%d, 2\n    s_cselect_b32 s%d, %d, s%d" % (S_WAVE, S_W2L, SPARE, S_W2L)]
    need[('w',13)] = len(S)
    S += must_setup(); nmust = len(S)
    S += later_setup()
    seq = [('x',0,0), ('w',0), ('x',0,1), ('w',1), ('x',0,2), ('w',2), ('x',0,3), ('w',3), ('x',0,4), ('w',4)]
    seq += [('w',k) for k in range(5, 14)] + [('x',1,t) for t in range(5)] + [('x',2,t) for t in range(5)]
    pos = 0
    for di, d in enumerate(seq):
        us = x_units(d[1], d[2]) if d[0] == 'x' else w_units(d[1], 'w0')
        if di >= PRO:
            left_dma.append((d, us)); continue
        tgt = max(need.get(d, 0), min(len(S), pos + (QUO if di >= 2 else 0)))
        if d == ('w',13):
            while pos < need[d]: e(S[pos]); pos += 1
        us[0]()
        while pos < tgt: e(S[pos]); pos += 1
        us[1](); us[2]()
    while pos < nmust: e(S[pos]); pos += 1
    for s in S[pos:]: left_setup.append(lambda s=s: e(s))
    stamp()

def rowslot(r): return r % 10

GROUPS = [(0,0),(1,0),(2,0),(0,1),(1,1),(2,1),(0,2),(1,2),(2,2)] + [(t,i) for t in range(3,6) for i in range(3)]

wid = {}
def tr_units(f):
    ks_l = (f // 3) % 9
    tp = f % 3
    us = []
    for hf in range(2):
        def u(hf=hf):
            off = WA + ks_l*6144 + hf*768
            e("ds_read_b64_tr_b16 %s, v%d offset:%d" % (wfrag_half(f, hf), V_WTR + tp, off))
            i = lg.issue()
            if hf == 1: wid[f] = i
        us.append(u)
    return us
def triple(ks):
    us = []
    for tp in range(3): us += tr_units(ks*3 + tp)
    return us

epi_n = [0]
swid = {}
def epi_units(t, m):
    acc = V_ACC + 36*(t % 3) + 12*m
    pk = V_PK + 6*(epi_n[0] % 2); epi_n[0] += 1
    us = []
    if NOEPI and t >= 2 and t < 5:
        swid[t] = None
        return us
    for d in range(3):
        if not (NOCVT and t >= 2 and t < 5):
          us.append(lambda d=d: e("v_cvt_pk_bf16_f32 v%d, v%d, v%d" % (pk+2*d, acc+4*d, acc+4*d+1)))
          us.append(lambda d=d: e("v_cvt_pk_bf16_f32 v%d, v%d, v%d" % (pk+2*d+1, acc+4*d+2, acc+4*d+3)))
        def w(d=d):
            e("ds_write_b64 v%d, %s offset:%d" % (V_SW, vr(pk+2*d, 2), SBT[t] + m*16*OPITCH + 8*d))
            swid[t] = lg.issue()
        if NOWR and t >= 2 and t < 5: swid[t] = None
        else: us.append(w)
    return us

def readback_units(t):
    us = []
    rid = {}
    if NORB and t >= 2 and t < 5: return []
    for i in range(5):
        def r(i=i):
            e("ds_read_b128 %s, v%d offset:%d" % (vr(4 + 4*(i % 3), 4), V_SR + i, SBT[t]))
            rid[i] = lg.issue()
        def s(i=i):
            lg.wait(rid[i])
            if NOST and t >= 2 and t < 5: return
            if ONEW and t >= 2 and t < 5: e("s_mov_b64 exec, s[60:61]")
            if i < 4: e("buffer_store_dwordx4 %s, v%d, s[%d:%d], 0 offen offset:%d %s" % (vr(4 + 4*(i % 3), 4), V_OA, S_O, S_O+3, 1024*i, "" if (LASTP and t == 5) else SNT))
            else: e("buffer_store_dwordx4 %s, v%d, s[%d:%d], 0 offen %s" % (vr(4 + 4*(i % 3), 4), V_OA+1, S_O, S_O+3, "" if (LASTP and t == 5) else SNT))
            vm.issue()
            if ONEW and t >= 2 and t < 5: e("s_mov_b64 exec, -1")
        us.append((r, s))
    adv = [lambda: e("v_add_u32 v%d, %d, v%d" % (V_OA, 4*ROWB, V_OA)), lambda: e("v_add_u32 v%d, %d, v%d" % (V_OA+1, 4*ROWB, V_OA+1))]
    return [(0, [us[0][0], us[1][0], us[2][0]]), (SSP, [us[0][1], us[3][0]]), (2*SSP, [us[1][1], us[4][0]]), (3*SSP, [us[2][1]]), (4*SSP, [us[3][1]]), (5*SSP, [us[4][1]] + adv)]

def main_loop():
    items = []
    first = {}
    for gi, (t, i) in enumerate(GROUPS):
        first[gi] = len(items)
        if gi == len(GROUPS) - 1:
            for m in range(3):
                for kq in range(9): items.append((gi, t, i, m, kq))
        else:
            for kq in range(9):
                for m in range(3): items.append((gi, t, i, m, kq))
    N = len(items)
    ev = {}
    def at(n, fn): ev.setdefault(max(n, 0), []).append(fn)
    def atq(n, units): at(n, lambda: fq.extend(units))
    G = {g: k for k, g in enumerate(GROUPS)}
    F = lambda t, i: first[G[(t, i)]]
    L = lambda t, i: first[G[(t, i)]] - D
    ldid = {}
    def load(n):
        gi, t, i, m, kq = items[n]
        j, kk = kq // 3, kq % 3
        r0 = rowslot(2*t + i)
        if r0 == 9: base, ro = V_IRR, 0
        elif r0 >= 5: base, ro = V_HI, r0 - 5
        else: base, ro = V_LO, r0
        e("ds_read_b128 %s, v%d offset:%d" % (vr(V_B + 4*(n % NB), 4), base + j, ro*SLOT + m*3072 + kk*64))
        ldid[n] = lg.issue()
    def barrier(vmids=(), lgids=(), late=False):
        def fn():
            flush()
            for x in lgids: lg.wait(x())
            for x in vmids: vm.wait(x())
            if not (NOBAR and late): e("s_barrier")
            stamp()
        return fn
    pos = 0
    for d, us in left_dma:
        atq(pos, us); pos += (1 if d[0] == 'w' else SPX)
    for i in range(3):
        for kq in range(9):
            if i == 0 and kq < 2: continue
            p = F(0,i) + 3*(kq-1) - 1
            p = max(p, F(0,i) - WLEAD + (0 if kq == 0 else 2))
            if i == 0 and kq == 3: at(p, barrier(vmids=[lambda: ids[('w0',8)]]))
            if i == 0 and kq == 6: at(p, barrier(vmids=[lambda: ids[('w0',13)]]))
            if i > 0 and kq == 0: at(p, barrier(vmids=[lambda i=i: ids[('w%d' % i,13)]]))
            atq(p, triple(9*i + kq))
    atq(26, left_setup)
    at(L(1,0), barrier(vmids=[lambda: ids[('x',1)]], lgids=[lambda: wid[26]]))
    pos = L(1,0) + 1
    for k in range(14): atq(pos, w_units(k, 'w1')); pos += SPW
    at(L(2,0), barrier(vmids=[lambda: ids[('x',2)]]))
    pos = max(pos, F(2,0))
    for t in range(5): atq(pos, x_units(3, t)); pos += 3
    at(L(1,1), barrier(vmids=[lambda: ids[('x',3)]], lgids=[lambda: wid[53]]))
    pos = L(1,1) + 1
    for k in range(14): atq(pos, w_units(k, 'w2')); pos += SPW
    pos = max(pos, F(2,1))
    for t in range(5): atq(pos, x_units(4, t)); pos += 3
    at(F(1,2) + QPOS, barrier(lgids=[lambda: swid[0]]))
    for o, u in readback_units(0): atq(F(1,2) + QPOS + o, u)
    at(F(2,2) + QPOS, barrier(lgids=[lambda: swid[1]]))
    for o, u in readback_units(1): atq(F(2,2) + QPOS + o, u)
    pos = F(2,2) + QPOS + 1
    for t in range(5): atq(pos, x_units(5, t)); pos += SSP
    pos = F(3,0) + 12
    for t in range(5): atq(pos, x_units(6, t)); pos += 2
    for t in (3, 4, 5):
        at(L(t,1), barrier(vmids=[lambda t=t: ids[('x', t+1)]], lgids=[lambda t=t: swid[t-1]], late=True))
        for o, u in readback_units(t-1): atq(L(t,1) + o, u)
    if ONEW:
        e("s_cmp_lt_u32 s%d, %d" % (S_WAVE, ONEW))
        e("s_cselect_b64 s[60:61], -1, 0")
    vm.wait(ids[('w0',4)])
    e("s_barrier")
    stamp()
    for u in triple(0): u()
    for n in range(D): load(n)
    for u in triple(1): u()
    for n in range(N):
        gi, t, i, m, kq = items[n]
        for fn in ev.get(n, []): fn()
        if n + D < N: load(n + D)
        acc = V_ACC + 36*(t % 3) + 12*m
        ks = 9*i + kq
        while any((ks*3+tp) not in wid for tp in range(3)): fq.popleft()()
        lg.wait(max(ldid[n], wid[ks*3], wid[ks*3+1], wid[ks*3+2]))
        b = vr(V_B + 4*(n % NB), 4)
        for tp in range(3):
            a = vr(acc + 4*tp, 4)
            c = "0" if (i == 0 and kq == 0) else a
            e("v_mfma_f32_16x16x32_bf16 %s, %s, %s, %s" % (a, wfrag(ks*3+tp), b, c))
            fill(1)
        if i == 2 and kq == 8:
            if gi == len(GROUPS) - 1:
                if m < 2: atq(n + 3, epi_units(t, m))
            elif m == 2:
                us = []
                for mm in range(3): us += epi_units(t, mm)
                atq(n + 3, us)
    flush()
    e("s_nop 7")
    e("s_nop 7")
    for u in epi_units(5, 2): u()
    barrier(lgids=[lambda: swid[5]])()
    for o, us in readback_units(5):
        for u in us: u()
    stamp()
    e("s_waitcnt vmcnt(0)")
    stamp()
    rstamp()
    if STAMP:
        e("s_mov_b32 s%d, s90" % (64 + nstamp[0])); nstamp[0] += 1
    dump_stamps()

header()
prologue()
main_loop()
footer()
open(sys.argv[1], "w").write("\n".join(out) + "\n")
print("lines", len(out), "stamps", nstamp[0])
```

```python
import sys, os, re
from collections import deque

KNAME = "standalone__dilated_atrous__vision_kernel"
X_BYTES = 384*384*96*2
W_BYTES = 9*96*96*2
ROWB = 384*192
SLOT = 10240
WA = 0
XB = 55296
WB1 = XB + 40960
SPARE = 157696
OPITCH = 208
NB = 9
def P(n, d): return int(os.environ.get(n, str(d)))
D = P("D", 4)
PRO = P("PRO", 24)
QUO = P("QUO", 8)
SPL = P("SPL", 1)
SPW = P("SPW", 1)
SSP = P("SSP", 3)
WSPLIT = P("WSPLIT", 1)
XNT = os.environ.get("XNT", "nt ")
SNT = os.environ.get("SNT", "sc1")

STAMP = len(sys.argv) > 2 and sys.argv[2] == "stamp"
out = []
def e(s): out.append("    " + s)

V_XOFF = 16; V_WOFF = 21; V_WTR = 24; V_BL = 27; V_BA = 30; V_PK = 40; V_B = 52; V_ACC = 88
V_SW = 124; V_SR = 125; V_OA = 130; V_W = 188

def wfrag(f):
    if f < 64: return "a[%d:%d]" % (4*f, 4*f+3)
    b = V_W + 4*(f-64)
    return "v[%d:%d]" % (b, b+3)
def wfrag_half(f, hf):
    if f < 64: return "a[%d:%d]" % (4*f+2*hf, 4*f+2*hf+1)
    b = V_W + 4*(f-64) + 2*hf
    return "v[%d:%d]" % (b, b+1)
def vr(b, n): return "v[%d:%d]" % (b, b+n-1)

S_X = 8; S_Wd = 12; S_O = 16
S_WAVE = 20; S_HH = 21; S_S = 22; S_CS = 23; S_PAR = 24; S_G = 25
S_T0 = 26; S_T1 = 27; S_T2 = 28; S_T3 = 29
S_XM0 = 32; S_WM0 = 33; S_COL0 = 34; S_W2L = 35; S_LO = 38; S_N = 39; S_XBASE = 42; S_W2L1 = 43
S_A = 56
S_TG = 59; S_XD = 60; S_IT = 61; S_TMP = 62; S_XLIM = 63

nstamp = [0]
inloop = [False]
def stamp():
    if not STAMP or inloop[0]: return
    k = nstamp[0]; nstamp[0] += 1
    e("s_memtime s[44:45]")
    e("s_waitcnt lgkmcnt(0)")
    lg.clear()
    e("s_mov_b32 s%d, s44" % (64 + k))
def rstamp():
    if not STAMP: return
    k = nstamp[0]; nstamp[0] += 1
    e("s_memrealtime s[44:45]")
    e("s_waitcnt lgkmcnt(0)")
    lg.clear()
    e("s_mov_b32 s%d, s44" % (64 + k))
def dump_stamps():
    if not STAMP: return
    e("s_load_dwordx2 s[46:47], s[0:1], 24")
    e("s_waitcnt lgkmcnt(0)")
    e("s_mov_b32 s48, s46")
    e("s_and_b32 s49, s47, 0xffff")
    e("s_mov_b32 s50, 256")
    e("s_mov_b32 s51, 0x20000")
    e("s_mov_b32 s52, 1024")
    e("s_lshl_b32 s53, s2, 2")
    e("s_add_u32 s53, s53, s%d" % S_WAVE)
    e("s_cmp_eq_u32 s53, 0")
    e("s_cselect_b32 s52, 0, s52")
    e("s_cmp_eq_u32 s53, %d" % (133*4+3))
    e("s_cselect_b32 s52, 128, s52")
    e("v_mov_b32 v1, s52")
    n = nstamp[0]
    e("s_sub_u32 s92, s%d, s%d" % (64+n-2, 64+n-1))
    e("v_mov_b32 v2, s92")
    e("buffer_store_dword v2, v1, s[48:51], 0 offen offset:0")
    for k in range(1, n-2):
        e("s_sub_u32 s92, s%d, s64" % (64+k))
        e("v_mov_b32 v2, s92")
        e("buffer_store_dword v2, v1, s[48:51], 0 offen offset:%d" % (4*k))
    e("s_waitcnt vmcnt(0)")

class Tracker:
    def __init__(self, name, maxv):
        self.name = name; self.maxv = maxv; self.done = 0; self.n = 0
    def issue(self):
        self.n += 1
        return self.n
    def wait(self, opid):
        if opid is None: return
        if opid <= self.done:
            if inloop[0]: e("s_waitcnt %s(%d) ;opt" % (self.name, self.maxv))
            return
        cnt = min(self.n - opid, self.maxv)
        e("s_waitcnt %s(%d)" % (self.name, cnt))
        self.done = self.n - cnt
    def clear(self):
        self.done = self.n
lg = Tracker("lgkmcnt", 15)
vm = Tracker("vmcnt", 63)

def header():
    out.append("""; Kernarg layout for this problem (40 bytes, ptrs only, base s[0:1]):
;   offset   0: d_in[0] x  shape=(1, 384, 384, 96) dtype=bfloat16
;   offset   8: d_in[1] w  shape=(3, 3, 96, 96) dtype=bfloat16
;   offset  16: d_out     shape=(1, 384, 384, 96) dtype=bfloat16 (2 bytes/elem)
;   offset  24: d_debug   256 bytes
;   offset  32: d_ws      268435456 bytes workspace
; @launch grid=(256,1,1) block=(256,1,1) lds=163840
.amdgcn_target "amdgcn-amd-amdhsa--gfx950"
.text
.globl %s
.p2align 8
.type %s,@function
%s:""" % (KNAME, KNAME, KNAME))

def footer():
    out.append("""L_end:
    s_endpgm
.section .rodata,"a"
.p2align 6
.amdhsa_kernel %s
  .amdhsa_next_free_vgpr 512
  .amdhsa_next_free_sgpr 100
  .amdhsa_accum_offset 256
  .amdhsa_group_segment_fixed_size 0
  .amdhsa_kernarg_size 40
  .amdhsa_user_sgpr_count 2
  .amdhsa_user_sgpr_kernarg_segment_ptr 1
  .amdhsa_system_sgpr_workgroup_id_x 1
.end_amdhsa_kernel""" % KNAME)

ids = {}
fq = deque()
def fill(k=1):
    if len(fq) > 7: k += 1
    for _ in range(k):
        if fq: fq.popleft()()
def flush():
    while fq: fq.popleft()()

def w_units(k, i):
    r = V_WOFF + (k % 3)
    base = WB1 if i == 1 else WA
    def u0():
        if k == 13: e("s_mov_b32 m0, s%d" % (S_W2L1 if i == 1 else S_W2L))
        else: e("s_add_u32 m0, s%d, %d" % (S_WM0, base + k*4096))
    def u1():
        if " m0," in out[-1]: e("s_nop 0")
        e("buffer_load_dwordx4 v%d, s[%d:%d], 0 offen lds" % (r, S_Wd, S_Wd+3))
        ids[('w', i, k)] = vm.issue()
    def u2():
        c = k % 3
        if k + 3 <= 13: adv = 12288
        else: adv = 55296 - (k - c)*4096
        e("v_add_u32 v%d, 0x%x, v%d" % (r, adv, r))
    return [u0, u1, u2]
def x_units(u, t, dyn=False):
    def u0():
        if dyn: e("s_add_u32 m0, s%d, %d" % (S_XD, t*1024))
        else: e("s_add_u32 m0, s%d, %d" % (S_XM0, XB + 20480*u + t*1024))
    def u1():
        if " m0," in out[-1]: e("s_nop 0")
        e("buffer_load_dwordx4 v%d, s[%d:%d], 0 offen %slds" % (V_XOFF+t, S_X, S_X+3, XNT))
        ids[('x', u)] = vm.issue()
    def u2(): e("v_add_u32 v%d, %d, v%d" % (V_XOFF+t, 4*ROWB, V_XOFF+t))
    return [u0, u1, u2]

def xoff_calc(t):
    L = []
    if t > 0: L.append("v_add_u32 v3, 64, v3")
    L += ["v_mul_u32_u24 v4, 43691, v3",
          "v_lshrrev_b32 v4, 19, v4",
          "v_mul_u32_u24 v5, 12, v4",
          "v_sub_u32 v5, v3, v5",
          "v_lshrrev_b32 v6, 1, v4",
          "v_and_b32 v6, 2, v6",
          "v_xor_b32 v5, v5, v6",
          "v_mul_u32_u24 v7, 192, v4",
          "v_subrev_u32 v6, s%d, v4" % S_LO,
          "v_lshl_add_u32 v7, v5, 4, v7",
          "v_cmp_gt_u32 vcc, s%d, v6" % S_N,
          "v_add_u32 v7, s%d, v7" % S_XBASE,
          "v_cndmask_b32 v%d, v8, v7, vcc" % (V_XOFF+t)]
    return L
def woff_calc(c):
    L = []
    if c > 0: L.append("v_add_u32 v9, 0x100, v9")
    L += ["v_mul_u32_u24 v10, 43691, v9",
          "v_lshrrev_b32 v10, 19, v10",
          "v_mul_u32_u24 v11, 12, v10",
          "v_sub_u32 v11, v9, v11",
          "v_lshrrev_b32 v12, 2, v10",
          "v_and_b32 v12, 2, v12",
          "v_sub_u32 v11, v11, v12",
          "v_add_u32 v12, 12, v11",
          "v_cmp_gt_i32 vcc, 0, v11",
          "v_mul_u32_u24 v13, 192, v10",
          "v_cndmask_b32 v11, v11, v12, vcc",
          "v_lshl_add_u32 v%d, v11, 4, v13" % (V_WOFF + c)]
    return L
def must_setup():
    L = []
    L += ["v_lshrrev_b32 v3, 4, v2",
          "v_lshrrev_b32 v4, 2, v2",
          "v_and_b32 v4, 3, v4",
          "v_lshl_add_u32 v4, v3, 3, v4",
          "v_mul_u32_u24 v4, 192, v4",
          "v_and_b32 v5, 3, v2",
          "v_mul_u32_u24 v5, 24, v5",
          "s_mul_i32 s%d, s%d, 96" % (S_T2, S_HH),
          "v_add_u32 v5, s%d, v5" % S_T2,
          "v_and_b32 v6, 1, v3",
          "v_lshlrev_b32 v6, 5, v6",
          "v_add_u32 v5, v5, v6"]
    for tp in range(3):
        L += ["v_add_u32 v6, %d, v5" % (8*tp),
              "v_subrev_u32 v7, 192, v6",
              "v_cmp_le_u32 vcc, 192, v6",
              "v_cndmask_b32 v6, v6, v7, vcc",
              "v_add_u32 v%d, v4, v6" % (V_WTR + tp)]
    L += ["v_and_b32 v4, 15, v2",
          "s_mul_i32 s%d, s%d, %d" % (S_A, S_S, SLOT),
          "s_add_u32 s%d, s%d, %d" % (S_A, S_A, XB)]
    for j in range(3):
        L += ["v_add_u32 v5, %d, v4" % (2*j),
              "v_lshrrev_b32 v6, 1, v5",
              "v_and_b32 v6, 2, v6",
              "v_xor_b32 v6, v6, v3",
              "v_mul_u32_u24 v5, 192, v5",
              "v_lshl_add_u32 v%d, v6, 4, v5" % (V_BL+j),
              "v_add_u32 v%d, s%d, v%d" % (V_BA+j, S_A, V_BL+j)]
    return L
def later_setup():
    L = []
    L += ["s_add_u32 s%d, s%d, %d" % (S_A+1, S_A, SLOT),
          "s_add_u32 s%d, s%d, %d" % (S_A+2, S_A, 2*SLOT)]
    for i in (1, 2):
        for j in range(3): L.append("v_add_u32 v%d, s%d, v%d" % (V_BA+3*i+j, S_A+i, V_BL+j))
    L += ["s_mov_b32 s%d, s36" % S_O,
          "s_and_b32 s%d, s37, 0xffff" % (S_O+1),
          "s_mov_b32 s%d, %d" % (S_O+2, X_BYTES),
          "s_mov_b32 s%d, 0x20000" % (S_O+3),
          "s_mov_b32 s%d, 20480" % S_TG,
          "s_mov_b32 s%d, 1" % S_IT,
          "s_add_u32 s%d, s%d, %d" % (S_XD, S_XM0, XB + 4*20480),
          "s_add_u32 s%d, s%d, %d" % (S_XLIM, S_XM0, XB + 5*20480),
          "s_mul_i32 s%d, s%d, 9984" % (S_T3, S_S),
          "s_add_u32 s%d, s%d, s%d" % (S_T2, S_T2, S_T3),
          "v_mul_u32_u24 v5, %d, v4" % OPITCH,
          "v_mul_u32_u24 v6, 24, v3",
          "v_add3_u32 v%d, v5, v6, s%d" % (V_SW, S_T2),
          "s_mul_i32 s%d, s%d, 320" % (S_T2, S_HH),
          "v_add_u32 v5, s%d, v2" % S_T2]
    for i in range(5):
        if i: L.append("v_add_u32 v5, 64, v5")
        L += ["v_mul_u32_u24 v6, 43691, v5",
              "v_lshrrev_b32 v6, 19, v6",
              "v_mul_u32_u24 v7, 12, v6",
              "v_sub_u32 v7, v5, v7",
              "v_mul_u32_u24 v6, %d, v6" % OPITCH,
              "v_lshl_add_u32 v6, v7, 4, v6",
              "v_add_u32 v%d, s%d, v6" % (V_SR + i, S_T3)]
    L += ["s_mul_i32 s%d, s%d, 12" % (S_T2, S_G),
          "s_add_u32 s%d, s%d, s%d" % (S_T2, S_T2, S_S),
          "s_lshl_b32 s%d, s%d, 1" % (S_T2, S_T2),
          "s_add_u32 s%d, s%d, s%d" % (S_T2, S_T2, S_PAR),
          "s_mul_i32 s%d, s%d, 384" % (S_T2, S_T2),
          "s_add_u32 s%d, s%d, s%d" % (S_T2, S_T2, S_COL0),
          "s_mul_i32 s%d, s%d, 192" % (S_T2, S_T2),
          "s_mul_i32 s%d, s%d, 5120" % (S_T3, S_HH),
          "s_add_u32 s%d, s%d, s%d" % (S_T2, S_T2, S_T3),
          "v_lshlrev_b32 v5, 4, v2",
          "v_add_u32 v%d, s%d, v5" % (V_OA, S_T2),
          "s_mul_i32 s%d, s%d, 0x40000000" % (S_T3, S_HH),
          "s_add_u32 s%d, s%d, 4096" % (S_T3, S_T3),
          "v_add_u32 v%d, s%d, v%d" % (V_OA+1, S_T3, V_OA)]
    return L

left_dma = []
left_setup = []
def prologue():
    e("s_cmp_ge_u32 s2, 256")
    e("s_cbranch_scc1 L_end")
    stamp()
    if STAMP:
        e("s_memrealtime s[44:45]")
        e("s_waitcnt lgkmcnt(0)")
        e("s_mov_b32 s90, s44")
    for s in ["s_load_dwordx4 s[4:7], s[0:1], 0",
              "s_load_dwordx2 s[36:37], s[0:1], 16",
              "v_lshrrev_b32 v1, 6, v0",
              "v_and_b32 v2, 63, v0",
              "s_and_b32 s%d, s2, 7" % S_CS,
              "v_readfirstlane_b32 s%d, v1" % S_WAVE,
              "s_lshr_b32 s%d, s2, 3" % S_T0,
              "s_and_b32 s%d, s%d, 1" % (S_PAR, S_T0),
              "s_lshr_b32 s%d, s%d, 1" % (S_G, S_T0),
              "s_mul_i32 s%d, s%d, 48" % (S_COL0, S_CS),
              "s_and_b32 s%d, s%d, 1" % (S_HH, S_WAVE),
              "s_lshr_b32 s%d, s%d, 1" % (S_S, S_WAVE),
              "s_mul_i32 s%d, s%d, 320" % (S_T1, S_HH),
              "v_add_u32 v3, s%d, v2" % S_T1,
              "v_mov_b32 v9, v0",
              "v_bfrev_b32 v8, 1",
              "s_mul_i32 s%d, s%d, 24" % (S_T0, S_G),
              "s_add_u32 s%d, s%d, s%d" % (S_T0, S_T0, S_PAR),
              "s_lshl_b32 s%d, s%d, 1" % (S_T1, S_S),
              "s_add_u32 s%d, s%d, s%d" % (S_T0, S_T0, S_T1),
              "s_sub_u32 s%d, s%d, 2" % (S_T0, S_T0),
              "s_mul_i32 s%d, s%d, 384" % (S_T0, S_T0),
              "s_add_u32 s%d, s%d, s%d" % (S_T0, S_T0, S_COL0),
              "s_sub_u32 s%d, s%d, 2" % (S_T0, S_T0),
              "s_mul_i32 s%d, s%d, 192" % (S_XBASE, S_T0),
              "s_cmp_eq_u32 s%d, 0" % S_CS,
              "s_cselect_b32 s%d, 2, 0" % S_LO,
              "s_cmp_eq_u32 s%d, 7" % S_CS,
              "s_cselect_b32 s%d, 50, 52" % S_N,
              "s_sub_u32 s%d, s%d, s%d" % (S_N, S_N, S_LO),
              "s_mul_i32 s%d, s%d, 5120" % (S_XM0, S_WAVE),
              "s_lshl_b32 s%d, s%d, 10" % (S_WM0, S_WAVE)]: e(s)
    for s in woff_calc(0): e(s)
    for s in xoff_calc(0): e(s)
    for s in ["s_mov_b32 s%d, %d" % (S_X+2, X_BYTES),
              "s_mov_b32 s%d, 0x20000" % (S_X+3),
              "s_mov_b32 s%d, %d" % (S_Wd+2, W_BYTES),
              "s_mov_b32 s%d, 0x20000" % (S_Wd+3),
              "s_waitcnt lgkmcnt(0)",
              "s_mov_b32 s%d, s4" % S_X,
              "s_and_b32 s%d, s5, 0xffff" % (S_X+1),
              "s_mov_b32 s%d, s6" % S_Wd,
              "s_and_b32 s%d, s7, 0xffff" % (S_Wd+1)]: e(s)
    stamp()
    S = []; need = {}
    S += xoff_calc(1); need[('x',0,1)] = len(S)
    S += woff_calc(1); need[('w',0,1)] = len(S)
    S += xoff_calc(2); need[('x',0,2)] = len(S)
    S += woff_calc(2); need[('w',0,2)] = len(S)
    S += xoff_calc(3); need[('x',0,3)] = len(S)
    S += xoff_calc(4); need[('x',0,4)] = len(S)
    S += ["s_add_u32 s%d, s%d, %d" % (S_W2L, S_WM0, WA + 13*4096),
          "s_add_u32 s%d, s%d, %d" % (S_W2L1, S_WM0, WB1 + 13*4096),
          "s_cmp_ge_u32 s%d, 2\n    s_cselect_b32 s%d, %d, s%d\n    s_cselect_b32 s%d, %d, s%d" % (S_WAVE, S_W2L, SPARE, S_W2L, S_W2L1, SPARE, S_W2L1)]
    need[('w',0,13)] = len(S)
    S += must_setup(); nmust = len(S)
    S += later_setup()
    seq = [('x',0,0), ('w',0,0), ('x',0,1), ('w',0,1), ('x',0,2), ('w',0,2), ('x',0,3), ('w',0,3), ('x',0,4), ('w',0,4)]
    seq += [('w',0,k) for k in range(5, 14)] + [('x',1,t) for t in range(5)] + [('w',1,k) for k in range(14)]
    pos = 0
    for di, d in enumerate(seq):
        us = x_units(d[1], d[2]) if d[0] == 'x' else w_units(d[2], d[1])
        if di >= PRO:
            left_dma.append((d, us)); continue
        tgt = max(need.get(d, 0), min(len(S), pos + (QUO if di >= 2 else 0)))
        if d == ('w',0,13):
            while pos < need[d]: e(S[pos]); pos += 1
        us[0]()
        while pos < tgt: e(S[pos]); pos += 1
        us[1](); us[2]()
    while pos < nmust: e(S[pos]); pos += 1
    for s in S[pos:]: left_setup.append(lambda s=s: e(s))
    stamp()

wid = {}
def tr_units(f):
    ks_l = (f // 3) % 9
    tp = f % 3
    us = []
    for hf in range(2):
        def u(hf=hf):
            off = ks_l*6144 + hf*768
            e("ds_read_b64_tr_b16 %s, v%d offset:%d" % (wfrag_half(f, hf), V_WTR + tp, off))
            i = lg.issue()
            if hf == 1: wid[f] = i
        us.append(u)
    return us
def triple(ks):
    us = []
    for tp in range(3): us += tr_units(ks*3 + tp)
    if ks == 8: us += [lambda tp=tp: e("v_add_u32 v%d, %d, v%d" % (V_WTR+tp, WB1, V_WTR+tp)) for tp in range(3)]
    if ks == 17: us += [lambda tp=tp: e("v_subrev_u32 v%d, %d, v%d" % (V_WTR+tp, WB1, V_WTR+tp)) for tp in range(3)]
    return us

swid = {}
def epi_units(t, m):
    acc = V_ACC + 12*m
    pk = V_PK + 6*(m % 2)
    us = []
    for d in range(3):
        us.append(lambda d=d: e("v_cvt_pk_bf16_f32 v%d, v%d, v%d" % (pk+2*d, acc+4*d, acc+4*d+1)))
        us.append(lambda d=d: e("v_cvt_pk_bf16_f32 v%d, v%d, v%d" % (pk+2*d+1, acc+4*d+2, acc+4*d+3)))
        def w(d=d):
            e("ds_write_b64 v%d, %s offset:%d" % (V_SW, vr(pk+2*d, 2), m*16*OPITCH + 8*d))
            swid[t] = lg.issue()
        us.append(w)
    return us

def readback_units(t):
    us = []
    rid = {}
    for i in range(5):
        def r(i=i):
            e("ds_read_b128 %s, v%d" % (vr(4 + 4*(i % 3), 4), V_SR + i))
            rid[i] = lg.issue()
        def s(i=i):
            lg.wait(rid[i])
            if i < 4: e("buffer_store_dwordx4 %s, v%d, s[%d:%d], 0 offen offset:%d %s" % (vr(4 + 4*(i % 3), 4), V_OA, S_O, S_O+3, 1024*i, SNT))
            else: e("buffer_store_dwordx4 %s, v%d, s[%d:%d], 0 offen %s" % (vr(4 + 4*(i % 3), 4), V_OA+1, S_O, S_O+3, SNT))
            vm.issue()
        us.append((r, s))
    adv = [lambda: e("v_add_u32 v%d, %d, v%d" % (V_OA, 4*ROWB, V_OA)), lambda: e("v_add_u32 v%d, %d, v%d" % (V_OA+1, 4*ROWB, V_OA+1))]
    tog = [lambda i=i: e("v_add_u32 v%d, s%d, v%d" % (V_SR+i, S_TG, V_SR+i)) for i in range(5)]
    tog += [lambda: e("v_add_u32 v%d, s%d, v%d" % (V_SW, S_TG, V_SW)), lambda: e("s_sub_u32 s%d, 0, s%d" % (S_TG, S_TG))]
    return [(0, [us[0][0], us[1][0], us[2][0]]), (SSP, [us[0][1], us[3][0]]), (2*SSP, [us[1][1], us[4][0]]), (3*SSP, [us[2][1]] + tog), (4*SSP, [us[3][1]]), (5*SSP, [us[4][1]] + adv)]

def ba_units(i):
    us = [lambda: e("s_add_u32 s%d, s%d, %d\n    s_cmp_ge_u32 s%d, %d\n    s_cselect_b32 s%d, %d, 0\n    s_sub_u32 s%d, s%d, s%d" % (S_A+i, S_A+i, 2*SLOT, S_A+i, XB+10*SLOT, S_TMP, 10*SLOT, S_A+i, S_A+i, S_TMP))]
    for j in range(3):
        us.append(lambda j=j: e("v_add_u32 v%d, s%d, v%d" % (V_BA+3*i+j, S_A+i, V_BL+j)))
    return us

def main_loop():
    items = []
    for t in range(7):
        for i in range(3):
            if t == 0 and i < 2:
                for kq in range(9):
                    for m in range(3): items.append((t, i, m, kq))
            elif t == 0:
                for kq in range(6):
                    for m in range(3): items.append((t, i, m, kq))
                for m in range(3):
                    for kq in range(6, 9): items.append((t, i, m, kq))
            else:
                for m in range(3):
                    for kq in range(9): items.append((t, i, m, kq))
    N = 6*81
    ev = {}
    def at(n, fn): ev.setdefault(max(n, 0), []).append(fn)
    def atq(n, units): at(n, lambda: fq.extend(units))
    F = lambda t, i: 81*t + 27*i
    L = lambda t, i: F(t, i) - D
    ldid = {}
    def load(n):
        t, i, m, kq = items[n]
        j, kk = kq // 3, kq % 3
        e("ds_read_b128 %s, v%d offset:%d" % (vr(V_B + 4*(n % NB), 4), V_BA + 3*i + j, m*3072 + kk*64))
        ldid[n] = lg.issue()
    def barrier(vmids=(), lgids=()):
        def fn():
            flush()
            for x in lgids: lg.wait(x())
            for x in vmids: vm.wait(x())
            e("s_barrier")
            stamp()
        return fn
    W = lambda i, k: (lambda: ids[('w', i, k)])
    pos = 0
    for d, us in left_dma:
        atq(pos, us); pos += SPL
    atq(max(pos, 6), left_setup)
    for i in range(3):
        for kq in range(9):
            if i == 0 and kq < 2: continue
            p = F(0,i) + 3*(kq-1) - 1
            if i == 2 and kq >= 6: p = F(0,2) + 12 + 2*(kq-6)
            if i == 0 and kq == 3: at(p, barrier(vmids=[W(0,8)]))
            if i == 0 and kq == 6: at(p, barrier(vmids=[W(0,13)]))
            if i == 1 and kq == 0:
                at(p, barrier(vmids=[lambda: ids[('x',1)], W(1, 4 if WSPLIT else 13)], lgids=[lambda: wid[26]]))
                q = p + 1
                for k in range(14): atq(q, w_units(k, 2)); q += SPW
            if i == 1 and kq == 3 and WSPLIT: at(p, barrier(vmids=[W(1,8)]))
            if i == 1 and kq == 6 and WSPLIT: at(p, barrier(vmids=[W(1,13)]))
            if i == 2 and kq == 0:
                at(p, barrier(vmids=[W(2, 4 if WSPLIT else 8)], lgids=[lambda: wid[53]]))
                q = p + 1
                for u in (2, 3):
                    for tt in range(5): atq(q, x_units(u, tt)); q += 2
            if i == 2 and kq == 3 and WSPLIT: at(p, barrier(vmids=[W(2,8)]))
            if i == 2 and kq == 6: at(p, barrier(vmids=[W(2,13)], lgids=[lambda: wid[23*3+2]]))
            atq(p, triple(9*i + kq))
    atq(F(0,1) + 16, ba_units(0))
    atq(F(0,2) + 6, ba_units(1))
    atq(F(0,2) + 22, epi_units(0, 0))
    atq(F(0,2) + 25, epi_units(0, 1))
    for t in range(1, 6):
        b = 81*t
        atq(b + 1, epi_units(t-1, 2))
        atq(b + 5, ba_units(2))
        atq(b + 7, [lambda: e("s_cmp_ge_u32 s%d, 4\n    s_cselect_b32 s%d, 0, %d" % (S_IT, S_X+2, X_BYTES))])
        at(L(t,1), barrier(vmids=[lambda t=t: ids[('x', t+1)]], lgids=[lambda t=t: swid[t-1]]))
        for o, u in readback_units(t-1): atq(L(t,1) + o, u)
        q = L(t,1) + 1
        for tt in range(5): atq(q, x_units(t+3, tt, dyn=True)); q += SSP
        atq(q, [lambda: e("s_add_u32 s%d, s%d, 20480\n    s_cmp_ge_u32 s%d, s%d\n    s_cselect_b32 s%d, %d, 0\n    s_sub_u32 s%d, s%d, s%d" % (S_XD, S_XD, S_XD, S_XLIM, S_TMP, 5*20480, S_XD, S_XD, S_TMP))])
        atq(b + 44, ba_units(0))
        atq(b + 58, ba_units(1))
        atq(b + 65, epi_units(t, 0))
        atq(b + 74, epi_units(t, 1))
    vm.wait(ids[('w',0,4)])
    e("s_barrier")
    stamp()
    for u in triple(0): u()
    for n in range(D): load(n)
    for u in triple(1): u()
    marks = []
    for n in range(N):
        t, i, m, kq = items[n]
        if n % 81 == 0 and n > 0:
            flush()
            if n == 81: stamp()
            inloop[0] = True
            marks.append(len(out))
        for fn in ev.get(n, []): fn()
        load(n + D)
        acc = V_ACC + 12*m
        ks = 9*i + kq
        while any((ks*3+tp) not in wid for tp in range(3)): fq.popleft()()
        lg.wait(max(ldid[n], wid[ks*3], wid[ks*3+1], wid[ks*3+2]))
        b = vr(V_B + 4*(n % NB), 4)
        for tp in range(3):
            a = vr(acc + 4*tp, 4)
            c = "0" if (i == 0 and kq == 0) else a
            e("v_mfma_f32_16x16x32_bf16 %s, %s, %s, %s" % (a, wfrag(ks*3+tp), b, c))
            fill(1)
    flush()
    marks.append(len(out))
    inloop[0] = False
    bodies = [out[marks[k]:marks[k+1]] for k in range(5)]
    assert all(len(bd) == len(bodies[0]) for bd in bodies), [len(bd) for bd in bodies]
    merged = []
    rx = re.compile(r"\s*s_waitcnt (\w+)\((\d+)\)")
    for lines in zip(*bodies):
        if all(l == lines[0] for l in lines):
            if ";opt" in lines[0]: continue
            merged.append(lines[0]); continue
        ms = [rx.match(l) for l in lines]
        assert all(ms) and len(set(mm.group(1) for mm in ms)) == 1, lines
        merged.append("    s_waitcnt %s(%d)" % (ms[0].group(1), min(int(mm.group(2)) for mm in ms)))
    del out[marks[0]:]
    out.append("L_loop:")
    out.extend(merged)
    e("s_add_u32 s%d, s%d, 1" % (S_IT, S_IT))
    e("s_cmp_lt_u32 s%d, 6" % S_IT)
    e("s_cbranch_scc1 L_loop")
    stamp()
    e("s_nop 7")
    e("s_nop 7")
    for u in epi_units(5, 2): u()
    barrier(lgids=[lambda: swid[5]])()
    for o, us in readback_units(5):
        for u in us: u()
    stamp()
    e("s_waitcnt vmcnt(0)")
    stamp()
    rstamp()
    if STAMP:
        e("s_mov_b32 s%d, s90" % (64 + nstamp[0])); nstamp[0] += 1
    dump_stamps()

header()
prologue()
main_loop()
footer()
open(sys.argv[1], "w").write("\n".join(out) + "\n")
print("lines", len(out), "stamps", nstamp[0])
```

```python
import sys, os
from collections import deque

KNAME = "standalone__dilated_atrous__vision_kernel"
X_BYTES = 384*384*96*2
W_BYTES = 9*96*96*2
ROWB = 384*192
SLOT = 10240
WA = 0
XB = 55296
SPARE = 157696
PSLOT = [XB, XB+20480, XB+40960, XB+61440, XB+81920, XB, XB+20480]
SBT = [XB, 0, 20480, 0, 20480, 0]
OPITCH = 208
NB = 6
def P(n, d): return int(os.environ.get(n, str(d)))
D = P("D", 4)
PRO = P("PRO", 24)
QUO = P("QUO", 8)
SPX = P("SPX", 2)
SPW = P("SPW", 2)
WLEAD = P("WLEAD", 6)
QPOS = P("QPOS", 10)
SSP = P("SSP", 3)
CPF = P("CPF", 0)
LASTP = P("LASTP", 0)
XNT = os.environ.get("XNT", "nt ")
SNT = os.environ.get("SNT", "sc1")

ONEW = P("ONEW", 0); NOBAR = P("NOBAR", 0); NOST = P("NOST", 0); NOEPI = P("NOEPI", 0); NORB = P("NORB", 0); NOCVT = P("NOCVT", 0); NOWR = P("NOWR", 0)
STAMP = len(sys.argv) > 2 and sys.argv[2] == "stamp"
out = []
def e(s): out.append("    " + s)

V_XOFF = 16
V_WOFF = 21
V_WTR = 24
V_LO = 27
V_HI = 30
V_IRR = 33
V_PK = 36
V_B = 48
V_ACC = 72
V_SW = 180
V_SR = 181
V_OA = 186
V_W = 188

def wfrag(f):
    if f < 64: return "a[%d:%d]" % (4*f, 4*f+3)
    b = V_W + 4*(f-64)
    return "v[%d:%d]" % (b, b+3)
def wfrag_half(f, hf):
    if f < 64: return "a[%d:%d]" % (4*f+2*hf, 4*f+2*hf+1)
    b = V_W + 4*(f-64) + 2*hf
    return "v[%d:%d]" % (b, b+1)
def vr(b, n): return "v[%d:%d]" % (b, b+n-1)

S_X = 8; S_Wd = 12; S_O = 16
S_WAVE = 20; S_HH = 21; S_S = 22; S_CS = 23; S_PAR = 24; S_G = 25
S_T0 = 26; S_T1 = 27; S_T2 = 28; S_T3 = 29
S_XM0 = 32; S_WM0 = 33; S_COL0 = 34; S_W2L = 35; S_LO = 38; S_N = 39; S_XBASE = 42; S_IRR = 43

nstamp = [0]
def stamp():
    if not STAMP: return
    k = nstamp[0]; nstamp[0] += 1
    e("s_memtime s[44:45]")
    e("s_waitcnt lgkmcnt(0)")
    lg.clear()
    e("s_mov_b32 s%d, s44" % (64 + k))
def rstamp():
    if not STAMP: return
    k = nstamp[0]; nstamp[0] += 1
    e("s_memrealtime s[44:45]")
    e("s_waitcnt lgkmcnt(0)")
    lg.clear()
    e("s_mov_b32 s%d, s44" % (64 + k))
def dump_stamps():
    if not STAMP: return
    e("s_load_dwordx2 s[46:47], s[0:1], 24")
    e("s_waitcnt lgkmcnt(0)")
    e("s_mov_b32 s48, s46")
    e("s_and_b32 s49, s47, 0xffff")
    e("s_mov_b32 s50, 256")
    e("s_mov_b32 s51, 0x20000")
    e("s_mov_b32 s52, 1024")
    e("s_lshl_b32 s53, s2, 2")
    e("s_add_u32 s53, s53, s%d" % S_WAVE)
    e("s_cmp_eq_u32 s53, 0")
    e("s_cselect_b32 s52, 0, s52")
    e("s_cmp_eq_u32 s53, %d" % (133*4+3))
    e("s_cselect_b32 s52, 128, s52")
    e("v_mov_b32 v1, s52")
    n = nstamp[0]
    e("s_sub_u32 s92, s%d, s%d" % (64+n-2, 64+n-1))
    e("v_mov_b32 v2, s92")
    e("buffer_store_dword v2, v1, s[48:51], 0 offen offset:0")
    for k in range(1, n-2):
        e("s_sub_u32 s92, s%d, s64" % (64+k))
        e("v_mov_b32 v2, s92")
        e("buffer_store_dword v2, v1, s[48:51], 0 offen offset:%d" % (4*k))
    e("s_waitcnt vmcnt(0)")

class Tracker:
    def __init__(self, name, maxv):
        self.name = name; self.maxv = maxv; self.done = 0; self.n = 0
    def issue(self):
        self.n += 1
        return self.n
    def wait(self, opid):
        if opid is None or opid <= self.done: return
        cnt = min(self.n - opid, self.maxv)
        e("s_waitcnt %s(%d)" % (self.name, cnt))
        self.done = self.n - cnt
    def clear(self):
        self.done = self.n
lg = Tracker("lgkmcnt", 15)
vm = Tracker("vmcnt", 63)

def header():
    out.append("""; Kernarg layout for this problem (40 bytes, ptrs only, base s[0:1]):
;   offset   0: d_in[0] x  shape=(1, 384, 384, 96) dtype=bfloat16
;   offset   8: d_in[1] w  shape=(3, 3, 96, 96) dtype=bfloat16
;   offset  16: d_out     shape=(1, 384, 384, 96) dtype=bfloat16 (2 bytes/elem)
;   offset  24: d_debug   256 bytes
;   offset  32: d_ws      268435456 bytes workspace
; @launch grid=(256,1,1) block=(256,1,1) lds=163840
.amdgcn_target "amdgcn-amd-amdhsa--gfx950"
.text
.globl %s
.p2align 8
.type %s,@function
%s:""" % (KNAME, KNAME, KNAME))

def footer():
    out.append("""L_end:
    s_endpgm
.section .rodata,"a"
.p2align 6
.amdhsa_kernel %s
  .amdhsa_next_free_vgpr 512
  .amdhsa_next_free_sgpr 100
  .amdhsa_accum_offset 256
  .amdhsa_group_segment_fixed_size 0
  .amdhsa_kernarg_size 40
  .amdhsa_user_sgpr_count 2
  .amdhsa_user_sgpr_kernarg_segment_ptr 1
  .amdhsa_system_sgpr_workgroup_id_x 1
.end_amdhsa_kernel""" % KNAME)

ids = {}
fq = deque()
def fill(k=1):
    if len(fq) > 7: k += 1
    for _ in range(k):
        if fq: fq.popleft()()
def flush():
    while fq: fq.popleft()()

def w_units(k, key):
    r = V_WOFF + (k % 3)
    def u0():
        if k == 13: e("s_mov_b32 m0, s%d" % S_W2L)
        else: e("s_add_u32 m0, s%d, %d" % (S_WM0, WA + k*4096))
    def u1():
        if " m0," in out[-1]: e("s_nop 0")
        e("buffer_load_dwordx4 v%d, s[%d:%d], 0 offen lds" % (r, S_Wd, S_Wd+3))
        ids[(key, k)] = vm.issue()
    def u2():
        c = k % 3
        if k + 3 <= 13: adv = 12288
        else: adv = 55296 - (k - c)*4096
        e("v_add_u32 v%d, 0x%x, v%d" % (r, adv, r))
    return [u0, u1, u2]
def x_units(u, t):
    def u0(): e("s_add_u32 m0, s%d, %d" % (S_XM0, PSLOT[u] + t*1024))
    def u1():
        if " m0," in out[-1]: e("s_nop 0")
        e("buffer_load_dwordx4 v%d, s[%d:%d], 0 offen %slds" % (V_XOFF+t, S_X, S_X+3, XNT))
        ids[('x', u)] = vm.issue()
    def u2(): e("v_add_u32 v%d, %d, v%d" % (V_XOFF+t, 4*ROWB, V_XOFF+t))
    return [u0, u1, u2]

def xoff_calc(t):
    L = []
    if t > 0: L.append("v_add_u32 v3, 64, v3")
    L += ["v_mul_u32_u24 v4, 43691, v3",
          "v_lshrrev_b32 v4, 19, v4",
          "v_mul_u32_u24 v5, 12, v4",
          "v_sub_u32 v5, v3, v5",
          "v_lshrrev_b32 v6, 1, v4",
          "v_and_b32 v6, 2, v6",
          "v_xor_b32 v5, v5, v6",
          "v_mul_u32_u24 v7, 192, v4",
          "v_subrev_u32 v6, s%d, v4" % S_LO,
          "v_lshl_add_u32 v7, v5, 4, v7",
          "v_cmp_gt_u32 vcc, s%d, v6" % S_N,
          "v_add_u32 v7, s%d, v7" % S_XBASE,
          "v_cndmask_b32 v%d, v8, v7, vcc" % (V_XOFF+t)]
    return L
def woff_calc(c):
    L = []
    if c > 0: L.append("v_add_u32 v9, 0x100, v9")
    L += ["v_mul_u32_u24 v10, 43691, v9",
          "v_lshrrev_b32 v10, 19, v10",
          "v_mul_u32_u24 v11, 12, v10",
          "v_sub_u32 v11, v9, v11",
          "v_lshrrev_b32 v12, 2, v10",
          "v_and_b32 v12, 2, v12",
          "v_sub_u32 v11, v11, v12",
          "v_add_u32 v12, 12, v11",
          "v_cmp_gt_i32 vcc, 0, v11",
          "v_mul_u32_u24 v13, 192, v10",
          "v_cndmask_b32 v11, v11, v12, vcc",
          "v_lshl_add_u32 v%d, v11, 4, v13" % (V_WOFF + c)]
    return L
def must_setup():
    L = []
    L += ["v_lshrrev_b32 v3, 4, v2",
          "v_lshrrev_b32 v4, 2, v2",
          "v_and_b32 v4, 3, v4",
          "v_lshl_add_u32 v4, v3, 3, v4",
          "v_mul_u32_u24 v4, 192, v4",
          "v_and_b32 v5, 3, v2",
          "v_mul_u32_u24 v5, 24, v5",
          "s_mul_i32 s%d, s%d, 96" % (S_T2, S_HH),
          "v_add_u32 v5, s%d, v5" % S_T2,
          "v_and_b32 v6, 1, v3",
          "v_lshlrev_b32 v6, 5, v6",
          "v_add_u32 v5, v5, v6"]
    for tp in range(3):
        L += ["v_add_u32 v6, %d, v5" % (8*tp),
              "v_subrev_u32 v7, 192, v6",
              "v_cmp_le_u32 vcc, 192, v6",
              "v_cndmask_b32 v6, v6, v7, vcc",
              "v_add_u32 v%d, v4, v6" % (V_WTR + tp)]
    L += ["v_and_b32 v4, 15, v2",
          "s_mul_i32 s%d, s%d, %d" % (S_T3, S_S, SLOT),
          "s_add_u32 s%d, s%d, %d" % (S_T3, S_T3, XB)]
    for j in range(3):
        L += ["v_add_u32 v5, %d, v4" % (2*j),
              "v_lshrrev_b32 v6, 1, v5",
              "v_and_b32 v6, 2, v6",
              "v_xor_b32 v6, v6, v3",
              "v_mul_u32_u24 v5, 192, v5",
              "v_lshl_add_u32 v5, v6, 4, v5",
              "v_add_u32 v%d, s%d, v5" % (V_LO+j, S_T3)]
    return L
def later_setup():
    L = []
    L += ["s_mul_i32 s%d, s%d, %d" % (S_IRR, S_S, 10*SLOT),
          "s_sub_u32 s%d, %d, s%d" % (S_IRR, 9*SLOT, S_IRR)]
    for j in range(3):
        L += ["v_add_u32 v%d, %d, v%d" % (V_HI+j, 5*SLOT, V_LO+j),
              "v_add_u32 v%d, s%d, v%d" % (V_IRR+j, S_IRR, V_LO+j)]
    L += ["s_mov_b32 s%d, s36" % S_O,
          "s_and_b32 s%d, s37, 0xffff" % (S_O+1),
          "s_mov_b32 s%d, %d" % (S_O+2, X_BYTES),
          "s_mov_b32 s%d, 0x20000" % (S_O+3),
          "s_mul_i32 s%d, s%d, 9984" % (S_T3, S_S),
          "s_add_u32 s%d, s%d, s%d" % (S_T2, S_T2, S_T3),
          "v_mul_u32_u24 v5, %d, v4" % OPITCH,
          "v_mul_u32_u24 v6, 24, v3",
          "v_add3_u32 v%d, v5, v6, s%d" % (V_SW, S_T2),
          "s_mul_i32 s%d, s%d, 320" % (S_T2, S_HH),
          "v_add_u32 v5, s%d, v2" % S_T2]
    for i in range(5):
        if i: L.append("v_add_u32 v5, 64, v5")
        L += ["v_mul_u32_u24 v6, 43691, v5",
              "v_lshrrev_b32 v6, 19, v6",
              "v_mul_u32_u24 v7, 12, v6",
              "v_sub_u32 v7, v5, v7",
              "v_mul_u32_u24 v6, %d, v6" % OPITCH,
              "v_lshl_add_u32 v6, v7, 4, v6",
              "v_add_u32 v%d, s%d, v6" % (V_SR + i, S_T3)]
    L += ["s_mul_i32 s%d, s%d, 12" % (S_T2, S_G),
          "s_add_u32 s%d, s%d, s%d" % (S_T2, S_T2, S_S),
          "s_lshl_b32 s%d, s%d, 1" % (S_T2, S_T2),
          "s_add_u32 s%d, s%d, s%d" % (S_T2, S_T2, S_PAR),
          "s_mul_i32 s%d, s%d, 384" % (S_T2, S_T2),
          "s_add_u32 s%d, s%d, s%d" % (S_T2, S_T2, S_COL0),
          "s_mul_i32 s%d, s%d, 192" % (S_T2, S_T2),
          "s_mul_i32 s%d, s%d, 5120" % (S_T3, S_HH),
          "s_add_u32 s%d, s%d, s%d" % (S_T2, S_T2, S_T3),
          "v_lshlrev_b32 v5, 4, v2",
          "v_add_u32 v%d, s%d, v5" % (V_OA, S_T2),
          "s_mul_i32 s%d, s%d, 0x40000000" % (S_T3, S_HH),
          "s_add_u32 s%d, s%d, 4096" % (S_T3, S_T3),
          "v_add_u32 v%d, s%d, v%d" % (V_OA+1, S_T3, V_OA)]
    return L

left_dma = []
left_setup = []
def prologue():
    e("s_cmp_ge_u32 s2, 256")
    e("s_cbranch_scc1 L_end")
    stamp()
    if STAMP:
        e("s_memrealtime s[44:45]")
        e("s_waitcnt lgkmcnt(0)")
        e("s_mov_b32 s90, s44")
    e("s_load_dwordx4 s[4:7], s[0:1], 0")
    e("s_load_dwordx2 s[36:37], s[0:1], 16")
    if CPF:
        e("s_getpc_b64 s[54:55]")
        out.append("L_pc:")
        e("v_lshlrev_b32 v10, 7, v0")
        e("v_min_u32 v10, (L_end - L_pc), v10")
        e("v_mov_b32 v11, s55")
        e("v_add_co_u32 v10, vcc, s54, v10")
        e("v_addc_co_u32 v11, vcc, 0, v11, vcc")
        e("global_load_dword v14, v[10:11], off")
        vm.issue()
    for s in [
              "v_lshrrev_b32 v1, 6, v0",
              "v_and_b32 v2, 63, v0",
              "s_and_b32 s%d, s2, 7" % S_CS,
              "v_readfirstlane_b32 s%d, v1" % S_WAVE,
              "s_lshr_b32 s%d, s2, 3" % S_T0,
              "s_and_b32 s%d, s%d, 1" % (S_PAR, S_T0),
              "s_lshr_b32 s%d, s%d, 1" % (S_G, S_T0),
              "s_mul_i32 s%d, s%d, 48" % (S_COL0, S_CS),
              "s_and_b32 s%d, s%d, 1" % (S_HH, S_WAVE),
              "s_lshr_b32 s%d, s%d, 1" % (S_S, S_WAVE),
              "s_mul_i32 s%d, s%d, 320" % (S_T1, S_HH),
              "v_add_u32 v3, s%d, v2" % S_T1,
              "v_mov_b32 v9, v0",
              "v_bfrev_b32 v8, 1",
              "s_mul_i32 s%d, s%d, 24" % (S_T0, S_G),
              "s_add_u32 s%d, s%d, s%d" % (S_T0, S_T0, S_PAR),
              "s_lshl_b32 s%d, s%d, 1" % (S_T1, S_S),
              "s_add_u32 s%d, s%d, s%d" % (S_T0, S_T0, S_T1),
              "s_sub_u32 s%d, s%d, 2" % (S_T0, S_T0),
              "s_mul_i32 s%d, s%d, 384" % (S_T0, S_T0),
              "s_add_u32 s%d, s%d, s%d" % (S_T0, S_T0, S_COL0),
              "s_sub_u32 s%d, s%d, 2" % (S_T0, S_T0),
              "s_mul_i32 s%d, s%d, 192" % (S_XBASE, S_T0),
              "s_cmp_eq_u32 s%d, 0" % S_CS,
              "s_cselect_b32 s%d, 2, 0" % S_LO,
              "s_cmp_eq_u32 s%d, 7" % S_CS,
              "s_cselect_b32 s%d, 50, 52" % S_N,
              "s_sub_u32 s%d, s%d, s%d" % (S_N, S_N, S_LO),
              "s_mul_i32 s%d, s%d, 5120" % (S_XM0, S_WAVE),
              "s_lshl_b32 s%d, s%d, 10" % (S_WM0, S_WAVE)]: e(s)
    for s in woff_calc(0): e(s)
    for s in xoff_calc(0): e(s)
    for s in ["s_mov_b32 s%d, %d" % (S_X+2, X_BYTES),
              "s_mov_b32 s%d, 0x20000" % (S_X+3),
              "s_mov_b32 s%d, %d" % (S_Wd+2, W_BYTES),
              "s_mov_b32 s%d, 0x20000" % (S_Wd+3),
              "s_waitcnt lgkmcnt(0)",
              "s_mov_b32 s%d, s4" % S_X,
              "s_and_b32 s%d, s5, 0xffff" % (S_X+1),
              "s_mov_b32 s%d, s6" % S_Wd,
              "s_and_b32 s%d, s7, 0xffff" % (S_Wd+1)]: e(s)
    stamp()
    S = []
    need = {}
    S += xoff_calc(1); need[('x',0,1)] = len(S)
    S += woff_calc(1); need[('w',1)] = len(S)
    S += xoff_calc(2); need[('x',0,2)] = len(S)
    S += woff_calc(2); need[('w',2)] = len(S)
    S += xoff_calc(3); need[('x',0,3)] = len(S)
    S += xoff_calc(4); need[('x',0,4)] = len(S)
    S += ["s_add_u32 s%d, s%d, %d" % (S_W2L, S_WM0, WA + 13*4096),
          "s_cmp_ge_u32 s%d, 2\n    s_cselect_b32 s%d, %d, s%d" % (S_WAVE, S_W2L, SPARE, S_W2L)]
    need[('w',13)] = len(S)
    S += must_setup(); nmust = len(S)
    S += later_setup()
    seq = [('x',0,0), ('w',0), ('x',0,1), ('w',1), ('x',0,2), ('w',2), ('x',0,3), ('w',3), ('x',0,4), ('w',4)]
    seq += [('w',k) for k in range(5, 14)] + [('x',1,t) for t in range(5)] + [('x',2,t) for t in range(5)]
    pos = 0
    for di, d in enumerate(seq):
        us = x_units(d[1], d[2]) if d[0] == 'x' else w_units(d[1], 'w0')
        if di >= PRO:
            left_dma.append((d, us)); continue
        tgt = max(need.get(d, 0), min(len(S), pos + (QUO if di >= 2 else 0)))
        if d == ('w',13):
            while pos < need[d]: e(S[pos]); pos += 1
        us[0]()
        while pos < tgt: e(S[pos]); pos += 1
        us[1](); us[2]()
    while pos < nmust: e(S[pos]); pos += 1
    for s in S[pos:]: left_setup.append(lambda s=s: e(s))
    stamp()

def rowslot(r): return r % 10

GROUPS = [(0,0),(1,0),(2,0),(0,1),(1,1),(2,1),(0,2),(1,2),(2,2)] + [(t,i) for t in range(3,6) for i in range(3)]

wid = {}
def tr_units(f):
    ks_l = (f // 3) % 9
    tp = f % 3
    us = []
    for hf in range(2):
        def u(hf=hf):
            off = WA + ks_l*6144 + hf*768
            e("ds_read_b64_tr_b16 %s, v%d offset:%d" % (wfrag_half(f, hf), V_WTR + tp, off))
            i = lg.issue()
            if hf == 1: wid[f] = i
        us.append(u)
    return us
def triple(ks):
    us = []
    for tp in range(3): us += tr_units(ks*3 + tp)
    return us

epi_n = [0]
swid = {}
def epi_units(t, m):
    acc = V_ACC + 36*(t % 3) + 12*m
    pk = V_PK + 6*(epi_n[0] % 2); epi_n[0] += 1
    us = []
    if NOEPI and t >= 2 and t < 5:
        swid[t] = None
        return us
    for d in range(3):
        if not (NOCVT and t >= 2 and t < 5):
          us.append(lambda d=d: e("v_cvt_pk_bf16_f32 v%d, v%d, v%d" % (pk+2*d, acc+4*d, acc+4*d+1)))
          us.append(lambda d=d: e("v_cvt_pk_bf16_f32 v%d, v%d, v%d" % (pk+2*d+1, acc+4*d+2, acc+4*d+3)))
        def w(d=d):
            e("ds_write_b64 v%d, %s offset:%d" % (V_SW, vr(pk+2*d, 2), SBT[t] + m*16*OPITCH + 8*d))
            swid[t] = lg.issue()
        if NOWR and t >= 2 and t < 5: swid[t] = None
        else: us.append(w)
    return us

def readback_units(t):
    us = []
    rid = {}
    if NORB and t >= 2 and t < 5: return []
    for i in range(5):
        def r(i=i):
            e("ds_read_b128 %s, v%d offset:%d" % (vr(4 + 4*(i % 3), 4), V_SR + i, SBT[t]))
            rid[i] = lg.issue()
        def s(i=i):
            lg.wait(rid[i])
            if NOST and t >= 2 and t < 5: return
            if ONEW and t >= 2 and t < 5: e("s_mov_b64 exec, s[60:61]")
            if i < 4: e("buffer_store_dwordx4 %s, v%d, s[%d:%d], 0 offen offset:%d %s" % (vr(4 + 4*(i % 3), 4), V_OA, S_O, S_O+3, 1024*i, "" if (LASTP and t == 5) else SNT))
            else: e("buffer_store_dwordx4 %s, v%d, s[%d:%d], 0 offen %s" % (vr(4 + 4*(i % 3), 4), V_OA+1, S_O, S_O+3, "" if (LASTP and t == 5) else SNT))
            vm.issue()
            if ONEW and t >= 2 and t < 5: e("s_mov_b64 exec, -1")
        us.append((r, s))
    adv = [lambda: e("v_add_u32 v%d, %d, v%d" % (V_OA, 4*ROWB, V_OA)), lambda: e("v_add_u32 v%d, %d, v%d" % (V_OA+1, 4*ROWB, V_OA+1))]
    return [(0, [us[0][0], us[1][0], us[2][0]]), (SSP, [us[0][1], us[3][0]]), (2*SSP, [us[1][1], us[4][0]]), (3*SSP, [us[2][1]]), (4*SSP, [us[3][1]]), (5*SSP, [us[4][1]] + adv)]

def main_loop():
    items = []
    first = {}
    for gi, (t, i) in enumerate(GROUPS):
        first[gi] = len(items)
        if gi == len(GROUPS) - 1:
            for m in range(3):
                for kq in range(9): items.append((gi, t, i, m, kq))
        else:
            for kq in range(9):
                for m in range(3): items.append((gi, t, i, m, kq))
    N = len(items)
    ev = {}
    def at(n, fn): ev.setdefault(max(n, 0), []).append(fn)
    def atq(n, units): at(n, lambda: fq.extend(units))
    G = {g: k for k, g in enumerate(GROUPS)}
    F = lambda t, i: first[G[(t, i)]]
    L = lambda t, i: first[G[(t, i)]] - D
    ldid = {}
    def load(n):
        gi, t, i, m, kq = items[n]
        j, kk = kq // 3, kq % 3
        r0 = rowslot(2*t + i)
        if r0 == 9: base, ro = V_IRR, 0
        elif r0 >= 5: base, ro = V_HI, r0 - 5
        else: base, ro = V_LO, r0
        e("ds_read_b128 %s, v%d offset:%d" % (vr(V_B + 4*(n % NB), 4), base + j, ro*SLOT + m*3072 + kk*64))
        ldid[n] = lg.issue()
    def barrier(vmids=(), lgids=(), late=False):
        def fn():
            flush()
            for x in lgids: lg.wait(x())
            for x in vmids: vm.wait(x())
            if not (NOBAR and late): e("s_barrier")
            stamp()
        return fn
    pos = 0
    for d, us in left_dma:
        atq(pos, us); pos += (1 if d[0] == 'w' else SPX)
    for i in range(3):
        for kq in range(9):
            if i == 0 and kq < 2: continue
            p = F(0,i) + 3*(kq-1) - 1
            p = max(p, F(0,i) - WLEAD + (0 if kq == 0 else 2))
            if i == 0 and kq == 3: at(p, barrier(vmids=[lambda: ids[('w0',8)]]))
            if i == 0 and kq == 6: at(p, barrier(vmids=[lambda: ids[('w0',13)]]))
            if i > 0 and kq == 0: at(p, barrier(vmids=[lambda i=i: ids[('w%d' % i,13)]]))
            atq(p, triple(9*i + kq))
    atq(26, left_setup)
    at(L(1,0), barrier(vmids=[lambda: ids[('x',1)]], lgids=[lambda: wid[26]]))
    pos = L(1,0) + 1
    for k in range(14): atq(pos, w_units(k, 'w1')); pos += SPW
    at(L(2,0), barrier(vmids=[lambda: ids[('x',2)]]))
    pos = max(pos, F(2,0))
    for t in range(5): atq(pos, x_units(3, t)); pos += 3
    at(L(1,1), barrier(vmids=[lambda: ids[('x',3)]], lgids=[lambda: wid[53]]))
    pos = L(1,1) + 1
    for k in range(14): atq(pos, w_units(k, 'w2')); pos += SPW
    pos = max(pos, F(2,1))
    for t in range(5): atq(pos, x_units(4, t)); pos += 3
    at(F(1,2) + QPOS, barrier(lgids=[lambda: swid[0]]))
    for o, u in readback_units(0): atq(F(1,2) + QPOS + o, u)
    at(F(2,2) + QPOS, barrier(lgids=[lambda: swid[1]]))
    for o, u in readback_units(1): atq(F(2,2) + QPOS + o, u)
    pos = F(2,2) + QPOS + 1
    for t in range(5): atq(pos, x_units(5, t)); pos += SSP
    pos = F(3,0) + 12
    for t in range(5): atq(pos, x_units(6, t)); pos += 2
    for t in (3, 4, 5):
        at(L(t,1), barrier(vmids=[lambda t=t: ids[('x', t+1)]], lgids=[lambda t=t: swid[t-1]], late=True))
        for o, u in readback_units(t-1): atq(L(t,1) + o, u)
    if ONEW:
        e("s_cmp_lt_u32 s%d, %d" % (S_WAVE, ONEW))
        e("s_cselect_b64 s[60:61], -1, 0")
    vm.wait(ids[('w0',4)])
    e("s_barrier")
    stamp()
    for u in triple(0): u()
    for n in range(D): load(n)
    for u in triple(1): u()
    for n in range(N):
        gi, t, i, m, kq = items[n]
        for fn in ev.get(n, []): fn()
        if n + D < N: load(n + D)
        acc = V_ACC + 36*(t % 3) + 12*m
        ks = 9*i + kq
        while any((ks*3+tp) not in wid for tp in range(3)): fq.popleft()()
        lg.wait(max(ldid[n], wid[ks*3], wid[ks*3+1], wid[ks*3+2]))
        b = vr(V_B + 4*(n % NB), 4)
        for tp in range(3):
            a = vr(acc + 4*tp, 4)
            c = "0" if (i == 0 and kq == 0) else a
            e("v_mfma_f32_16x16x32_bf16 %s, %s, %s, %s" % (a, wfrag(ks*3+tp), b, c))
            fill(1)
        if i == 2 and kq == 8:
            if gi == len(GROUPS) - 1:
                if m < 2: atq(n + 3, epi_units(t, m))
            elif m == 2:
                us = []
                for mm in range(3): us += epi_units(t, mm)
                atq(n + 3, us)
    flush()
    e("s_nop 7")
    e("s_nop 7")
    for u in epi_units(5, 2): u()
    barrier(lgids=[lambda: swid[5]])()
    for o, us in readback_units(5):
        for u in us: u()
    stamp()
    e("s_waitcnt vmcnt(0)")
    stamp()
    rstamp()
    if STAMP:
        e("s_mov_b32 s%d, s90" % (64 + nstamp[0])); nstamp[0] += 1
    dump_stamps()

header()
prologue()
main_loop()
footer()
open(sys.argv[1], "w").write("\n".join(out) + "\n")
print("lines", len(out), "stamps", nstamp[0])
```

```python
import sys, os, re
from collections import deque

KNAME = "standalone__dilated_atrous__vision_kernel"
X_BYTES = 384*384*96*2
W_BYTES = 9*96*96*2
ROWB = 384*192
SLOT = 10240
WA = 0
XB = 55296
WB1 = XB + 40960
SPARE = 157696
OPITCH = 208
NB = 9
def P(n, d): return int(os.environ.get(n, str(d)))
D = P("D", 4)
PRO = P("PRO", 24)
QUO = P("QUO", 8)
SPL = P("SPL", 1)
SPW = P("SPW", 1)
SSP = P("SSP", 3)
WSPLIT = P("WSPLIT", 1)
CPF = P("CPF", 0)
XNT = os.environ.get("XNT", "nt ")
SNT = os.environ.get("SNT", "sc1")

STAMP = len(sys.argv) > 2 and sys.argv[2] == "stamp"
out = []
def e(s): out.append("    " + s)

V_XOFF = 16; V_WOFF = 21; V_WTR = 24; V_BL = 27; V_BA = 30; V_PK = 40; V_B = 52; V_ACC = 88
V_SW = 124; V_SR = 125; V_OA = 130; V_W = 188

def wfrag(f):
    if f < 64: return "a[%d:%d]" % (4*f, 4*f+3)
    b = V_W + 4*(f-64)
    return "v[%d:%d]" % (b, b+3)
def wfrag_half(f, hf):
    if f < 64: return "a[%d:%d]" % (4*f+2*hf, 4*f+2*hf+1)
    b = V_W + 4*(f-64) + 2*hf
    return "v[%d:%d]" % (b, b+1)
def vr(b, n): return "v[%d:%d]" % (b, b+n-1)

S_X = 8; S_Wd = 12; S_O = 16
S_WAVE = 20; S_HH = 21; S_S = 22; S_CS = 23; S_PAR = 24; S_G = 25
S_T0 = 26; S_T1 = 27; S_T2 = 28; S_T3 = 29
S_XM0 = 32; S_WM0 = 33; S_COL0 = 34; S_W2L = 35; S_LO = 38; S_N = 39; S_XBASE = 42; S_W2L1 = 43
S_A = 56
S_TG = 59; S_XD = 60; S_IT = 61; S_TMP = 62; S_XLIM = 63

nstamp = [0]
inloop = [False]
def stamp():
    if not STAMP or inloop[0]: return
    k = nstamp[0]; nstamp[0] += 1
    e("s_memtime s[44:45]")
    e("s_waitcnt lgkmcnt(0)")
    lg.clear()
    e("s_mov_b32 s%d, s44" % (64 + k))
def rstamp():
    if not STAMP: return
    k = nstamp[0]; nstamp[0] += 1
    e("s_memrealtime s[44:45]")
    e("s_waitcnt lgkmcnt(0)")
    lg.clear()
    e("s_mov_b32 s%d, s44" % (64 + k))
def dump_stamps():
    if not STAMP: return
    e("s_load_dwordx2 s[46:47], s[0:1], 24")
    e("s_waitcnt lgkmcnt(0)")
    e("s_mov_b32 s48, s46")
    e("s_and_b32 s49, s47, 0xffff")
    e("s_mov_b32 s50, 256")
    e("s_mov_b32 s51, 0x20000")
    e("s_mov_b32 s52, 1024")
    e("s_lshl_b32 s53, s2, 2")
    e("s_add_u32 s53, s53, s%d" % S_WAVE)
    e("s_cmp_eq_u32 s53, 0")
    e("s_cselect_b32 s52, 0, s52")
    e("s_cmp_eq_u32 s53, %d" % (133*4+3))
    e("s_cselect_b32 s52, 128, s52")
    e("v_mov_b32 v1, s52")
    n = nstamp[0]
    e("s_sub_u32 s92, s%d, s%d" % (64+n-2, 64+n-1))
    e("v_mov_b32 v2, s92")
    e("buffer_store_dword v2, v1, s[48:51], 0 offen offset:0")
    for k in range(1, n-2):
        e("s_sub_u32 s92, s%d, s64" % (64+k))
        e("v_mov_b32 v2, s92")
        e("buffer_store_dword v2, v1, s[48:51], 0 offen offset:%d" % (4*k))
    e("s_waitcnt vmcnt(0)")

class Tracker:
    def __init__(self, name, maxv):
        self.name = name; self.maxv = maxv; self.done = 0; self.n = 0
    def issue(self):
        self.n += 1
        return self.n
    def wait(self, opid):
        if opid is None: return
        if opid <= self.done:
            if inloop[0]: e("s_waitcnt %s(%d) ;opt" % (self.name, self.maxv))
            return
        cnt = min(self.n - opid, self.maxv)
        e("s_waitcnt %s(%d)" % (self.name, cnt))
        self.done = self.n - cnt
    def clear(self):
        self.done = self.n
lg = Tracker("lgkmcnt", 15)
vm = Tracker("vmcnt", 63)

def header():
    out.append("""; Kernarg layout for this problem (40 bytes, ptrs only, base s[0:1]):
;   offset   0: d_in[0] x  shape=(1, 384, 384, 96) dtype=bfloat16
;   offset   8: d_in[1] w  shape=(3, 3, 96, 96) dtype=bfloat16
;   offset  16: d_out     shape=(1, 384, 384, 96) dtype=bfloat16 (2 bytes/elem)
;   offset  24: d_debug   256 bytes
;   offset  32: d_ws      268435456 bytes workspace
; @launch grid=(256,1,1) block=(256,1,1) lds=163840
.amdgcn_target "amdgcn-amd-amdhsa--gfx950"
.text
.globl %s
.p2align 8
.type %s,@function
%s:""" % (KNAME, KNAME, KNAME))

def footer():
    out.append("""L_end:
    s_endpgm
.section .rodata,"a"
.p2align 6
.amdhsa_kernel %s
  .amdhsa_next_free_vgpr 512
  .amdhsa_next_free_sgpr 100
  .amdhsa_accum_offset 256
  .amdhsa_group_segment_fixed_size 0
  .amdhsa_kernarg_size 40
  .amdhsa_user_sgpr_count 2
  .amdhsa_user_sgpr_kernarg_segment_ptr 1
  .amdhsa_system_sgpr_workgroup_id_x 1
.end_amdhsa_kernel""" % KNAME)

ids = {}
fq = deque()
def fill(k=1):
    if len(fq) > 7: k += 1
    for _ in range(k):
        if fq: fq.popleft()()
def flush():
    while fq: fq.popleft()()

def w_units(k, i):
    r = V_WOFF + (k % 3)
    base = WB1 if i == 1 else WA
    def u0():
        if k == 13: e("s_mov_b32 m0, s%d" % (S_W2L1 if i == 1 else S_W2L))
        else: e("s_add_u32 m0, s%d, %d" % (S_WM0, base + k*4096))
    def u1():
        if " m0," in out[-1]: e("s_nop 0")
        e("buffer_load_dwordx4 v%d, s[%d:%d], 0 offen lds" % (r, S_Wd, S_Wd+3))
        ids[('w', i, k)] = vm.issue()
    def u2():
        c = k % 3
        if k + 3 <= 13: adv = 12288
        else: adv = 55296 - (k - c)*4096
        e("v_add_u32 v%d, 0x%x, v%d" % (r, adv, r))
    return [u0, u1, u2]
def x_units(u, t, dyn=False):
    def u0():
        if dyn: e("s_add_u32 m0, s%d, %d" % (S_XD, t*1024))
        else: e("s_add_u32 m0, s%d, %d" % (S_XM0, XB + 20480*u + t*1024))
    def u1():
        if " m0," in out[-1]: e("s_nop 0")
        e("buffer_load_dwordx4 v%d, s[%d:%d], 0 offen %slds" % (V_XOFF+t, S_X, S_X+3, XNT))
        ids[('x', u)] = vm.issue()
    def u2(): e("v_add_u32 v%d, %d, v%d" % (V_XOFF+t, 4*ROWB, V_XOFF+t))
    return [u0, u1, u2]

def xoff_calc(t):
    L = []
    if t > 0: L.append("v_add_u32 v3, 64, v3")
    L += ["v_mul_u32_u24 v4, 43691, v3",
          "v_lshrrev_b32 v4, 19, v4",
          "v_mul_u32_u24 v5, 12, v4",
          "v_sub_u32 v5, v3, v5",
          "v_lshrrev_b32 v6, 1, v4",
          "v_and_b32 v6, 2, v6",
          "v_xor_b32 v5, v5, v6",
          "v_mul_u32_u24 v7, 192, v4",
          "v_subrev_u32 v6, s%d, v4" % S_LO,
          "v_lshl_add_u32 v7, v5, 4, v7",
          "v_cmp_gt_u32 vcc, s%d, v6" % S_N,
          "v_add_u32 v7, s%d, v7" % S_XBASE,
          "v_cndmask_b32 v%d, v8, v7, vcc" % (V_XOFF+t)]
    return L
def woff_calc(c):
    L = []
    if c > 0: L.append("v_add_u32 v9, 0x100, v9")
    L += ["v_mul_u32_u24 v10, 43691, v9",
          "v_lshrrev_b32 v10, 19, v10",
          "v_mul_u32_u24 v11, 12, v10",
          "v_sub_u32 v11, v9, v11",
          "v_lshrrev_b32 v12, 2, v10",
          "v_and_b32 v12, 2, v12",
          "v_sub_u32 v11, v11, v12",
          "v_add_u32 v12, 12, v11",
          "v_cmp_gt_i32 vcc, 0, v11",
          "v_mul_u32_u24 v13, 192, v10",
          "v_cndmask_b32 v11, v11, v12, vcc",
          "v_lshl_add_u32 v%d, v11, 4, v13" % (V_WOFF + c)]
    return L
def must_setup():
    L = []
    L += ["v_lshrrev_b32 v3, 4, v2",
          "v_lshrrev_b32 v4, 2, v2",
          "v_and_b32 v4, 3, v4",
          "v_lshl_add_u32 v4, v3, 3, v4",
          "v_mul_u32_u24 v4, 192, v4",
          "v_and_b32 v5, 3, v2",
          "v_mul_u32_u24 v5, 24, v5",
          "s_mul_i32 s%d, s%d, 96" % (S_T2, S_HH),
          "v_add_u32 v5, s%d, v5" % S_T2,
          "v_and_b32 v6, 1, v3",
          "v_lshlrev_b32 v6, 5, v6",
          "v_add_u32 v5, v5, v6"]
    for tp in range(3):
        L += ["v_add_u32 v6, %d, v5" % (8*tp),
              "v_subrev_u32 v7, 192, v6",
              "v_cmp_le_u32 vcc, 192, v6",
              "v_cndmask_b32 v6, v6, v7, vcc",
              "v_add_u32 v%d, v4, v6" % (V_WTR + tp)]
    L += ["v_and_b32 v4, 15, v2",
          "s_mul_i32 s%d, s%d, %d" % (S_A, S_S, SLOT),
          "s_add_u32 s%d, s%d, %d" % (S_A, S_A, XB)]
    for j in range(3):
        L += ["v_add_u32 v5, %d, v4" % (2*j),
              "v_lshrrev_b32 v6, 1, v5",
              "v_and_b32 v6, 2, v6",
              "v_xor_b32 v6, v6, v3",
              "v_mul_u32_u24 v5, 192, v5",
              "v_lshl_add_u32 v%d, v6, 4, v5" % (V_BL+j),
              "v_add_u32 v%d, s%d, v%d" % (V_BA+j, S_A, V_BL+j)]
    return L
def later_setup():
    L = []
    L += ["s_add_u32 s%d, s%d, %d" % (S_A+1, S_A, SLOT),
          "s_add_u32 s%d, s%d, %d" % (S_A+2, S_A, 2*SLOT)]
    for i in (1, 2):
        for j in range(3): L.append("v_add_u32 v%d, s%d, v%d" % (V_BA+3*i+j, S_A+i, V_BL+j))
    L += ["s_mov_b32 s%d, s36" % S_O,
          "s_and_b32 s%d, s37, 0xffff" % (S_O+1),
          "s_mov_b32 s%d, %d" % (S_O+2, X_BYTES),
          "s_mov_b32 s%d, 0x20000" % (S_O+3),
          "s_mov_b32 s%d, 20480" % S_TG,
          "s_mov_b32 s%d, 1" % S_IT,
          "s_add_u32 s%d, s%d, %d" % (S_XD, S_XM0, XB + 4*20480),
          "s_add_u32 s%d, s%d, %d" % (S_XLIM, S_XM0, XB + 5*20480),
          "s_mul_i32 s%d, s%d, 9984" % (S_T3, S_S),
          "s_add_u32 s%d, s%d, s%d" % (S_T2, S_T2, S_T3),
          "v_mul_u32_u24 v5, %d, v4" % OPITCH,
          "v_mul_u32_u24 v6, 24, v3",
          "v_add3_u32 v%d, v5, v6, s%d" % (V_SW, S_T2),
          "s_mul_i32 s%d, s%d, 320" % (S_T2, S_HH),
          "v_add_u32 v5, s%d, v2" % S_T2]
    for i in range(5):
        if i: L.append("v_add_u32 v5, 64, v5")
        L += ["v_mul_u32_u24 v6, 43691, v5",
              "v_lshrrev_b32 v6, 19, v6",
              "v_mul_u32_u24 v7, 12, v6",
              "v_sub_u32 v7, v5, v7",
              "v_mul_u32_u24 v6, %d, v6" % OPITCH,
              "v_lshl_add_u32 v6, v7, 4, v6",
              "v_add_u32 v%d, s%d, v6" % (V_SR + i, S_T3)]
    L += ["s_mul_i32 s%d, s%d, 12" % (S_T2, S_G),
          "s_add_u32 s%d, s%d, s%d" % (S_T2, S_T2, S_S),
          "s_lshl_b32 s%d, s%d, 1" % (S_T2, S_T2),
          "s_add_u32 s%d, s%d, s%d" % (S_T2, S_T2, S_PAR),
          "s_mul_i32 s%d, s%d, 384" % (S_T2, S_T2),
          "s_add_u32 s%d, s%d, s%d" % (S_T2, S_T2, S_COL0),
          "s_mul_i32 s%d, s%d, 192" % (S_T2, S_T2),
          "s_mul_i32 s%d, s%d, 5120" % (S_T3, S_HH),
          "s_add_u32 s%d, s%d, s%d" % (S_T2, S_T2, S_T3),
          "v_lshlrev_b32 v5, 4, v2",
          "v_add_u32 v%d, s%d, v5" % (V_OA, S_T2),
          "s_mul_i32 s%d, s%d, 0x40000000" % (S_T3, S_HH),
          "s_add_u32 s%d, s%d, 4096" % (S_T3, S_T3),
          "v_add_u32 v%d, s%d, v%d" % (V_OA+1, S_T3, V_OA)]
    return L

left_dma = []
left_setup = []
def prologue():
    e("s_cmp_ge_u32 s2, 256")
    e("s_cbranch_scc1 L_end")
    stamp()
    if STAMP:
        e("s_memrealtime s[44:45]")
        e("s_waitcnt lgkmcnt(0)")
        e("s_mov_b32 s90, s44")
    e("s_load_dwordx4 s[4:7], s[0:1], 0")
    e("s_load_dwordx2 s[36:37], s[0:1], 16")
    if CPF:
        e("s_getpc_b64 s[54:55]")
        out.append("L_pc:")
        e("v_lshlrev_b32 v10, 7, v0")
        e("v_min_u32 v10, (L_end - L_pc), v10")
        e("v_mov_b32 v11, s55")
        e("v_add_co_u32 v10, vcc, s54, v10")
        e("v_addc_co_u32 v11, vcc, 0, v11, vcc")
        e("global_load_dword v14, v[10:11], off")
        vm.issue()
    for s in [
              "v_lshrrev_b32 v1, 6, v0",
              "v_and_b32 v2, 63, v0",
              "s_and_b32 s%d, s2, 7" % S_CS,
              "v_readfirstlane_b32 s%d, v1" % S_WAVE,
              "s_lshr_b32 s%d, s2, 3" % S_T0,
              "s_and_b32 s%d, s%d, 1" % (S_PAR, S_T0),
              "s_lshr_b32 s%d, s%d, 1" % (S_G, S_T0),
              "s_mul_i32 s%d, s%d, 48" % (S_COL0, S_CS),
              "s_and_b32 s%d, s%d, 1" % (S_HH, S_WAVE),
              "s_lshr_b32 s%d, s%d, 1" % (S_S, S_WAVE),
              "s_mul_i32 s%d, s%d, 320" % (S_T1, S_HH),
              "v_add_u32 v3, s%d, v2" % S_T1,
              "v_mov_b32 v9, v0",
              "v_bfrev_b32 v8, 1",
              "s_mul_i32 s%d, s%d, 24" % (S_T0, S_G),
              "s_add_u32 s%d, s%d, s%d" % (S_T0, S_T0, S_PAR),
              "s_lshl_b32 s%d, s%d, 1" % (S_T1, S_S),
              "s_add_u32 s%d, s%d, s%d" % (S_T0, S_T0, S_T1),
              "s_sub_u32 s%d, s%d, 2" % (S_T0, S_T0),
              "s_mul_i32 s%d, s%d, 384" % (S_T0, S_T0),
              "s_add_u32 s%d, s%d, s%d" % (S_T0, S_T0, S_COL0),
              "s_sub_u32 s%d, s%d, 2" % (S_T0, S_T0),
              "s_mul_i32 s%d, s%d, 192" % (S_XBASE, S_T0),
              "s_cmp_eq_u32 s%d, 0" % S_CS,
              "s_cselect_b32 s%d, 2, 0" % S_LO,
              "s_cmp_eq_u32 s%d, 7" % S_CS,
              "s_cselect_b32 s%d, 50, 52" % S_N,
              "s_sub_u32 s%d, s%d, s%d" % (S_N, S_N, S_LO),
              "s_mul_i32 s%d, s%d, 5120" % (S_XM0, S_WAVE),
              "s_lshl_b32 s%d, s%d, 10" % (S_WM0, S_WAVE)]: e(s)
    for s in woff_calc(0): e(s)
    for s in xoff_calc(0): e(s)
    for s in ["s_mov_b32 s%d, %d" % (S_X+2, X_BYTES),
              "s_mov_b32 s%d, 0x20000" % (S_X+3),
              "s_mov_b32 s%d, %d" % (S_Wd+2, W_BYTES),
              "s_mov_b32 s%d, 0x20000" % (S_Wd+3),
              "s_waitcnt lgkmcnt(0)",
              "s_mov_b32 s%d, s4" % S_X,
              "s_and_b32 s%d, s5, 0xffff" % (S_X+1),
              "s_mov_b32 s%d, s6" % S_Wd,
              "s_and_b32 s%d, s7, 0xffff" % (S_Wd+1)]: e(s)
    stamp()
    S = []; need = {}
    S += xoff_calc(1); need[('x',0,1)] = len(S)
    S += woff_calc(1); need[('w',0,1)] = len(S)
    S += xoff_calc(2); need[('x',0,2)] = len(S)
    S += woff_calc(2); need[('w',0,2)] = len(S)
    S += xoff_calc(3); need[('x',0,3)] = len(S)
    S += xoff_calc(4); need[('x',0,4)] = len(S)
    S += ["s_add_u32 s%d, s%d, %d" % (S_W2L, S_WM0, WA + 13*4096),
          "s_add_u32 s%d, s%d, %d" % (S_W2L1, S_WM0, WB1 + 13*4096),
          "s_cmp_ge_u32 s%d, 2\n    s_cselect_b32 s%d, %d, s%d\n    s_cselect_b32 s%d, %d, s%d" % (S_WAVE, S_W2L, SPARE, S_W2L, S_W2L1, SPARE, S_W2L1)]
    need[('w',0,13)] = len(S)
    S += must_setup(); nmust = len(S)
    S += later_setup()
    seq = [('x',0,0), ('w',0,0), ('x',0,1), ('w',0,1), ('x',0,2), ('w',0,2), ('x',0,3), ('w',0,3), ('x',0,4), ('w',0,4)]
    seq += [('w',0,k) for k in range(5, 14)] + [('x',1,t) for t in range(5)] + [('w',1,k) for k in range(14)]
    pos = 0
    for di, d in enumerate(seq):
        us = x_units(d[1], d[2]) if d[0] == 'x' else w_units(d[2], d[1])
        if di >= PRO:
            left_dma.append((d, us)); continue
        tgt = max(need.get(d, 0), min(len(S), pos + (QUO if di >= 2 else 0)))
        if d == ('w',0,13):
            while pos < need[d]: e(S[pos]); pos += 1
        us[0]()
        while pos < tgt: e(S[pos]); pos += 1
        us[1](); us[2]()
    while pos < nmust: e(S[pos]); pos += 1
    for s in S[pos:]: left_setup.append(lambda s=s: e(s))
    stamp()

wid = {}
def tr_units(f):
    ks_l = (f // 3) % 9
    tp = f % 3
    us = []
    for hf in range(2):
        def u(hf=hf):
            off = ks_l*6144 + hf*768
            e("ds_read_b64_tr_b16 %s, v%d offset:%d" % (wfrag_half(f, hf), V_WTR + tp, off))
            i = lg.issue()
            if hf == 1: wid[f] = i
        us.append(u)
    return us
def triple(ks):
    us = []
    for tp in range(3): us += tr_units(ks*3 + tp)
    if ks == 8: us += [lambda tp=tp: e("v_add_u32 v%d, %d, v%d" % (V_WTR+tp, WB1, V_WTR+tp)) for tp in range(3)]
    if ks == 17: us += [lambda tp=tp: e("v_subrev_u32 v%d, %d, v%d" % (V_WTR+tp, WB1, V_WTR+tp)) for tp in range(3)]
    return us

swid = {}
def epi_units(t, m):
    acc = V_ACC + 12*m
    pk = V_PK + 6*(m % 2)
    us = []
    for d in range(3):
        us.append(lambda d=d: e("v_cvt_pk_bf16_f32 v%d, v%d, v%d" % (pk+2*d, acc+4*d, acc+4*d+1)))
        us.append(lambda d=d: e("v_cvt_pk_bf16_f32 v%d, v%d, v%d" % (pk+2*d+1, acc+4*d+2, acc+4*d+3)))
        def w(d=d):
            e("ds_write_b64 v%d, %s offset:%d" % (V_SW, vr(pk+2*d, 2), m*16*OPITCH + 8*d))
            swid[t] = lg.issue()
        us.append(w)
    return us

def readback_units(t):
    us = []
    rid = {}
    for i in range(5):
        def r(i=i):
            e("ds_read_b128 %s, v%d" % (vr(4 + 4*(i % 3), 4), V_SR + i))
            rid[i] = lg.issue()
        def s(i=i):
            lg.wait(rid[i])
            if i < 4: e("buffer_store_dwordx4 %s, v%d, s[%d:%d], 0 offen offset:%d %s" % (vr(4 + 4*(i % 3), 4), V_OA, S_O, S_O+3, 1024*i, SNT))
            else: e("buffer_store_dwordx4 %s, v%d, s[%d:%d], 0 offen %s" % (vr(4 + 4*(i % 3), 4), V_OA+1, S_O, S_O+3, SNT))
            vm.issue()
        us.append((r, s))
    adv = [lambda: e("v_add_u32 v%d, %d, v%d" % (V_OA, 4*ROWB, V_OA)), lambda: e("v_add_u32 v%d, %d, v%d" % (V_OA+1, 4*ROWB, V_OA+1))]
    tog = [lambda i=i: e("v_add_u32 v%d, s%d, v%d" % (V_SR+i, S_TG, V_SR+i)) for i in range(5)]
    tog += [lambda: e("v_add_u32 v%d, s%d, v%d" % (V_SW, S_TG, V_SW)), lambda: e("s_sub_u32 s%d, 0, s%d" % (S_TG, S_TG))]
    return [(0, [us[0][0], us[1][0], us[2][0]]), (SSP, [us[0][1], us[3][0]]), (2*SSP, [us[1][1], us[4][0]]), (3*SSP, [us[2][1]] + tog), (4*SSP, [us[3][1]]), (5*SSP, [us[4][1]] + adv)]

def ba_units(i):
    us = [lambda: e("s_add_u32 s%d, s%d, %d\n    s_cmp_ge_u32 s%d, %d\n    s_cselect_b32 s%d, %d, 0\n    s_sub_u32 s%d, s%d, s%d" % (S_A+i, S_A+i, 2*SLOT, S_A+i, XB+10*SLOT, S_TMP, 10*SLOT, S_A+i, S_A+i, S_TMP))]
    for j in range(3):
        us.append(lambda j=j: e("v_add_u32 v%d, s%d, v%d" % (V_BA+3*i+j, S_A+i, V_BL+j)))
    return us

def main_loop():
    items = []
    for t in range(7):
        for i in range(3):
            if t == 0 and i < 2:
                for kq in range(9):
                    for m in range(3): items.append((t, i, m, kq))
            elif t == 0:
                for kq in range(6):
                    for m in range(3): items.append((t, i, m, kq))
                for m in range(3):
                    for kq in range(6, 9): items.append((t, i, m, kq))
            else:
                for m in range(3):
                    for kq in range(9): items.append((t, i, m, kq))
    N = 6*81
    ev = {}
    def at(n, fn): ev.setdefault(max(n, 0), []).append(fn)
    def atq(n, units): at(n, lambda: fq.extend(units))
    F = lambda t, i: 81*t + 27*i
    L = lambda t, i: F(t, i) - D
    ldid = {}
    def load(n):
        t, i, m, kq = items[n]
        j, kk = kq // 3, kq % 3
        e("ds_read_b128 %s, v%d offset:%d" % (vr(V_B + 4*(n % NB), 4), V_BA + 3*i + j, m*3072 + kk*64))
        ldid[n] = lg.issue()
    def barrier(vmids=(), lgids=()):
        def fn():
            flush()
            for x in lgids: lg.wait(x())
            for x in vmids: vm.wait(x())
            e("s_barrier")
            stamp()
        return fn
    W = lambda i, k: (lambda: ids[('w', i, k)])
    pos = 0
    for d, us in left_dma:
        atq(pos, us); pos += SPL
    atq(max(pos, 6), left_setup)
    for i in range(3):
        for kq in range(9):
            if i == 0 and kq < 2: continue
            p = F(0,i) + 3*(kq-1) - 1
            if i == 2 and kq >= 6: p = F(0,2) + 12 + 2*(kq-6)
            if i == 0 and kq == 3: at(p, barrier(vmids=[W(0,8)]))
            if i == 0 and kq == 6: at(p, barrier(vmids=[W(0,13)]))
            if i == 1 and kq == 0:
                at(p, barrier(vmids=[lambda: ids[('x',1)], W(1, 4 if WSPLIT else 13)], lgids=[lambda: wid[26]]))
                q = p + 1
                for k in range(14): atq(q, w_units(k, 2)); q += SPW
            if i == 1 and kq == 3 and WSPLIT: at(p, barrier(vmids=[W(1,8)]))
            if i == 1 and kq == 6 and WSPLIT: at(p, barrier(vmids=[W(1,13)]))
            if i == 2 and kq == 0:
                at(p, barrier(vmids=[W(2, 4 if WSPLIT else 8)], lgids=[lambda: wid[53]]))
                q = p + 1
                for u in (2, 3):
                    for tt in range(5): atq(q, x_units(u, tt)); q += 2
            if i == 2 and kq == 3 and WSPLIT: at(p, barrier(vmids=[W(2,8)]))
            if i == 2 and kq == 6: at(p, barrier(vmids=[W(2,13)], lgids=[lambda: wid[23*3+2]]))
            atq(p, triple(9*i + kq))
    atq(F(0,1) + 16, ba_units(0))
    atq(F(0,2) + 6, ba_units(1))
    atq(F(0,2) + 22, epi_units(0, 0))
    atq(F(0,2) + 25, epi_units(0, 1))
    for t in range(1, 6):
        b = 81*t
        atq(b + 1, epi_units(t-1, 2))
        atq(b + 5, ba_units(2))
        atq(b + 7, [lambda: e("s_cmp_ge_u32 s%d, 4\n    s_cselect_b32 s%d, 0, %d" % (S_IT, S_X+2, X_BYTES))])
        at(L(t,1), barrier(vmids=[lambda t=t: ids[('x', t+1)]], lgids=[lambda t=t: swid[t-1]]))
        for o, u in readback_units(t-1): atq(L(t,1) + o, u)
        q = L(t,1) + 1
        for tt in range(5): atq(q, x_units(t+3, tt, dyn=True)); q += SSP
        atq(q, [lambda: e("s_add_u32 s%d, s%d, 20480\n    s_cmp_ge_u32 s%d, s%d\n    s_cselect_b32 s%d, %d, 0\n    s_sub_u32 s%d, s%d, s%d" % (S_XD, S_XD, S_XD, S_XLIM, S_TMP, 5*20480, S_XD, S_XD, S_TMP))])
        atq(b + 44, ba_units(0))
        atq(b + 58, ba_units(1))
        atq(b + 65, epi_units(t, 0))
        atq(b + 74, epi_units(t, 1))
    vm.wait(ids[('w',0,4)])
    e("s_barrier")
    stamp()
    for u in triple(0): u()
    for n in range(D): load(n)
    for u in triple(1): u()
    marks = []
    for n in range(N):
        t, i, m, kq = items[n]
        if n % 81 == 0 and n > 0:
            flush()
            if n == 81: stamp()
            inloop[0] = True
            marks.append(len(out))
        for fn in ev.get(n, []): fn()
        load(n + D)
        acc = V_ACC + 12*m
        ks = 9*i + kq
        while any((ks*3+tp) not in wid for tp in range(3)): fq.popleft()()
        lg.wait(max(ldid[n], wid[ks*3], wid[ks*3+1], wid[ks*3+2]))
        b = vr(V_B + 4*(n % NB), 4)
        for tp in range(3):
            a = vr(acc + 4*tp, 4)
            c = "0" if (i == 0 and kq == 0) else a
            e("v_mfma_f32_16x16x32_bf16 %s, %s, %s, %s" % (a, wfrag(ks*3+tp), b, c))
            fill(1)
    flush()
    marks.append(len(out))
    inloop[0] = False
    bodies = [out[marks[k]:marks[k+1]] for k in range(5)]
    assert all(len(bd) == len(bodies[0]) for bd in bodies), [len(bd) for bd in bodies]
    merged = []
    rx = re.compile(r"\s*s_waitcnt (\w+)\((\d+)\)")
    for lines in zip(*bodies):
        if all(l == lines[0] for l in lines):
            if ";opt" in lines[0]: continue
            merged.append(lines[0]); continue
        ms = [rx.match(l) for l in lines]
        assert all(ms) and len(set(mm.group(1) for mm in ms)) == 1, lines
        merged.append("    s_waitcnt %s(%d)" % (ms[0].group(1), min(int(mm.group(2)) for mm in ms)))
    del out[marks[0]:]
    out.append("L_loop:")
    out.extend(merged)
    e("s_add_u32 s%d, s%d, 1" % (S_IT, S_IT))
    e("s_cmp_lt_u32 s%d, 6" % S_IT)
    e("s_cbranch_scc1 L_loop")
    stamp()
    e("s_nop 7")
    e("s_nop 7")
    for u in epi_units(5, 2): u()
    barrier(lgids=[lambda: swid[5]])()
    for o, us in readback_units(5):
        for u in us: u()
    stamp()
    e("s_waitcnt vmcnt(0)")
    stamp()
    rstamp()
    if STAMP:
        e("s_mov_b32 s%d, s90" % (64 + nstamp[0])); nstamp[0] += 1
    dump_stamps()

header()
prologue()
main_loop()
footer()
open(sys.argv[1], "w").write("\n".join(out) + "\n")
print("lines", len(out), "stamps", nstamp[0])
```

```python
import sys, os, re
from collections import deque

KNAME = "standalone__dilated_atrous__vision_kernel"
X_BYTES = 384*384*96*2
W_BYTES = 9*96*96*2
ROWB = 384*192
SLOT = 10240
WA = 0
XB = 55296
WB1 = XB + 40960
SPARE = 157696
OPITCH = 208
NB = 9
def P(n, d): return int(os.environ.get(n, str(d)))
D = P("D", 4)
PRO = P("PRO", 24)
QUO = P("QUO", 8)
SPL = P("SPL", 1)
SPW = P("SPW", 1)
SSP = P("SSP", 3)
WSPLIT = P("WSPLIT", 1)
CPF = P("CPF", 1)
WPF = P("WPF", 0)
FC = [int(c) for c in os.environ.get("FC", "111")]
FC0 = [int(c) for c in os.environ.get("FC0", "111")]
LDP = P("LDP", 0)
LDP0 = P("LDP0", 0)
SPLITS = P("SPLITS", 0)
BOOST = P("BOOST", 7)
NOBA = P("NOBA", 0); NOXD = P("NOXD", 0); NOEPI = P("NOEPI", 0); NORB = P("NORB", 0); NOBAR = P("NOBAR", 0)
XNT = os.environ.get("XNT", "nt ")
SNT = os.environ.get("SNT", "sc1")

STAMP = len(sys.argv) > 2 and sys.argv[2] == "stamp"
out = []
def e(s): out.append("    " + s)

V_XOFF = 16; V_WOFF = 21; V_WTR = 24; V_BL = 27; V_BA = 30; V_PK = 40; V_B = 52; V_ACC = 88
V_SW = 124; V_SR = 125; V_OA = 130; V_W = 188

def wfrag(f):
    if f < 64: return "a[%d:%d]" % (4*f, 4*f+3)
    b = V_W + 4*(f-64)
    return "v[%d:%d]" % (b, b+3)
def wfrag_half(f, hf):
    if f < 64: return "a[%d:%d]" % (4*f+2*hf, 4*f+2*hf+1)
    b = V_W + 4*(f-64) + 2*hf
    return "v[%d:%d]" % (b, b+1)
def vr(b, n): return "v[%d:%d]" % (b, b+n-1)

S_X = 8; S_Wd = 12; S_O = 16
S_WAVE = 20; S_HH = 21; S_S = 22; S_CS = 23; S_PAR = 24; S_G = 25
S_T0 = 26; S_T1 = 27; S_T2 = 28; S_T3 = 29
S_XM0 = 32; S_WM0 = 33; S_COL0 = 34; S_W2L = 35; S_LO = 38; S_N = 39; S_XBASE = 42; S_W2L1 = 43
S_A = 56
S_TG = 59; S_XD = 60; S_IT = 61; S_TMP = 62; S_XLIM = 63

nstamp = [0]
inloop = [False]
def stamp():
    if not STAMP or inloop[0]: return
    k = nstamp[0]; nstamp[0] += 1
    e("s_memtime s[44:45]")
    e("s_waitcnt lgkmcnt(0)")
    lg.clear()
    e("s_mov_b32 s%d, s44" % (64 + k))
def rstamp():
    if not STAMP: return
    k = nstamp[0]; nstamp[0] += 1
    e("s_memrealtime s[44:45]")
    e("s_waitcnt lgkmcnt(0)")
    lg.clear()
    e("s_mov_b32 s%d, s44" % (64 + k))
def dump_stamps():
    if not STAMP: return
    e("s_load_dwordx2 s[46:47], s[0:1], 24")
    e("s_waitcnt lgkmcnt(0)")
    e("s_mov_b32 s48, s46")
    e("s_and_b32 s49, s47, 0xffff")
    e("s_mov_b32 s50, 256")
    e("s_mov_b32 s51, 0x20000")
    e("s_mov_b32 s52, 1024")
    e("s_lshl_b32 s53, s2, 2")
    e("s_add_u32 s53, s53, s%d" % S_WAVE)
    e("s_cmp_eq_u32 s53, 0")
    e("s_cselect_b32 s52, 0, s52")
    e("s_cmp_eq_u32 s53, %d" % (133*4+3))
    e("s_cselect_b32 s52, 128, s52")
    e("v_mov_b32 v1, s52")
    n = nstamp[0]
    e("s_sub_u32 s92, s%d, s%d" % (64+n-2, 64+n-1))
    e("v_mov_b32 v2, s92")
    e("buffer_store_dword v2, v1, s[48:51], 0 offen offset:0")
    for k in range(1, n-2):
        e("s_sub_u32 s92, s%d, s64" % (64+k))
        e("v_mov_b32 v2, s92")
        e("buffer_store_dword v2, v1, s[48:51], 0 offen offset:%d" % (4*k))
    e("s_waitcnt vmcnt(0)")

class Tracker:
    def __init__(self, name, maxv):
        self.name = name; self.maxv = maxv; self.done = 0; self.n = 0
    def issue(self):
        self.n += 1
        return self.n
    def wait(self, opid):
        if opid is None or opid <= self.done:
            if inloop[0]: e("s_waitcnt %s(%d) ;opt" % (self.name, self.maxv))
            return
        cnt = min(self.n - opid, self.maxv)
        e("s_waitcnt %s(%d)" % (self.name, cnt))
        self.done = self.n - cnt
    def clear(self):
        self.done = self.n
lg = Tracker("lgkmcnt", 15)
vm = Tracker("vmcnt", 63)

def header():
    out.append("""; Kernarg layout for this problem (40 bytes, ptrs only, base s[0:1]):
;   offset   0: d_in[0] x  shape=(1, 384, 384, 96) dtype=bfloat16
;   offset   8: d_in[1] w  shape=(3, 3, 96, 96) dtype=bfloat16
;   offset  16: d_out     shape=(1, 384, 384, 96) dtype=bfloat16 (2 bytes/elem)
;   offset  24: d_debug   256 bytes
;   offset  32: d_ws      268435456 bytes workspace
; @launch grid=(256,1,1) block=(256,1,1) lds=163840
.amdgcn_target "amdgcn-amd-amdhsa--gfx950"
.text
.globl %s
.p2align 8
.type %s,@function
%s:""" % (KNAME, KNAME, KNAME))

def footer():
    out.append("""L_end:
    s_endpgm
.section .rodata,"a"
.p2align 6
.amdhsa_kernel %s
  .amdhsa_next_free_vgpr 512
  .amdhsa_next_free_sgpr 100
  .amdhsa_accum_offset 256
  .amdhsa_group_segment_fixed_size 0
  .amdhsa_kernarg_size 40
  .amdhsa_user_sgpr_count 2
  .amdhsa_user_sgpr_kernarg_segment_ptr 1
  .amdhsa_system_sgpr_workgroup_id_x 1
.end_amdhsa_kernel""" % KNAME)

ids = {}
fq = deque()
def multi(txt):
    parts = [p.strip() for p in txt.split("\n")]
    if not SPLITS: return [lambda: e(txt)]
    return [(lambda p=p: e(p)) for p in parts]
def fill(k=1):
    if len(fq) > BOOST and k > 0: k += 1
    for _ in range(k):
        if fq: fq.popleft()()
def flush():
    while fq: fq.popleft()()

def w_units(k, i):
    r = V_WOFF + (k % 3)
    base = WB1 if i == 1 else WA
    def u0():
        if k == 13: e("s_mov_b32 m0, s%d" % (S_W2L1 if i == 1 else S_W2L))
        else: e("s_add_u32 m0, s%d, %d" % (S_WM0, base + k*4096))
    def u1():
        if " m0," in out[-1]: e("s_nop 0")
        e("buffer_load_dwordx4 v%d, s[%d:%d], 0 offen lds" % (r, S_Wd, S_Wd+3))
        ids[('w', i, k)] = vm.issue()
    def u2():
        c = k % 3
        if k + 3 <= 13: adv = 12288
        else: adv = 55296 - (k - c)*4096
        e("v_add_u32 v%d, 0x%x, v%d" % (r, adv, r))
    return [u0, u1, u2]
def x_units(u, t, dyn=False):
    def u0():
        if dyn: e("s_add_u32 m0, s%d, %d" % (S_XD, t*1024))
        else: e("s_add_u32 m0, s%d, %d" % (S_XM0, XB + 20480*u + t*1024))
    def u1():
        if " m0," in out[-1]: e("s_nop 0")
        e("buffer_load_dwordx4 v%d, s[%d:%d], 0 offen %slds" % (V_XOFF+t, S_X, S_X+3, XNT))
        ids[('x', u)] = vm.issue()
    def u2(): e("v_add_u32 v%d, %d, v%d" % (V_XOFF+t, 4*ROWB, V_XOFF+t))
    return [u0, u1, u2]

def xoff_calc(t):
    L = []
    if t > 0: L.append("v_add_u32 v3, 64, v3")
    L += ["v_mul_u32_u24 v4, 43691, v3",
          "v_lshrrev_b32 v4, 19, v4",
          "v_mul_u32_u24 v5, 12, v4",
          "v_sub_u32 v5, v3, v5",
          "v_lshrrev_b32 v6, 1, v4",
          "v_and_b32 v6, 2, v6",
          "v_xor_b32 v5, v5, v6",
          "v_mul_u32_u24 v7, 192, v4",
          "v_subrev_u32 v6, s%d, v4" % S_LO,
          "v_lshl_add_u32 v7, v5, 4, v7",
          "v_cmp_gt_u32 vcc, s%d, v6" % S_N,
          "v_add_u32 v7, s%d, v7" % S_XBASE,
          "v_cndmask_b32 v%d, v8, v7, vcc" % (V_XOFF+t)]
    return L
def woff_calc(c):
    L = []
    if c > 0: L.append("v_add_u32 v9, 0x100, v9")
    L += ["v_mul_u32_u24 v10, 43691, v9",
          "v_lshrrev_b32 v10, 19, v10",
          "v_mul_u32_u24 v11, 12, v10",
          "v_sub_u32 v11, v9, v11",
          "v_lshrrev_b32 v12, 2, v10",
          "v_and_b32 v12, 2, v12",
          "v_sub_u32 v11, v11, v12",
          "v_add_u32 v12, 12, v11",
          "v_cmp_gt_i32 vcc, 0, v11",
          "v_mul_u32_u24 v13, 192, v10",
          "v_cndmask_b32 v11, v11, v12, vcc",
          "v_lshl_add_u32 v%d, v11, 4, v13" % (V_WOFF + c)]
    return L
def must_setup():
    L = []
    L += ["v_lshrrev_b32 v3, 4, v2",
          "v_lshrrev_b32 v4, 2, v2",
          "v_and_b32 v4, 3, v4",
          "v_lshl_add_u32 v4, v3, 3, v4",
          "v_mul_u32_u24 v4, 192, v4",
          "v_and_b32 v5, 3, v2",
          "v_mul_u32_u24 v5, 24, v5",
          "s_mul_i32 s%d, s%d, 96" % (S_T2, S_HH),
          "v_add_u32 v5, s%d, v5" % S_T2,
          "v_and_b32 v6, 1, v3",
          "v_lshlrev_b32 v6, 5, v6",
          "v_add_u32 v5, v5, v6"]
    for tp in range(3):
        L += ["v_add_u32 v6, %d, v5" % (8*tp),
              "v_subrev_u32 v7, 192, v6",
              "v_cmp_le_u32 vcc, 192, v6",
              "v_cndmask_b32 v6, v6, v7, vcc",
              "v_add_u32 v%d, v4, v6" % (V_WTR + tp)]
    L += ["v_and_b32 v4, 15, v2",
          "s_mul_i32 s%d, s%d, %d" % (S_A, S_S, SLOT),
          "s_add_u32 s%d, s%d, %d" % (S_A, S_A, XB)]
    for j in range(3):
        L += ["v_add_u32 v5, %d, v4" % (2*j),
              "v_lshrrev_b32 v6, 1, v5",
              "v_and_b32 v6, 2, v6",
              "v_xor_b32 v6, v6, v3",
              "v_mul_u32_u24 v5, 192, v5",
              "v_lshl_add_u32 v%d, v6, 4, v5" % (V_BL+j),
              "v_add_u32 v%d, s%d, v%d" % (V_BA+j, S_A, V_BL+j)]
    return L
def later_setup():
    L = []
    L += ["s_add_u32 s%d, s%d, %d" % (S_A+1, S_A, SLOT),
          "s_add_u32 s%d, s%d, %d" % (S_A+2, S_A, 2*SLOT)]
    for i in (1, 2):
        for j in range(3): L.append("v_add_u32 v%d, s%d, v%d" % (V_BA+3*i+j, S_A+i, V_BL+j))
    L += ["s_mov_b32 s%d, s36" % S_O,
          "s_and_b32 s%d, s37, 0xffff" % (S_O+1),
          "s_mov_b32 s%d, %d" % (S_O+2, X_BYTES),
          "s_mov_b32 s%d, 0x20000" % (S_O+3),
          "s_mov_b32 s%d, 20480" % S_TG,
          "s_mov_b32 s%d, 1" % S_IT,
          "s_add_u32 s%d, s%d, %d" % (S_XD, S_XM0, XB + 4*20480),
          "s_add_u32 s%d, s%d, %d" % (S_XLIM, S_XM0, XB + 5*20480),
          "s_mul_i32 s%d, s%d, 9984" % (S_T3, S_S),
          "s_add_u32 s%d, s%d, s%d" % (S_T2, S_T2, S_T3),
          "v_mul_u32_u24 v5, %d, v4" % OPITCH,
          "v_mul_u32_u24 v6, 24, v3",
          "v_add3_u32 v%d, v5, v6, s%d" % (V_SW, S_T2),
          "s_mul_i32 s%d, s%d, 320" % (S_T2, S_HH),
          "v_add_u32 v5, s%d, v2" % S_T2]
    for i in range(5):
        if i: L.append("v_add_u32 v5, 64, v5")
        L += ["v_mul_u32_u24 v6, 43691, v5",
              "v_lshrrev_b32 v6, 19, v6",
              "v_mul_u32_u24 v7, 12, v6",
              "v_sub_u32 v7, v5, v7",
              "v_mul_u32_u24 v6, %d, v6" % OPITCH,
              "v_lshl_add_u32 v6, v7, 4, v6",
              "v_add_u32 v%d, s%d, v6" % (V_SR + i, S_T3)]
    L += ["s_mul_i32 s%d, s%d, 12" % (S_T2, S_G),
          "s_add_u32 s%d, s%d, s%d" % (S_T2, S_T2, S_S),
          "s_lshl_b32 s%d, s%d, 1" % (S_T2, S_T2),
          "s_add_u32 s%d, s%d, s%d" % (S_T2, S_T2, S_PAR),
          "s_mul_i32 s%d, s%d, 384" % (S_T2, S_T2),
          "s_add_u32 s%d, s%d, s%d" % (S_T2, S_T2, S_COL0),
          "s_mul_i32 s%d, s%d, 192" % (S_T2, S_T2),
          "s_mul_i32 s%d, s%d, 5120" % (S_T3, S_HH),
          "s_add_u32 s%d, s%d, s%d" % (S_T2, S_T2, S_T3),
          "v_lshlrev_b32 v5, 4, v2",
          "v_add_u32 v%d, s%d, v5" % (V_OA, S_T2),
          "s_mul_i32 s%d, s%d, 0x40000000" % (S_T3, S_HH),
          "s_add_u32 s%d, s%d, 4096" % (S_T3, S_T3),
          "v_add_u32 v%d, s%d, v%d" % (V_OA+1, S_T3, V_OA)]
    return L

left_dma = []
left_setup = []
def prologue():
    e("s_cmp_ge_u32 s2, 256")
    e("s_cbranch_scc1 L_end")
    stamp()
    if STAMP:
        e("s_memrealtime s[44:45]")
        e("s_waitcnt lgkmcnt(0)")
        e("s_mov_b32 s90, s44")
    e("s_load_dwordx4 s[4:7], s[0:1], 0")
    e("s_load_dwordx2 s[36:37], s[0:1], 16")
    if CPF:
        e("s_getpc_b64 s[54:55]")
        out.append("L_pc:")
        e("v_lshlrev_b32 v10, 7, v0")
        e("v_min_u32 v10, (L_end - L_pc), v10")
        e("v_mov_b32 v11, s55")
        e("v_add_co_u32 v10, vcc, s54, v10")
        e("v_addc_co_u32 v11, vcc, 0, v11, vcc")
        e("global_load_dword v14, v[10:11], off")
        vm.issue()
    for s in [
              "v_lshrrev_b32 v1, 6, v0",
              "v_and_b32 v2, 63, v0",
              "s_and_b32 s%d, s2, 7" % S_CS,
              "v_readfirstlane_b32 s%d, v1" % S_WAVE,
              "s_lshr_b32 s%d, s2, 3" % S_T0,
              "s_and_b32 s%d, s%d, 1" % (S_PAR, S_T0),
              "s_lshr_b32 s%d, s%d, 1" % (S_G, S_T0),
              "s_mul_i32 s%d, s%d, 48" % (S_COL0, S_CS),
              "s_and_b32 s%d, s%d, 1" % (S_HH, S_WAVE),
              "s_lshr_b32 s%d, s%d, 1" % (S_S, S_WAVE),
              "s_mul_i32 s%d, s%d, 320" % (S_T1, S_HH),
              "v_add_u32 v3, s%d, v2" % S_T1,
              "v_mov_b32 v9, v0",
              "v_bfrev_b32 v8, 1",
              "s_mul_i32 s%d, s%d, 24" % (S_T0, S_G),
              "s_add_u32 s%d, s%d, s%d" % (S_T0, S_T0, S_PAR),
              "s_lshl_b32 s%d, s%d, 1" % (S_T1, S_S),
              "s_add_u32 s%d, s%d, s%d" % (S_T0, S_T0, S_T1),
              "s_sub_u32 s%d, s%d, 2" % (S_T0, S_T0),
              "s_mul_i32 s%d, s%d, 384" % (S_T0, S_T0),
              "s_add_u32 s%d, s%d, s%d" % (S_T0, S_T0, S_COL0),
              "s_sub_u32 s%d, s%d, 2" % (S_T0, S_T0),
              "s_mul_i32 s%d, s%d, 192" % (S_XBASE, S_T0),
              "s_cmp_eq_u32 s%d, 0" % S_CS,
              "s_cselect_b32 s%d, 2, 0" % S_LO,
              "s_cmp_eq_u32 s%d, 7" % S_CS,
              "s_cselect_b32 s%d, 50, 52" % S_N,
              "s_sub_u32 s%d, s%d, s%d" % (S_N, S_N, S_LO),
              "s_mul_i32 s%d, s%d, 5120" % (S_XM0, S_WAVE),
              "s_lshl_b32 s%d, s%d, 10" % (S_WM0, S_WAVE)]: e(s)
    for s in woff_calc(0): e(s)
    for s in xoff_calc(0): e(s)
    for s in ["s_mov_b32 s%d, %d" % (S_X+2, X_BYTES),
              "s_mov_b32 s%d, 0x20000" % (S_X+3),
              "s_mov_b32 s%d, %d" % (S_Wd+2, W_BYTES),
              "s_mov_b32 s%d, 0x20000" % (S_Wd+3),
              "s_waitcnt lgkmcnt(0)",
              "s_mov_b32 s%d, s4" % S_X,
              "s_and_b32 s%d, s5, 0xffff" % (S_X+1),
              "s_mov_b32 s%d, s6" % S_Wd,
              "s_and_b32 s%d, s7, 0xffff" % (S_Wd+1)]: e(s)
    stamp()
    def wpf():
        e("s_lshr_b32 s%d, s2, 3" % S_TMP)
        e("s_and_b32 s%d, s%d, 7" % (S_TMP, S_TMP))
        e("s_mul_i32 s%d, s%d, 20736" % (S_TMP, S_TMP))
        e("v_lshlrev_b32 v15, 7, v0")
        e("v_add_u32 v15, s%d, v15" % S_TMP)
        e("buffer_load_dword v15, v15, s[%d:%d], 0 offen" % (S_Wd, S_Wd+3))
        vm.issue()
    S = []; need = {}
    S += xoff_calc(1); need[('x',0,1)] = len(S)
    S += woff_calc(1); need[('w',0,1)] = len(S)
    S += xoff_calc(2); need[('x',0,2)] = len(S)
    S += woff_calc(2); need[('w',0,2)] = len(S)
    S += xoff_calc(3); need[('x',0,3)] = len(S)
    S += xoff_calc(4); need[('x',0,4)] = len(S)
    S += ["s_add_u32 s%d, s%d, %d" % (S_W2L, S_WM0, WA + 13*4096),
          "s_add_u32 s%d, s%d, %d" % (S_W2L1, S_WM0, WB1 + 13*4096),
          "s_cmp_ge_u32 s%d, 2\n    s_cselect_b32 s%d, %d, s%d\n    s_cselect_b32 s%d, %d, s%d" % (S_WAVE, S_W2L, SPARE, S_W2L, S_W2L1, SPARE, S_W2L1)]
    need[('w',0,13)] = len(S)
    S += must_setup(); nmust = len(S)
    S += later_setup()
    seq = [('x',0,0), ('w',0,0), ('x',0,1), ('w',0,1), ('x',0,2), ('w',0,2), ('x',0,3), ('w',0,3), ('x',0,4), ('w',0,4)]
    seq += [('w',0,k) for k in range(5, 14)] + [('x',1,t) for t in range(5)] + [('w',1,k) for k in range(14)]
    pos = 0
    for di, d in enumerate(seq):
        us = x_units(d[1], d[2]) if d[0] == 'x' else w_units(d[2], d[1])
        if di >= PRO:
            left_dma.append((d, us)); continue
        tgt = max(need.get(d, 0), min(len(S), pos + (QUO if di >= 2 else 0)))
        if d == ('w',0,13):
            while pos < need[d]: e(S[pos]); pos += 1
        us[0]()
        while pos < tgt: e(S[pos]); pos += 1
        us[1](); us[2]()
        if WPF and di == WPF - 1: wpf()
    while pos < nmust: e(S[pos]); pos += 1
    for s in S[pos:]: left_setup.append(lambda s=s: e(s))
    stamp()

wid = {}
def tr_units(f):
    ks_l = (f // 3) % 9
    tp = f % 3
    us = []
    for hf in range(2):
        def u(hf=hf):
            off = ks_l*6144 + hf*768
            e("ds_read_b64_tr_b16 %s, v%d offset:%d" % (wfrag_half(f, hf), V_WTR + tp, off))
            i = lg.issue()
            if hf == 1: wid[f] = i
        us.append(u)
    return us
def triple(ks):
    us = []
    for tp in range(3): us += tr_units(ks*3 + tp)
    if ks == 8: us += [lambda tp=tp: e("v_add_u32 v%d, %d, v%d" % (V_WTR+tp, WB1, V_WTR+tp)) for tp in range(3)]
    if ks == 17: us += [lambda tp=tp: e("v_subrev_u32 v%d, %d, v%d" % (V_WTR+tp, WB1, V_WTR+tp)) for tp in range(3)]
    return us

swid = {}
def epi_units(t, m):
    acc = V_ACC + 12*m
    pk = V_PK + 6*(m % 2)
    us = []
    for d in range(3):
        us.append(lambda d=d: e("v_cvt_pk_bf16_f32 v%d, v%d, v%d" % (pk+2*d, acc+4*d, acc+4*d+1)))
        us.append(lambda d=d: e("v_cvt_pk_bf16_f32 v%d, v%d, v%d" % (pk+2*d+1, acc+4*d+2, acc+4*d+3)))
        def w(d=d):
            e("ds_write_b64 v%d, %s offset:%d" % (V_SW, vr(pk+2*d, 2), m*16*OPITCH + 8*d))
            swid[t] = lg.issue()
        us.append(w)
    return us

def readback_units(t):
    us = []
    rid = {}
    for i in range(5):
        def r(i=i):
            e("ds_read_b128 %s, v%d" % (vr(4 + 4*(i % 3), 4), V_SR + i))
            rid[i] = lg.issue()
        def s(i=i):
            lg.wait(rid[i])
            if i < 4: e("buffer_store_dwordx4 %s, v%d, s[%d:%d], 0 offen offset:%d %s" % (vr(4 + 4*(i % 3), 4), V_OA, S_O, S_O+3, 1024*i, SNT))
            else: e("buffer_store_dwordx4 %s, v%d, s[%d:%d], 0 offen %s" % (vr(4 + 4*(i % 3), 4), V_OA+1, S_O, S_O+3, SNT))
            vm.issue()
        us.append((r, s))
    adv = [lambda: e("v_add_u32 v%d, %d, v%d" % (V_OA, 4*ROWB, V_OA)), lambda: e("v_add_u32 v%d, %d, v%d" % (V_OA+1, 4*ROWB, V_OA+1))]
    tog = [lambda i=i: e("v_add_u32 v%d, s%d, v%d" % (V_SR+i, S_TG, V_SR+i)) for i in range(5)]
    tog += [lambda: e("v_add_u32 v%d, s%d, v%d" % (V_SW, S_TG, V_SW)), lambda: e("s_sub_u32 s%d, 0, s%d" % (S_TG, S_TG))]
    return [(0, [us[0][0], us[1][0], us[2][0]]), (SSP, [us[0][1], us[3][0]]), (2*SSP, [us[1][1], us[4][0]]), (3*SSP, [us[2][1]] + tog), (4*SSP, [us[3][1]]), (5*SSP, [us[4][1]] + adv)]

def ba_units(i):
    us = multi("s_add_u32 s%d, s%d, %d\n    s_cmp_ge_u32 s%d, %d\n    s_cselect_b32 s%d, %d, 0\n    s_sub_u32 s%d, s%d, s%d" % (S_A+i, S_A+i, 2*SLOT, S_A+i, XB+10*SLOT, S_TMP, 10*SLOT, S_A+i, S_A+i, S_TMP))
    for j in range(3):
        us.append(lambda j=j: e("v_add_u32 v%d, s%d, v%d" % (V_BA+3*i+j, S_A+i, V_BL+j)))
    return us

def main_loop():
    items = []
    for t in range(7):
        for i in range(3):
            if t == 0 and i < 2:
                for kq in range(9):
                    for m in range(3): items.append((t, i, m, kq))
            elif t == 0:
                for kq in range(6):
                    for m in range(3): items.append((t, i, m, kq))
                for m in range(3):
                    for kq in range(6, 9): items.append((t, i, m, kq))
            else:
                for m in range(3):
                    for kq in range(9): items.append((t, i, m, kq))
    N = 6*81
    ev = {}
    def at(n, fn): ev.setdefault(max(n, 0), []).append(fn)
    def atq(n, units): at(n, lambda: fq.extend(units))
    F = lambda t, i: 81*t + 27*i
    L = lambda t, i: F(t, i) - D
    ldid = {}
    def load(n):
        t, i, m, kq = items[n]
        j, kk = kq // 3, kq % 3
        e("ds_read_b128 %s, v%d offset:%d" % (vr(V_B + 4*(n % NB), 4), V_BA + 3*i + j, m*3072 + kk*64))
        ldid[n] = lg.issue()
    def barrier(vmids=(), lgids=()):
        def fn():
            flush()
            for x in lgids: lg.wait(x())
            for x in vmids: vm.wait(x())
            e("s_barrier")
            stamp()
        return fn
    W = lambda i, k: (lambda: ids[('w', i, k)])
    pos = 0
    for d, us in left_dma:
        atq(pos, us); pos += SPL
    atq(max(pos, 6), left_setup)
    for i in range(3):
        for kq in range(9):
            if i == 0 and kq < 2: continue
            p = F(0,i) + 3*(kq-1) - 1
            if i == 2 and kq >= 6: p = F(0,2) + 12 + 2*(kq-6)
            if i == 0 and kq == 3: at(p, barrier(vmids=[W(0,8)]))
            if i == 0 and kq == 6: at(p, barrier(vmids=[W(0,13)]))
            if i == 1 and kq == 0:
                at(p, barrier(vmids=[lambda: ids[('x',1)], W(1, 4 if WSPLIT else 13)], lgids=[lambda: wid[26]]))
                q = p + 1
                for k in range(14): atq(q, w_units(k, 2)); q += SPW
            if i == 1 and kq == 3 and WSPLIT: at(p, barrier(vmids=[W(1,8)]))
            if i == 1 and kq == 6 and WSPLIT: at(p, barrier(vmids=[W(1,13)]))
            if i == 2 and kq == 0:
                at(p, barrier(vmids=[W(2, 4 if WSPLIT else 8)], lgids=[lambda: wid[53]]))
                q = p + 1
                for u in (2, 3):
                    for tt in range(5): atq(q, x_units(u, tt)); q += 2
            if i == 2 and kq == 3 and WSPLIT: at(p, barrier(vmids=[W(2,8)]))
            if i == 2 and kq == 6: at(p, barrier(vmids=[W(2,13)], lgids=[lambda: wid[23*3+2]]))
            atq(p, triple(9*i + kq))
    atq(F(0,1) + 16, ba_units(0))
    atq(F(0,2) + 6, ba_units(1))
    atq(F(0,2) + 22, epi_units(0, 0))
    atq(F(0,2) + 25, epi_units(0, 1))
    for t in range(1, 6):
        b = 81*t
        if not NOEPI: atq(b + 1, epi_units(t-1, 2))
        else: swid[t-1] = None
        if not NOBA: atq(b + 5, ba_units(2))
        atq(b + 7, multi("s_cmp_ge_u32 s%d, 4\n    s_cselect_b32 s%d, 0, %d" % (S_IT, S_X+2, X_BYTES)))
        if not NOBAR: at(L(t,1), barrier(vmids=[lambda t=t: ids.get(('x', t+1))], lgids=[lambda t=t: swid[t-1]]))
        if not NORB:
            for o, u in readback_units(t-1): atq(L(t,1) + o, u)
        q = L(t,1) + 1
        for tt in range(5):
            if not NOXD: atq(q, x_units(t+3, tt, dyn=True))
            q += SSP
        atq(q, multi("s_add_u32 s%d, s%d, 20480\n    s_cmp_ge_u32 s%d, s%d\n    s_cselect_b32 s%d, %d, 0\n    s_sub_u32 s%d, s%d, s%d" % (S_XD, S_XD, S_XD, S_XLIM, S_TMP, 5*20480, S_XD, S_XD, S_TMP)))
        if not NOBA:
            atq(b + 44, ba_units(0))
            atq(b + 58, ba_units(1))
        if not NOEPI:
            atq(b + 65, epi_units(t, 0))
            atq(b + 74, epi_units(t, 1))
    vm.wait(ids[('w',0,4)])
    e("s_barrier")
    stamp()
    for u in triple(0): u()
    for n in range(D): load(n)
    for u in triple(1): u()
    marks = []
    for n in range(N):
        t, i, m, kq = items[n]
        if n % 81 == 0 and n > 0:
            flush()
            if n == 81: stamp()
            inloop[0] = True
            marks.append(len(out))
        for fn in ev.get(n, []): fn()
        ldp = LDP if t > 0 else LDP0
        fc = FC if t > 0 else FC0
        if ldp == 0: load(n + D)
        acc = V_ACC + 12*m
        ks = 9*i + kq
        while any((ks*3+tp) not in wid for tp in range(3)): fq.popleft()()
        lg.wait(max(ldid[n], wid[ks*3], wid[ks*3+1], wid[ks*3+2]))
        b = vr(V_B + 4*(n % NB), 4)
        for tp in range(3):
            a = vr(acc + 4*tp, 4)
            c = "0" if (i == 0 and kq == 0) else a
            e("v_mfma_f32_16x16x32_bf16 %s, %s, %s, %s" % (a, wfrag(ks*3+tp), b, c))
            if ldp == tp + 1: load(n + D)
            fill(fc[tp])
    flush()
    marks.append(len(out))
    inloop[0] = False
    bodies = [out[marks[k]:marks[k+1]] for k in range(5)]
    assert all(len(bd) == len(bodies[0]) for bd in bodies), [len(bd) for bd in bodies]
    merged = []
    rx = re.compile(r"\s*s_waitcnt (\w+)\((\d+)\)")
    for lines in zip(*bodies):
        if all(l == lines[0] for l in lines):
            if ";opt" in lines[0]: continue
            merged.append(lines[0]); continue
        ms = [rx.match(l) for l in lines]
        assert all(ms) and len(set(mm.group(1) for mm in ms)) == 1, lines
        merged.append("    s_waitcnt %s(%d)" % (ms[0].group(1), min(int(mm.group(2)) for mm in ms)))
    del out[marks[0]:]
    out.append("L_loop:")
    out.extend(merged)
    e("s_add_u32 s%d, s%d, 1" % (S_IT, S_IT))
    e("s_cmp_lt_u32 s%d, 6" % S_IT)
    e("s_cbranch_scc1 L_loop")
    stamp()
    e("s_nop 7")
    e("s_nop 7")
    for u in epi_units(5, 2): u()
    barrier(lgids=[lambda: swid[5]])()
    for o, us in readback_units(5):
        for u in us: u()
    stamp()
    e("s_waitcnt vmcnt(0)")
    stamp()
    rstamp()
    if STAMP:
        e("s_mov_b32 s%d, s90" % (64 + nstamp[0])); nstamp[0] += 1
    dump_stamps()

header()
prologue()
main_loop()
footer()
open(sys.argv[1], "w").write("\n".join(out) + "\n")
print("lines", len(out), "stamps", nstamp[0])
```

```python
import sys, os, re
from collections import deque

KNAME = "standalone__dilated_atrous__vision_kernel"
X_BYTES = 384*384*96*2
W_BYTES = 9*96*96*2
ROWB = 384*192
SLOT = 10240
WA = 0
XB = 55296
WB1 = 106496
SPARE = 161792
OPITCH = 208
NB = 9
def P(n, d): return int(os.environ.get(n, str(d)))
D = P("D", 4)
PRO = P("PRO", 24)
QUO = P("QUO", 8)
SPL = P("SPL", 1)
SPW = P("SPW", 1)
SSP = P("SSP", 3)
WSPLIT = P("WSPLIT", 1)
CPF = P("CPF", 1)
WPF = P("WPF", 0)
FC = [int(c) for c in os.environ.get("FC", "111")]
FC0 = [int(c) for c in os.environ.get("FC0", "111")]
LQ = P("LQ", 2)
W2B = P("W2B", 18)
SB = P("SB", 4)
SK = P("SK", 0)
ORD = P("ORD", 0)
XSP = P("XSP", 0)
LDP = P("LDP", 0)
LDP0 = P("LDP0", 0)
SPLITS = P("SPLITS", 0)
BOOST = P("BOOST", 7)
NOBA = P("NOBA", 0); NOXD = P("NOXD", 0); NOEPI = P("NOEPI", 0); NORB = P("NORB", 0); NOBAR = P("NOBAR", 0)
XNT = os.environ.get("XNT", "nt ")
SNT = os.environ.get("SNT", "sc1")

STAMP = len(sys.argv) > 2 and sys.argv[2] == "stamp"
out = []
def e(s): out.append("    " + s)

V_XOFF = 16; V_WOFF = 21; V_WTR = 24; V_BA = 27; V_SW = 30; V_SR = 31; V_OA = 36; V_PK = 38; V_B = 44; V_ACC = 80
V_W = 188; V_WTR1 = 13

def wfrag(f):
    if f < 64: return "a[%d:%d]" % (4*f, 4*f+3)
    b = V_W + 4*(f-64)
    return "v[%d:%d]" % (b, b+3)
def wfrag_half(f, hf):
    if f < 64: return "a[%d:%d]" % (4*f+2*hf, 4*f+2*hf+1)
    b = V_W + 4*(f-64) + 2*hf
    return "v[%d:%d]" % (b, b+1)
def vr(b, n): return "v[%d:%d]" % (b, b+n-1)

S_X = 8; S_Wd = 12; S_O = 16
S_WAVE = 20; S_HH = 21; S_S = 22; S_CS = 23; S_PAR = 24; S_G = 25
S_T0 = 26; S_T1 = 27; S_T2 = 28; S_T3 = 29
S_XM0 = 32; S_WM0 = 33; S_COL0 = 34; S_W2L = 35; S_LO = 38; S_N = 39; S_XBASE = 42; S_W2L1 = 43
S_RT = 56; S_LT = 57; S_CUR = 58
S_TG = 59; S_XD = 60; S_IT = 61; S_TMP = 62; S_DL = 63; S_XH = 30; S_XINC = 31; S_XJ = 40; S_TMP2 = 41

nstamp = [0]
inloop = [False]
def stamp():
    if not STAMP or inloop[0]: return
    k = nstamp[0]; nstamp[0] += 1
    e("s_memtime s[44:45]")
    e("s_waitcnt lgkmcnt(0)")
    lg.clear()
    e("s_mov_b32 s%d, s44" % (64 + k))
def rstamp():
    if not STAMP: return
    k = nstamp[0]; nstamp[0] += 1
    e("s_memrealtime s[44:45]")
    e("s_waitcnt lgkmcnt(0)")
    lg.clear()
    e("s_mov_b32 s%d, s44" % (64 + k))
def dump_stamps():
    if not STAMP: return
    e("s_load_dwordx2 s[46:47], s[0:1], 24")
    e("s_waitcnt lgkmcnt(0)")
    e("s_mov_b32 s48, s46")
    e("s_and_b32 s49, s47, 0xffff")
    e("s_mov_b32 s50, 256")
    e("s_mov_b32 s51, 0x20000")
    e("s_mov_b32 s52, 1024")
    e("s_lshl_b32 s53, s2, 2")
    e("s_add_u32 s53, s53, s%d" % S_WAVE)
    e("s_cmp_eq_u32 s53, 0")
    e("s_cselect_b32 s52, 0, s52")
    e("s_cmp_eq_u32 s53, %d" % (133*4+3))
    e("s_cselect_b32 s52, 128, s52")
    e("v_mov_b32 v1, s52")
    n = nstamp[0]
    e("s_sub_u32 s92, s%d, s%d" % (64+n-2, 64+n-1))
    e("v_mov_b32 v2, s92")
    e("buffer_store_dword v2, v1, s[48:51], 0 offen offset:0")
    for k in range(1, n-2):
        e("s_sub_u32 s92, s%d, s64" % (64+k))
        e("v_mov_b32 v2, s92")
        e("buffer_store_dword v2, v1, s[48:51], 0 offen offset:%d" % (4*k))
    e("s_waitcnt vmcnt(0)")

class Tracker:
    def __init__(self, name, maxv):
        self.name = name; self.maxv = maxv; self.done = 0; self.n = 0
    def issue(self):
        self.n += 1
        return self.n
    def wait(self, opid):
        if opid is None or opid <= self.done:
            if inloop[0]: e("s_waitcnt %s(%d) ;opt" % (self.name, self.maxv))
            return
        cnt = min(self.n - opid, self.maxv)
        e("s_waitcnt %s(%d)" % (self.name, cnt))
        self.done = self.n - cnt
    def clear(self):
        self.done = self.n
lg = Tracker("lgkmcnt", 15)
vm = Tracker("vmcnt", 63)

def header():
    out.append("""; Kernarg layout for this problem (40 bytes, ptrs only, base s[0:1]):
;   offset   0: d_in[0] x  shape=(1, 384, 384, 96) dtype=bfloat16
;   offset   8: d_in[1] w  shape=(3, 3, 96, 96) dtype=bfloat16
;   offset  16: d_out     shape=(1, 384, 384, 96) dtype=bfloat16 (2 bytes/elem)
;   offset  24: d_debug   256 bytes
;   offset  32: d_ws      268435456 bytes workspace
; @launch grid=(256,1,1) block=(256,1,1) lds=163840
.amdgcn_target "amdgcn-amd-amdhsa--gfx950"
.text
.globl %s
.p2align 8
.type %s,@function
%s:""" % (KNAME, KNAME, KNAME))

def footer():
    out.append("""L_end:
    s_endpgm
.section .rodata,"a"
.p2align 6
.amdhsa_kernel %s
  .amdhsa_next_free_vgpr 512
  .amdhsa_next_free_sgpr 100
  .amdhsa_accum_offset 256
  .amdhsa_group_segment_fixed_size 0
  .amdhsa_kernarg_size 40
  .amdhsa_user_sgpr_count 2
  .amdhsa_user_sgpr_kernarg_segment_ptr 1
  .amdhsa_system_sgpr_workgroup_id_x 1
.end_amdhsa_kernel""" % KNAME)

ids = {}
fq = deque()
def multi(txt):
    parts = [p.strip() for p in txt.split("\n")]
    if not SPLITS: return [lambda: e(txt)]
    return [(lambda p=p: e(p)) for p in parts]
def fill(k=1):
    if len(fq) > BOOST and k > 0: k += 1
    for _ in range(k):
        if fq: fq.popleft()()
def flush():
    while fq: fq.popleft()()

def w_units(k, i):
    r = V_WOFF + (k % 3)
    base = WB1 if i == 1 else WA
    def u0():
        if k == 13: e("s_mov_b32 m0, s%d" % (S_W2L1 if i == 1 else S_W2L))
        else: e("s_add_u32 m0, s%d, %d" % (S_WM0, base + k*4096))
    def u1():
        if " m0," in out[-1]: e("s_nop 0")
        e("buffer_load_dwordx4 v%d, s[%d:%d], 0 offen lds" % (r, S_Wd, S_Wd+3))
        ids[('w', i, k)] = vm.issue()
    def u2():
        c = k % 3
        if k + 3 <= 13: adv = 12288
        else: adv = 55296 - (k - c)*4096
        e("v_add_u32 v%d, 0x%x, v%d" % (r, adv, r))
    return [u0, u1, u2]
def x_units(u, t, dyn=False):
    def u0():
        if dyn: e("s_add_u32 m0, s%d, %d" % (S_XD, t*1024))
        else: e("s_add_u32 m0, s%d, %d" % (S_XM0, XB + 20480*u + t*1024))
    def u1():
        if " m0," in out[-1]: e("s_nop 0")
        e("buffer_load_dwordx4 v%d, s[%d:%d], 0 offen %slds" % (V_XOFF+t, S_X, S_X+3, XNT))
        ids[('x', u)] = vm.issue()
    def u2():
        if dyn: e("v_add_u32 v%d, s%d, v%d" % (V_XOFF+t, S_XINC, V_XOFF+t))
        else: e("v_add_u32 v%d, %d, v%d" % (V_XOFF+t, 2*ROWB, V_XOFF+t))
    return [u0, u1, u2]
def xd_units():
    return multi("s_and_b32 s%d, s%d, 15\n    s_mul_i32 s%d, s%d, 10240\n    s_add_u32 s%d, s%d, s%d\n    s_lshr_b32 s%d, s%d, 4" % (S_TMP2, S_LT, S_TMP2, S_TMP2, S_XD, S_TMP2, S_XH, S_LT, S_LT))

def xoff_calc(t):
    L = []
    if t > 0: L.append("v_add_u32 v3, 64, v3")
    L += ["v_mul_u32_u24 v4, 43691, v3",
          "v_lshrrev_b32 v4, 19, v4",
          "v_mul_u32_u24 v5, 12, v4",
          "v_sub_u32 v5, v3, v5",
          "v_lshrrev_b32 v6, 1, v4",
          "v_and_b32 v6, 2, v6",
          "v_xor_b32 v5, v5, v6",
          "v_mul_u32_u24 v7, 192, v4",
          "v_subrev_u32 v6, s%d, v4" % S_LO,
          "v_lshl_add_u32 v7, v5, 4, v7",
          "v_cmp_gt_u32 vcc, s%d, v6" % S_N,
          "v_add_u32 v7, s%d, v7" % S_XBASE,
          "v_cndmask_b32 v%d, v8, v7, vcc" % (V_XOFF+t)]
    return L
def woff_calc(c):
    L = []
    if c > 0: L.append("v_add_u32 v9, 0x100, v9")
    L += ["v_mul_u32_u24 v10, 43691, v9",
          "v_lshrrev_b32 v10, 19, v10",
          "v_mul_u32_u24 v11, 12, v10",
          "v_sub_u32 v11, v9, v11",
          "v_lshrrev_b32 v12, 2, v10",
          "v_and_b32 v12, 2, v12",
          "v_sub_u32 v11, v11, v12",
          "v_add_u32 v12, 12, v11",
          "v_cmp_gt_i32 vcc, 0, v11",
          "v_mul_u32_u24 v13, 192, v10",
          "v_cndmask_b32 v11, v11, v12, vcc",
          "v_lshl_add_u32 v%d, v11, 4, v13" % (V_WOFF + c)]
    return L
def must_setup():
    L = []
    L += ["v_lshrrev_b32 v3, 4, v2",
          "v_lshrrev_b32 v4, 2, v2",
          "v_and_b32 v4, 3, v4",
          "v_lshl_add_u32 v4, v3, 3, v4",
          "v_mul_u32_u24 v4, 192, v4",
          "v_and_b32 v5, 3, v2",
          "v_mul_u32_u24 v5, 24, v5",
          "s_mul_i32 s%d, s%d, 96" % (S_T2, S_HH),
          "v_add_u32 v5, s%d, v5" % S_T2,
          "v_and_b32 v6, 1, v3",
          "v_lshlrev_b32 v6, 5, v6",
          "v_add_u32 v5, v5, v6"]
    for tp in range(3):
        L += ["v_add_u32 v6, %d, v5" % (8*tp),
              "v_subrev_u32 v7, 192, v6",
              "v_cmp_le_u32 vcc, 192, v6",
              "v_cndmask_b32 v6, v6, v7, vcc",
              "v_add_u32 v%d, v4, v6" % (V_WTR + tp)]
    L += ["v_and_b32 v4, 15, v2",
          "s_mul_i32 s%d, s%d, %d" % (S_CUR, S_S, SLOT),
          "s_add_u32 s%d, s%d, %d" % (S_T3, S_CUR, XB)]
    for j in range(3):
        L += ["v_add_u32 v5, %d, v4" % (2*j),
              "v_lshrrev_b32 v6, 1, v5",
              "v_and_b32 v6, 2, v6",
              "v_xor_b32 v6, v6, v3",
              "v_mul_u32_u24 v5, 192, v5",
              "v_lshl_add_u32 v5, v6, 4, v5",
              "v_add_u32 v%d, s%d, v5" % (V_BA+j, S_T3)]
    L += ["s_mov_b32 s%d, 0x04286031" % S_RT, "s_mov_b32 s%d, 0x602860" % S_LT, "s_mov_b32 s%d, %d" % (S_XJ, 4*ROWB),
          "s_cmp_eq_u32 s%d, 0\n    s_cselect_b32 s%d, 0x31975420, s%d\n    s_cselect_b32 s%d, 0x549754, s%d\n    s_cselect_b32 s%d, %d, s%d" % (S_S, S_RT, S_RT, S_LT, S_LT, S_XJ, 14*ROWB, S_XJ),
          "s_mul_i32 s%d, s%d, 5120" % (S_XH, S_HH),
          "s_add_u32 s%d, s%d, %d" % (S_XH, S_XH, XB),
          "s_mov_b32 s%d, %d" % (S_XINC, 2*ROWB)]
    for tp in range(3): L.append("v_add_u32 v%d, %d, v%d" % (V_WTR1+tp, WB1, V_WTR+tp))
    return L
def later_setup():
    L = []
    L += ["s_mov_b32 s%d, s36" % S_O,
          "s_and_b32 s%d, s37, 0xffff" % (S_O+1),
          "s_mov_b32 s%d, %d" % (S_O+2, X_BYTES if LQ == 3 else 0),
          "s_mov_b32 s%d, 0x20000" % (S_O+3),
          "s_mov_b32 s%d, 20480" % S_TG,
          "s_mov_b32 s%d, %d" % (S_IT, LQ),
          "s_mul_i32 s%d, s%d, 9984" % (S_T3, S_S),
          "s_add_u32 s%d, s%d, s%d" % (S_T2, S_T2, S_T3),
          "v_mul_u32_u24 v5, %d, v4" % OPITCH,
          "v_mul_u32_u24 v6, 24, v3",
          "v_add3_u32 v%d, v5, v6, s%d" % (V_SW, S_T2),
          "s_mul_i32 s%d, s%d, 320" % (S_T2, S_HH),
          "v_add_u32 v5, s%d, v2" % S_T2]
    for i in range(5):
        if i: L.append("v_add_u32 v5, 64, v5")
        L += ["v_mul_u32_u24 v6, 43691, v5",
              "v_lshrrev_b32 v6, 19, v6",
              "v_mul_u32_u24 v7, 12, v6",
              "v_sub_u32 v7, v5, v7",
              "v_mul_u32_u24 v6, %d, v6" % OPITCH,
              "v_lshl_add_u32 v6, v7, 4, v6",
              "v_add_u32 v%d, s%d, v6" % (V_SR + i, S_T3)]
    L += ["s_lshl_b32 s%d, s%d, 1" % (S_T2, S_G),
          "s_add_u32 s%d, s%d, s%d" % (S_T2, S_T2, S_S),
          "s_mul_i32 s%d, s%d, 12" % (S_T2, S_T2),
          "s_sub_u32 s%d, s%d, %d" % (S_T2, S_T2, 0 if LQ == 3 else 2),
          "s_add_u32 s%d, s%d, s%d" % (S_T2, S_T2, S_PAR),
          "s_mul_i32 s%d, s%d, 384" % (S_T2, S_T2),
          "s_add_u32 s%d, s%d, s%d" % (S_T2, S_T2, S_COL0),
          "s_mul_i32 s%d, s%d, 192" % (S_T2, S_T2),
          "s_mul_i32 s%d, s%d, 5120" % (S_T3, S_HH),
          "s_add_u32 s%d, s%d, s%d" % (S_T2, S_T2, S_T3),
          "v_lshlrev_b32 v5, 4, v2",
          "v_add_u32 v%d, s%d, v5" % (V_OA, S_T2),
          "s_mul_i32 s%d, s%d, 0x40000000" % (S_T3, S_HH),
          "s_add_u32 s%d, s%d, 4096" % (S_T3, S_T3),
          "v_add_u32 v%d, s%d, v%d" % (V_OA+1, S_T3, V_OA)]
    return L

left_dma = []
left_setup = []
def prologue():
    e("s_cmp_ge_u32 s2, 256")
    e("s_cbranch_scc1 L_end")
    stamp()
    if SK:
        e("s_memrealtime s[64:65]")
        e("s_memtime s[66:67]")
    if STAMP:
        e("s_memrealtime s[44:45]")
        e("s_waitcnt lgkmcnt(0)")
        e("s_mov_b32 s90, s44")
    e("s_load_dwordx4 s[4:7], s[0:1], 0")
    e("s_load_dwordx2 s[36:37], s[0:1], 16")
    if CPF:
        e("s_getpc_b64 s[54:55]")
        out.append("L_pc:")
        e("v_lshlrev_b32 v10, 7, v0")
        e("v_min_u32 v10, (L_end - L_pc), v10")
        e("v_mov_b32 v11, s55")
        e("v_add_co_u32 v10, vcc, s54, v10")
        e("v_addc_co_u32 v11, vcc, 0, v11, vcc")
        e("global_load_dword v79, v[10:11], off")
        vm.issue()
    for s in [
              "v_lshrrev_b32 v1, 6, v0",
              "v_and_b32 v2, 63, v0",
              "s_and_b32 s%d, s2, 7" % S_CS,
              "v_readfirstlane_b32 s%d, v1" % S_WAVE,
              "s_lshr_b32 s%d, s2, 3" % S_T0,
              "s_and_b32 s%d, s%d, 1" % (S_PAR, S_T0),
              "s_lshr_b32 s%d, s%d, 1" % (S_G, S_T0),
              "s_mul_i32 s%d, s%d, 48" % (S_COL0, S_CS),
              "s_and_b32 s%d, s%d, 1" % (S_HH, S_WAVE),
              "s_lshr_b32 s%d, s%d, 1" % (S_S, S_WAVE),
              "s_mul_i32 s%d, s%d, 320" % (S_T1, S_HH),
              "v_add_u32 v3, s%d, v2" % S_T1,
              "v_mov_b32 v9, v0",
              "v_bfrev_b32 v8, 1",
              "s_mul_i32 s%d, s%d, 24" % (S_T0, S_G),
              "s_add_u32 s%d, s%d, s%d" % (S_T0, S_T0, S_PAR),
              "s_mul_i32 s%d, s%d, 12" % (S_T1, S_S),
              "s_add_u32 s%d, s%d, s%d" % (S_T0, S_T0, S_T1),
              "s_sub_u32 s%d, s%d, 2" % (S_T0, S_T0),
              "s_mul_i32 s%d, s%d, 384" % (S_T0, S_T0),
              "s_add_u32 s%d, s%d, s%d" % (S_T0, S_T0, S_COL0),
              "s_sub_u32 s%d, s%d, 2" % (S_T0, S_T0),
              "s_mul_i32 s%d, s%d, 192" % (S_XBASE, S_T0),
              "s_cmp_eq_u32 s%d, 0" % S_CS,
              "s_cselect_b32 s%d, 2, 0" % S_LO,
              "s_cmp_eq_u32 s%d, 7" % S_CS,
              "s_cselect_b32 s%d, 50, 52" % S_N,
              "s_sub_u32 s%d, s%d, s%d" % (S_N, S_N, S_LO),
              "s_mul_i32 s%d, s%d, 5120" % (S_XM0, S_WAVE),
              "s_lshl_b32 s%d, s%d, 10" % (S_WM0, S_WAVE)]: e(s)
    for s in woff_calc(0): e(s)
    for s in xoff_calc(0): e(s)
    for s in ["s_mov_b32 s%d, %d" % (S_X+2, X_BYTES),
              "s_mov_b32 s%d, 0x20000" % (S_X+3),
              "s_mov_b32 s%d, %d" % (S_Wd+2, W_BYTES),
              "s_mov_b32 s%d, 0x20000" % (S_Wd+3),
              "s_waitcnt lgkmcnt(0)",
              "s_mov_b32 s%d, s4" % S_X,
              "s_and_b32 s%d, s5, 0xffff" % (S_X+1),
              "s_mov_b32 s%d, s6" % S_Wd,
              "s_and_b32 s%d, s7, 0xffff" % (S_Wd+1)]: e(s)
    stamp()
    def wpf():
        e("s_lshr_b32 s%d, s2, 3" % S_TMP)
        e("s_and_b32 s%d, s%d, 7" % (S_TMP, S_TMP))
        e("s_mul_i32 s%d, s%d, 20736" % (S_TMP, S_TMP))
        e("v_lshlrev_b32 v15, 7, v0")
        e("v_add_u32 v15, s%d, v15" % S_TMP)
        e("buffer_load_dword v15, v15, s[%d:%d], 0 offen" % (S_Wd, S_Wd+3))
        vm.issue()
    S = []; need = {}
    if ORD == 0:
        seq = [('x',0,0), ('w',0,0), ('x',0,1), ('w',0,1), ('x',0,2), ('w',0,2), ('x',0,3), ('w',0,3), ('x',0,4), ('w',0,4)]
        seq += [('w',0,k) for k in range(5, 14)]
    elif ORD == 1:
        seq = [('w',0,k) for k in range(14)] + [('x',0,t) for t in range(5)]
    elif ORD == 2:
        seq = [('w',0,k) for k in range(5)] + [('x',0,t) for t in range(5)] + [('w',0,k) for k in range(5, 14)]
    elif ORD == 3:
        seq = [('x',0,t) for t in range(5)] + [('w',0,k) for k in range(14)]
    elif ORD == 4:
        seq = [('w',0,k) for k in range(9)] + [('x',0,t) for t in range(5)] + [('w',0,k) for k in range(9, 14)]
    seq += [('x',1,t) for t in range(5)] + [('w',1,k) for k in range(14)]
    w13 = ["s_add_u32 s%d, s%d, %d" % (S_W2L, S_WM0, WA + 13*4096),
          "s_add_u32 s%d, s%d, %d" % (S_W2L1, S_WM0, WB1 + 13*4096),
          "s_cmp_ge_u32 s%d, 2\n    s_cselect_b32 s%d, %d, s%d\n    s_cselect_b32 s%d, %d, s%d" % (S_WAVE, S_W2L, SPARE, S_W2L, S_W2L1, SPARE, S_W2L1)]
    for d in seq:
        if d[1] != 0: continue
        if d[0] == 'x' and d[2] > 0: S += xoff_calc(d[2]); need[d] = len(S)
        if d[0] == 'w' and d[2] in (1, 2): S += woff_calc(d[2]); need[d] = len(S)
        if d == ('w',0,13): S += w13; need[d] = len(S)
    S += must_setup(); nmust = len(S)
    S += later_setup()
    pos = 0
    for di, d in enumerate(seq):
        us = x_units(d[1], d[2]) if d[0] == 'x' else w_units(d[2], d[1])
        if di >= PRO:
            left_dma.append((d, us)); continue
        tgt = max(need.get(d, 0), min(len(S), pos + (QUO if di >= 2 else 0)))
        if d in (('w',0,13), ('xa',1,0)):
            while pos < need[d]: e(S[pos]); pos += 1
        us[0]()
        while pos < tgt: e(S[pos]); pos += 1
        us[1](); us[2]()
        if WPF and di == WPF - 1: wpf()
    while pos < nmust: e(S[pos]); pos += 1
    for s in S[pos:]: left_setup.append(lambda s=s: e(s))
    stamp()

wid = {}
def tr_units(f):
    ks_l = (f // 3) % 9
    tp = f % 3
    us = []
    for hf in range(2):
        def u(hf=hf):
            off = ks_l*6144 + hf*768
            e("ds_read_b64_tr_b16 %s, v%d offset:%d" % (wfrag_half(f, hf), (V_WTR1 if f // 27 == 1 else V_WTR) + tp, off))
            i = lg.issue()
            if hf == 1: wid[f] = i
        us.append(u)
    return us
def triple(ks):
    us = []
    for tp in range(3): us += tr_units(ks*3 + tp)
    return us

swid = {}
def epi_units(t, m):
    acc = V_ACC + 72 + 12*m
    pk = V_PK
    us = []
    for d in range(3):
        us.append(lambda d=d: e("v_cvt_pk_bf16_f32 v%d, v%d, v%d" % (pk+2*d, acc+4*d, acc+4*d+1)))
        us.append(lambda d=d: e("v_cvt_pk_bf16_f32 v%d, v%d, v%d" % (pk+2*d+1, acc+4*d+2, acc+4*d+3)))
        def w(d=d):
            e("ds_write_b64 v%d, %s offset:%d" % (V_SW, vr(pk+2*d, 2), m*16*OPITCH + 8*d))
            swid[t] = lg.issue()
        us.append(w)
    return us

def readback_units(t):
    us = []
    rid = {}
    for i in range(5):
        def r(i=i):
            e("ds_read_b128 %s, v%d" % (vr(4 + 4*(i % 3), 4), V_SR + i))
            rid[i] = lg.issue()
        def s(i=i):
            lg.wait(rid[i])
            if i < 4: e("buffer_store_dwordx4 %s, v%d, s[%d:%d], 0 offen offset:%d %s" % (vr(4 + 4*(i % 3), 4), V_OA, S_O, S_O+3, 1024*i, SNT))
            else: e("buffer_store_dwordx4 %s, v%d, s[%d:%d], 0 offen %s" % (vr(4 + 4*(i % 3), 4), V_OA+1, S_O, S_O+3, SNT))
            vm.issue()
        us.append((r, s))
    adv = [lambda: e("v_add_u32 v%d, %d, v%d" % (V_OA, 2*ROWB, V_OA)), lambda: e("v_add_u32 v%d, %d, v%d" % (V_OA+1, 2*ROWB, V_OA+1)), lambda: e("s_mov_b32 s%d, %d" % (S_O+2, X_BYTES))]
    tog = [lambda i=i: e("v_add_u32 v%d, s%d, v%d" % (V_SR+i, S_TG, V_SR+i)) for i in range(5)]
    tog += [lambda: e("v_add_u32 v%d, s%d, v%d" % (V_SW, S_TG, V_SW)), lambda: e("s_sub_u32 s%d, 0, s%d" % (S_TG, S_TG))]
    return [(0, [us[0][0], us[1][0], us[2][0]]), (SSP, [us[0][1], us[3][0]]), (2*SSP, [us[1][1], us[4][0]]), (3*SSP, [us[2][1]] + tog), (4*SSP, [us[3][1]]), (5*SSP, [us[4][1]] + adv)]

def main_loop():
    items = []
    for q in range(9):
        if q < 2:
            for kq in range(9):
                for m in range(3): items.append((q, m, kq))
        elif q == 2 and LQ == 3:
            for kq in range(6):
                for m in range(3): items.append((q, m, kq))
            for m in range(3):
                for kq in range(6, 9): items.append((q, m, kq))
        else:
            for m in range(3):
                for kq in range(9): items.append((q, m, kq))
    N = 8*27
    lastj = {}
    for n, (q, m, kq) in enumerate(items): lastj[(q, kq // 3)] = n
    lastj = {v: k for k, v in lastj.items()}
    ev = {}
    def at(n, fn): ev.setdefault(max(n, 0), []).append(fn)
    def atq(n, units): at(n, lambda: fq.extend(units))
    F = lambda q: 27*q
    E = lambda q: F(q+1) - D
    ldid = {}
    def load(n):
        if n >= N: return
        q, m, kq = items[n]
        j, kk = kq // 3, kq % 3
        e("ds_read_b128 %s, v%d offset:%d" % (vr(V_B + 4*(n % NB), 4), V_BA + j, m*3072 + kk*64))
        ldid[n] = lg.issue()
        if n in lastj and q < 7: e("v_add_u32 v%d, s%d, v%d" % (V_BA+j, S_DL, V_BA+j))
    def dl_calc():
        e("s_lshr_b32 s%d, s%d, 4" % (S_RT, S_RT))
        e("s_and_b32 s%d, s%d, 15" % (S_TMP, S_RT))
        e("s_mul_i32 s%d, s%d, 10240" % (S_TMP, S_TMP))
        e("s_sub_u32 s%d, s%d, s%d" % (S_DL, S_TMP, S_CUR))
        e("s_mov_b32 s%d, s%d" % (S_CUR, S_TMP))
    def barrier(vmids=(), lgids=()):
        def fn():
            flush()
            for x in lgids: lg.wait(x())
            for x in vmids: vm.wait(x())
            e("s_barrier")
            stamp()
        return fn
    W = lambda i, k: (lambda: ids[('w', i, k)])
    X = lambda u: (lambda: ids[('x', u)])
    pos = 0
    for d, us in left_dma:
        atq(pos, us); pos += SPL
    atq(max(pos, 6), left_setup)
    for q in range(7): at(F(q) + 1, lambda: (flush(), dl_calc()))
    for i in range(3 if LQ == 3 else 2):
        for kq in range(9):
            if i == 0 and kq < 2: continue
            p = F(i) + 3*(kq-1) - 1
            if i == 2 and kq >= 6: p = F(2) + 12 + 2*(kq-6)
            if kq == 3: at(p, barrier(vmids=[W(i,8)]))
            if kq == 6: at(p, barrier(vmids=[W(i,13)], lgids=[lambda: wid[23*3+2]] if i == 2 else []))
            if i == 1 and kq == 0:
                assert p == E(0)
                at(p, barrier(vmids=[X(1), W(1, 4)], lgids=[lambda: wid[26], lambda: ldid[26]]))
                q = p + 1
                atq(q, xd_units())
                for tt in range(5): atq(q, x_units(2, tt, dyn=True)); q += SPW
                for k in range(14): atq(q, w_units(k, 2)); q += SPW
            if i == 2 and kq == 0:
                at(p, barrier(vmids=[X(2), W(2, 4)], lgids=[lambda: wid[53]]))
            atq(p, triple(9*i + kq))
    if LQ == 2:
        at(F(1) + W2B, barrier(vmids=[W(2,8)]))
        for kq in range(6): atq(F(1) + W2B + (kq*(E(1) - F(1) - W2B))//6, triple(18 + kq))
        at(E(1), barrier(vmids=[X(2), W(2, 13)], lgids=[lambda: wid[53], lambda: wid[23*3+2]]))
        for kq in range(6, 9): atq(E(1), triple(18 + kq))
    atq(E(1) + 1, xd_units())
    for tt in range(5): atq(E(1) + 1 + (tt if LQ == 3 else tt // 2), x_units(3, tt, dyn=True))
    for q in range(2, 8):
        b = F(q)
        real_prev = q >= 3 or LQ == 2
        if real_prev:
            atq(b + 1, epi_units(q-3, 2))
        if q <= 5:
            if q >= LQ:
                atq(b + 2, multi("s_cmp_eq_u32 s%d, 3\n    s_cselect_b32 s%d, s%d, %d\n    s_cmp_ge_u32 s%d, 5\n    s_cselect_b32 s%d, 0, %d" % (S_IT, S_XINC, S_XJ, 2*ROWB, S_IT, S_X+2, X_BYTES)))
            atq(b + 2, xd_units())
        if real_prev:
            at(b + SB, barrier(lgids=[lambda q=q: swid[q-3]]))
            for o, u in readback_units(q-3): atq(b + SB + (o if q < 6 else 2*o)//3, u)
        if q <= 5:
            p = b + SB + 1
            if q == 2 and LQ == 3: p = b + 6
            for tt in range(5):
                atq(p, x_units(q+2, tt, dyn=True)); p += 1
        if q == 2 and LQ == 3:
            atq(b + 22, epi_units(0, 0))
            atq(b + 25, epi_units(0, 1))
        else:
            atq(b + 10 + (q == 7), epi_units(q-2, 0))
            atq(b + 19 + (q == 7), epi_units(q-2, 1))
        if q <= 5: at(E(q), barrier(vmids=[X(q+1)]))
    vm.wait(max(ids[('w',0,4)], ids[('x',0)]))
    e("s_barrier")
    stamp()
    for u in triple(0): u()
    for n in range(D): load(n)
    for u in triple(1): u()
    marks = []
    def close_loop():
        flush()
        marks.append(len(out))
        inloop[0] = False
        bodies = [out[marks[k]:marks[k+1]] for k in range(6 - LQ)]
        assert all(len(bd) == len(bodies[0]) for bd in bodies), [len(bd) for bd in bodies]
        merged = []
        rx = re.compile(r"\s*s_waitcnt (\w+)\((\d+)\)")
        for lines in zip(*bodies):
            if all(l == lines[0] for l in lines):
                if ";opt" in lines[0]: continue
                merged.append(lines[0]); continue
            ms = [rx.match(l) for l in lines]
            assert all(ms) and len(set(mm.group(1) for mm in ms)) == 1, lines
            merged.append("    s_waitcnt %s(%d)" % (ms[0].group(1), min(int(mm.group(2)) for mm in ms)))
        del out[marks[0]:]
        out.append("L_loop:")
        out.extend(merged)
        e("s_add_u32 s%d, s%d, 1" % (S_IT, S_IT))
        e("s_cmp_lt_u32 s%d, 6" % S_IT)
        e("s_cbranch_scc1 L_loop")
        stamp()
    for n in range(N):
        q, m, kq = items[n]
        if n % 27 == 0 and LQ <= q <= 5:
            flush()
            if q == LQ: stamp()
            inloop[0] = True
            marks.append(len(out))
        if n == F(6): close_loop()
        for fn in ev.get(n, []): fn()
        iset = [i for i in (2, 1, 0) if 0 <= q - i <= 5]
        needw = [(9*i + kq)*3 + tp for i in iset for tp in range(3)]
        if LDP == 0: load(n + D)
        while any(f not in wid for f in needw): fq.popleft()()
        lg.wait(max([ldid[n]] + [wid[f] for f in needw]))
        b = vr(V_B + 4*(n % NB), 4)
        cnt = 0
        for i in iset:
            for tp in range(3):
                a = vr(V_ACC + 36*i + 12*m + 4*tp, 4)
                c = a if kq > 0 else "0" if i == 0 else vr(V_ACC + 36*(i-1) + 12*m + 4*tp, 4)
                e("v_mfma_f32_16x16x32_bf16 %s, %s, %s, %s" % (a, wfrag((9*i+kq)*3+tp), b, c))
                cnt += 1
                if LDP == 1 and cnt == 1: load(n + D)
                last = cnt == 3*len(iset)
                fill(0 if (last and len(iset) > 1) else 1)
    flush()
    stamp()
    e("s_nop 7")
    e("s_nop 7")
    for u in epi_units(5, 2): u()
    barrier(lgids=[lambda: swid[5]])()
    for o, us in readback_units(5):
        for u in us: u()
    stamp()
    e("s_waitcnt vmcnt(0)")
    stamp()
    rstamp()
    if STAMP:
        e("s_mov_b32 s%d, s90" % (64 + nstamp[0])); nstamp[0] += 1
    dump_stamps()
    if SK:
        e("s_memrealtime s[68:69]")
        e("s_memtime s[70:71]")
        e("s_load_dwordx2 s[46:47], s[0:1], 32")
        e("s_waitcnt lgkmcnt(0)")
        e("s_mov_b32 s48, s46")
        e("s_and_b32 s49, s47, 0xffff")
        e("s_mov_b32 s50, 65536")
        e("s_mov_b32 s51, 0x20000")
        e("s_lshl_b32 s53, s2, 2")
        e("s_add_u32 s53, s53, s%d" % S_WAVE)
        e("s_lshl_b32 s53, s53, 4")
        e("v_mov_b32 v1, s53")
        e("v_mov_b32 v4, s64")
        e("v_mov_b32 v5, s68")
        e("v_mov_b32 v6, s66")
        e("v_mov_b32 v7, s70")
        e("buffer_store_dwordx4 v[4:7], v1, s[48:51], 0 offen")
        e("s_waitcnt vmcnt(0)")

header()
prologue()
main_loop()
footer()
open(sys.argv[1], "w").write("\n".join(out) + "\n")
print("lines", len(out), "stamps", nstamp[0])
```

```python
import sys, os, re
from collections import deque

KNAME = "standalone__dilated_atrous__vision_kernel"
X_BYTES = 384*384*96*2
W_BYTES = 9*96*96*2
ROWB = 384*192
SLOT = 10240
WA = 0
XB = 55296
WB1 = 106496
SPARE = 161792
OPITCH = 208
NB = 5
def P(n, d): return int(os.environ.get(n, str(d)))
D = P("D", 4)
PRO = P("PRO", 24)
QUO = P("QUO", 8)
SPL = P("SPL", 1)
SPW = P("SPW", 1)
SSP = P("SSP", 3)
WSPLIT = P("WSPLIT", 1)
CPF = P("CPF", 1)
WPF = P("WPF", 0)
FC = [int(c) for c in os.environ.get("FC", "111")]
FC0 = [int(c) for c in os.environ.get("FC0", "111")]
LQ = P("LQ", 2)
DIRECT = P("DIRECT", 0)
NOLD = P("NOLD", 0)
NOST = P("NOST", 0)
TT = P("TT", 0)
TB = P("TB", 22)
XIL = P("XIL", 3)
XW2 = P("XW2", 0)
W2B = P("W2B", 18)
SB = P("SB", 3)
RSP = P("RSP", 3)
SK = P("SK", 0)
ORD = P("ORD", 0)
XSP = P("XSP", 0)
LDP = P("LDP", 0)
LDP0 = P("LDP0", 0)
SPLITS = P("SPLITS", 0)
BOOST = P("BOOST", 7)
NOBA = P("NOBA", 0); NOXD = P("NOXD", 0); NOEPI = P("NOEPI", 0); NORB = P("NORB", 0); NOBAR = P("NOBAR", 0)
XNT = os.environ.get("XNT", "nt ")
SNT = os.environ.get("SNT", "sc1")

STAMP = len(sys.argv) > 2 and sys.argv[2] == "stamp"
out = []
def e(s): out.append("    " + s)

V_XOFF = 16; V_WOFF = 21; V_WTR = 24; V_BA = 64; V_SW = 30; V_SR = 31; V_OA = 36; V_PK = 38; V_B = 44; V_ACC = 80
V_W = 188; V_WTR1 = 13

def wfrag(f):
    if f < 64: return "a[%d:%d]" % (4*f, 4*f+3)
    b = V_W + 4*(f-64)
    return "v[%d:%d]" % (b, b+3)
def wfrag_half(f, hf):
    if f < 64: return "a[%d:%d]" % (4*f+2*hf, 4*f+2*hf+1)
    b = V_W + 4*(f-64) + 2*hf
    return "v[%d:%d]" % (b, b+1)
def vr(b, n): return "v[%d:%d]" % (b, b+n-1)

S_X = 8; S_Wd = 12; S_O = 16
S_WAVE = 20; S_HH = 21; S_S = 22; S_CS = 23; S_PAR = 24; S_G = 25
S_T0 = 26; S_T1 = 27; S_T2 = 28; S_T3 = 29
S_XM0 = 32; S_WM0 = 33; S_COL0 = 34; S_W2L = 35; S_LO = 38; S_N = 39; S_XBASE = 42; S_W2L1 = 43
S_RT = 56; S_LT = 57; S_CUR = 58
S_TG = 59; S_XD = 60; S_IT = 61; S_TMP = 62; S_DL = 63; S_XH = 30; S_XINC = 31; S_XJ = 40; S_TMP2 = 41

nstamp = [0]
inloop = [False]
def stamp():
    if not STAMP or inloop[0]: return
    k = nstamp[0]; nstamp[0] += 1
    e("s_memtime s[44:45]")
    e("s_waitcnt lgkmcnt(0)")
    lg.clear()
    e("s_mov_b32 s%d, s44" % (64 + k))
def rstamp():
    if not STAMP: return
    k = nstamp[0]; nstamp[0] += 1
    e("s_memrealtime s[44:45]")
    e("s_waitcnt lgkmcnt(0)")
    lg.clear()
    e("s_mov_b32 s%d, s44" % (64 + k))
def dump_stamps():
    if not STAMP: return
    e("s_load_dwordx2 s[46:47], s[0:1], 24")
    e("s_waitcnt lgkmcnt(0)")
    e("s_mov_b32 s48, s46")
    e("s_and_b32 s49, s47, 0xffff")
    e("s_mov_b32 s50, 256")
    e("s_mov_b32 s51, 0x20000")
    e("s_mov_b32 s52, 1024")
    e("s_lshl_b32 s53, s2, 2")
    e("s_add_u32 s53, s53, s%d" % S_WAVE)
    e("s_cmp_eq_u32 s53, 0")
    e("s_cselect_b32 s52, 0, s52")
    e("s_cmp_eq_u32 s53, %d" % (133*4+3))
    e("s_cselect_b32 s52, 128, s52")
    e("v_mov_b32 v1, s52")
    n = nstamp[0]
    e("s_sub_u32 s92, s%d, s%d" % (64+n-2, 64+n-1))
    e("v_mov_b32 v2, s92")
    e("buffer_store_dword v2, v1, s[48:51], 0 offen offset:0")
    for k in range(1, n-2):
        e("s_sub_u32 s92, s%d, s64" % (64+k))
        e("v_mov_b32 v2, s92")
        e("buffer_store_dword v2, v1, s[48:51], 0 offen offset:%d" % (4*k))
    e("s_waitcnt vmcnt(0)")

class Tracker:
    def __init__(self, name, maxv):
        self.name = name; self.maxv = maxv; self.done = 0; self.n = 0
    def issue(self):
        self.n += 1
        return self.n
    def wait(self, opid):
        if opid is None or opid <= self.done:
            if inloop[0]: e("s_waitcnt %s(%d) ;opt" % (self.name, self.maxv))
            return
        cnt = min(self.n - opid, self.maxv)
        e("s_waitcnt %s(%d)" % (self.name, cnt))
        self.done = self.n - cnt
    def clear(self):
        self.done = self.n
lg = Tracker("lgkmcnt", 15)
vm = Tracker("vmcnt", 63)

def header():
    out.append("""; Kernarg layout for this problem (40 bytes, ptrs only, base s[0:1]):
;   offset   0: d_in[0] x  shape=(1, 384, 384, 96) dtype=bfloat16
;   offset   8: d_in[1] w  shape=(3, 3, 96, 96) dtype=bfloat16
;   offset  16: d_out     shape=(1, 384, 384, 96) dtype=bfloat16 (2 bytes/elem)
;   offset  24: d_debug   256 bytes
;   offset  32: d_ws      268435456 bytes workspace
; @launch grid=(256,1,1) block=(256,1,1) lds=163840
.amdgcn_target "amdgcn-amd-amdhsa--gfx950"
.text
.globl %s
.p2align 8
.type %s,@function
%s:""" % (KNAME, KNAME, KNAME))

def footer():
    out.append("""L_end:
    s_endpgm
.section .rodata,"a"
.p2align 6
.amdhsa_kernel %s
  .amdhsa_next_free_vgpr 512
  .amdhsa_next_free_sgpr 100
  .amdhsa_accum_offset 256
  .amdhsa_group_segment_fixed_size 0
  .amdhsa_kernarg_size 40
  .amdhsa_user_sgpr_count 2
  .amdhsa_user_sgpr_kernarg_segment_ptr 1
  .amdhsa_system_sgpr_workgroup_id_x 1
.end_amdhsa_kernel""" % KNAME)

ids = {}
fq = deque()
def multi(txt):
    parts = [p.strip() for p in txt.split("\n")]
    if not SPLITS: return [lambda: e(txt)]
    return [(lambda p=p: e(p)) for p in parts]
def fill(k=1):
    if len(fq) > BOOST and k > 0: k += 1
    for _ in range(k):
        if fq: fq.popleft()()
def flush():
    while fq: fq.popleft()()

def w_units(k, i):
    r = V_WOFF + (k % 3)
    base = WB1 if i == 1 else WA
    def u0():
        if k == 13: e("s_mov_b32 m0, s%d" % (S_W2L1 if i == 1 else S_W2L))
        else: e("s_add_u32 m0, s%d, %d" % (S_WM0, base + k*4096))
    def u1():
        if " m0," in out[-1]: e("s_nop 0")
        e("buffer_load_dwordx4 v%d, s[%d:%d], 0 offen lds" % (r, S_Wd, S_Wd+3))
        ids[('w', i, k)] = vm.issue()
    def u2():
        c = k % 3
        if k + 3 <= 13: adv = 12288
        else: adv = 55296 - (k - c)*4096
        e("v_add_u32 v%d, 0x%x, v%d" % (r, adv, r))
    return [u0, u1, u2]
def x_units(u, t, dyn=False):
    def u0():
        if dyn: e("s_add_u32 m0, s%d, %d" % (S_XD, t*1024))
        else: e("s_add_u32 m0, s%d, %d" % (S_XM0, XB + 20480*u + t*1024))
    def u1():
        if " m0," in out[-1]: e("s_nop 0")
        e("buffer_load_dwordx4 v%d, s[%d:%d], 0 offen %slds" % (V_XOFF+t, S_X, S_X+3, XNT))
        ids[('x', u)] = vm.issue()
    def u2():
        if dyn: e("v_add_u32 v%d, s%d, v%d" % (V_XOFF+t, S_XINC, V_XOFF+t))
        else: e("v_add_u32 v%d, %d, v%d" % (V_XOFF+t, 2*ROWB, V_XOFF+t))
    return [u0, u1, u2]
def xd_units():
    return multi("s_and_b32 s%d, s%d, 15\n    s_mul_i32 s%d, s%d, 10240\n    s_add_u32 s%d, s%d, s%d\n    s_lshr_b32 s%d, s%d, 4" % (S_TMP2, S_LT, S_TMP2, S_TMP2, S_XD, S_TMP2, S_XH, S_LT, S_LT))

def xoff_calc(t):
    L = []
    if t > 0: L.append("v_add_u32 v3, 64, v3")
    L += ["v_mul_u32_u24 v4, 43691, v3",
          "v_lshrrev_b32 v4, 19, v4",
          "v_mul_u32_u24 v5, 12, v4",
          "v_sub_u32 v5, v3, v5",
          "v_lshrrev_b32 v6, 1, v4",
          "v_and_b32 v6, 2, v6",
          "v_xor_b32 v5, v5, v6",
          "v_mul_u32_u24 v7, 192, v4",
          "v_subrev_u32 v6, s%d, v4" % S_LO,
          "v_lshl_add_u32 v7, v5, 4, v7",
          "v_cmp_gt_u32 vcc, s%d, v6" % S_N,
          "v_add_u32 v7, s%d, v7" % S_XBASE,
          "v_cndmask_b32 v%d, v8, v7, vcc" % (V_XOFF+t)]
    return L
def woff_calc(c):
    L = []
    if c > 0: L.append("v_add_u32 v9, 0x100, v9")
    L += ["v_mul_u32_u24 v10, 43691, v9",
          "v_lshrrev_b32 v10, 19, v10",
          "v_mul_u32_u24 v11, 12, v10",
          "v_sub_u32 v11, v9, v11",
          "v_lshrrev_b32 v12, 2, v10",
          "v_and_b32 v12, 2, v12",
          "v_sub_u32 v11, v11, v12",
          "v_add_u32 v12, 12, v11",
          "v_cmp_gt_i32 vcc, 0, v11",
          "v_mul_u32_u24 v13, 192, v10",
          "v_cndmask_b32 v11, v11, v12, vcc",
          "v_lshl_add_u32 v%d, v11, 4, v13" % (V_WOFF + c)]
    return L
def must_setup():
    L = []
    L += ["v_lshrrev_b32 v3, 4, v2",
          "v_lshrrev_b32 v4, 2, v2",
          "v_and_b32 v4, 3, v4",
          "v_lshl_add_u32 v4, v3, 3, v4",
          "v_mul_u32_u24 v4, 192, v4",
          "v_and_b32 v5, 3, v2",
          "v_mul_u32_u24 v5, 24, v5",
          "s_mul_i32 s%d, s%d, 96" % (S_T2, S_HH),
          "v_add_u32 v5, s%d, v5" % S_T2,
          "v_and_b32 v6, 1, v3",
          "v_lshlrev_b32 v6, 5, v6",
          "v_add_u32 v5, v5, v6"]
    for tp in range(3):
        L += ["v_add_u32 v6, %d, v5" % (8*tp),
              "v_subrev_u32 v7, 192, v6",
              "v_cmp_le_u32 vcc, 192, v6",
              "v_cndmask_b32 v6, v6, v7, vcc",
              "v_add_u32 v%d, v4, v6" % (V_WTR + tp)]
    L += ["v_and_b32 v4, 15, v2",
          "s_mul_i32 s%d, s%d, %d" % (S_CUR, S_S, SLOT),
          "s_add_u32 s%d, s%d, %d" % (S_T3, S_CUR, XB)]
    L += ["v_lshrrev_b32 v5, 1, v4",
          "v_and_b32 v6, 1, v4",
          "v_mul_u32_u24 v5, 6, v5",
          "v_add_u32 v28, v5, v6"]
    for j in range(5):
        L += ["v_add_u32 v5, %d, v28" % (2*j),
              "v_lshrrev_b32 v6, 1, v5",
              "v_and_b32 v6, 2, v6",
              "v_xor_b32 v6, v6, v3",
              "v_mul_u32_u24 v5, 192, v5",
              "v_lshl_add_u32 v5, v6, 4, v5",
              "v_add_u32 v%d, s%d, v5" % (V_BA+j, S_T3)]
    L += ["s_mov_b32 s%d, 0x04286031" % S_RT, "s_mov_b32 s%d, 0x602860" % S_LT, "s_mov_b32 s%d, %d" % (S_XJ, 4*ROWB),
          "s_cmp_eq_u32 s%d, 0\n    s_cselect_b32 s%d, 0x31975420, s%d\n    s_cselect_b32 s%d, 0x549754, s%d\n    s_cselect_b32 s%d, %d, s%d" % (S_S, S_RT, S_RT, S_LT, S_LT, S_XJ, 14*ROWB, S_XJ),
          "s_mul_i32 s%d, s%d, 5120" % (S_XH, S_HH),
          "s_add_u32 s%d, s%d, %d" % (S_XH, S_XH, XB),
          "s_mov_b32 s%d, %d" % (S_XINC, 2*ROWB)]
    for tp in range(3): L.append("v_add_u32 v%d, %d, v%d" % (V_WTR1+tp, WB1, V_WTR+tp))
    return L
def later_setup():
    L = []
    L += ["s_mov_b32 s%d, s36" % S_O,
          "s_and_b32 s%d, s37, 0xffff" % (S_O+1),
          "s_mov_b32 s%d, %d" % (S_O+2, X_BYTES if LQ == 3 else 0),
          "s_mov_b32 s%d, 0x20000" % (S_O+3),
          "s_mov_b32 s%d, 20480" % S_TG,
          "s_mov_b32 s%d, %d" % (S_IT, LQ),
          "s_mul_i32 s%d, s%d, 9984" % (S_T3, S_S),
          "s_add_u32 s%d, s%d, s%d" % (S_T2, S_T2, S_T3),
          "v_mul_u32_u24 v5, %d, v28" % OPITCH,
          "v_mul_u32_u24 v6, 24, v3",
          "v_add3_u32 v%d, v5, v6, s%d" % (V_SW, S_T2),
          "s_mul_i32 s%d, s%d, 320" % (S_T2, S_HH),
          "v_add_u32 v5, s%d, v2" % S_T2]
    for i in range(5):
        if i: L.append("v_add_u32 v5, 64, v5")
        L += ["v_mul_u32_u24 v6, 43691, v5",
              "v_lshrrev_b32 v6, 19, v6",
              "v_mul_u32_u24 v7, 12, v6",
              "v_sub_u32 v7, v5, v7",
              "v_mul_u32_u24 v6, %d, v6" % OPITCH,
              "v_lshl_add_u32 v6, v7, 4, v6",
              "v_add_u32 v%d, s%d, v6" % (V_SR + i, S_T3)]
    L += ["s_lshl_b32 s%d, s%d, 1" % (S_T2, S_G),
          "s_add_u32 s%d, s%d, s%d" % (S_T2, S_T2, S_S),
          "s_mul_i32 s%d, s%d, 12" % (S_T2, S_T2),
          "s_sub_u32 s%d, s%d, %d" % (S_T2, S_T2, 0 if LQ == 3 else 2),
          "s_add_u32 s%d, s%d, s%d" % (S_T2, S_T2, S_PAR),
          "s_mul_i32 s%d, s%d, 384" % (S_T2, S_T2),
          "s_add_u32 s%d, s%d, s%d" % (S_T2, S_T2, S_COL0),
          "s_mul_i32 s%d, s%d, 192" % (S_T2, S_T2),
          "s_mul_i32 s%d, s%d, 5120" % (S_T3, S_HH),
          "s_add_u32 s%d, s%d, s%d" % (S_T2, S_T2, S_T3),
          "v_lshlrev_b32 v5, 4, v2",
          "v_add_u32 v%d, s%d, v5" % (V_OA, S_T2),
          "s_mul_i32 s%d, s%d, 0x40000000" % (S_T3, S_HH),
          "s_add_u32 s%d, s%d, 4096" % (S_T3, S_T3),
          "v_add_u32 v%d, s%d, v%d" % (V_OA+1, S_T3, V_OA)]
    if DIRECT:
        L += ["v_mul_u32_u24 v5, 192, v4", "v_mul_u32_u24 v6, 24, v3",
              "s_mul_i32 s%d, s%d, %d" % (S_T3, S_HH, 96 - 5120),
              "s_add_u32 s%d, s%d, s%d" % (S_T2, S_T2, S_T3),
              "v_add3_u32 v%d, v5, v6, s%d" % (V_SR, S_T2),
              "v_add_u32 v%d, 6144, v%d" % (V_SR+1, V_SR)]
    return L

left_dma = []
left_setup = []
def prologue():
    e("s_cmp_ge_u32 s2, 256")
    e("s_cbranch_scc1 L_end")
    stamp()
    if SK:
        e("s_memrealtime s[64:65]")
        e("s_memtime s[66:67]")
    if STAMP:
        e("s_memrealtime s[44:45]")
        e("s_waitcnt lgkmcnt(0)")
        e("s_mov_b32 s90, s44")
    e("s_load_dwordx4 s[4:7], s[0:1], 0")
    e("s_load_dwordx2 s[36:37], s[0:1], 16")
    if CPF:
        e("s_getpc_b64 s[54:55]")
        out.append("L_pc:")
        e("v_lshlrev_b32 v10, 7, v0")
        e("v_min_u32 v10, (L_end - L_pc), v10")
        e("v_mov_b32 v11, s55")
        e("v_add_co_u32 v10, vcc, s54, v10")
        e("v_addc_co_u32 v11, vcc, 0, v11, vcc")
        e("global_load_dword v63, v[10:11], off")
        vm.issue()
    for s in [
              "v_lshrrev_b32 v1, 6, v0",
              "v_and_b32 v2, 63, v0",
              "s_and_b32 s%d, s2, 7" % S_CS,
              "v_readfirstlane_b32 s%d, v1" % S_WAVE,
              "s_lshr_b32 s%d, s2, 3" % S_T0,
              "s_and_b32 s%d, s%d, 1" % (S_PAR, S_T0),
              "s_lshr_b32 s%d, s%d, 1" % (S_G, S_T0),
              "s_mul_i32 s%d, s%d, 48" % (S_COL0, S_CS),
              "s_and_b32 s%d, s%d, 1" % (S_HH, S_WAVE),
              "s_lshr_b32 s%d, s%d, 1" % (S_S, S_WAVE),
              "s_mul_i32 s%d, s%d, 320" % (S_T1, S_HH),
              "v_add_u32 v3, s%d, v2" % S_T1,
              "v_mov_b32 v9, v0",
              "v_bfrev_b32 v8, 1",
              "s_mul_i32 s%d, s%d, 24" % (S_T0, S_G),
              "s_add_u32 s%d, s%d, s%d" % (S_T0, S_T0, S_PAR),
              "s_mul_i32 s%d, s%d, 12" % (S_T1, S_S),
              "s_add_u32 s%d, s%d, s%d" % (S_T0, S_T0, S_T1),
              "s_sub_u32 s%d, s%d, 2" % (S_T0, S_T0),
              "s_mul_i32 s%d, s%d, 384" % (S_T0, S_T0),
              "s_add_u32 s%d, s%d, s%d" % (S_T0, S_T0, S_COL0),
              "s_sub_u32 s%d, s%d, 2" % (S_T0, S_T0),
              "s_mul_i32 s%d, s%d, 192" % (S_XBASE, S_T0),
              "s_cmp_eq_u32 s%d, 0" % S_CS,
              "s_cselect_b32 s%d, 2, 0" % S_LO,
              "s_cmp_eq_u32 s%d, 7" % S_CS,
              "s_cselect_b32 s%d, 50, 52" % S_N,
              "s_sub_u32 s%d, s%d, s%d" % (S_N, S_N, S_LO),
              "s_mul_i32 s%d, s%d, 5120" % (S_XM0, S_WAVE),
              "s_lshl_b32 s%d, s%d, 10" % (S_WM0, S_WAVE)]: e(s)
    for s in woff_calc(0): e(s)
    for s in xoff_calc(0): e(s)
    for s in ["s_mov_b32 s%d, %d" % (S_X+2, X_BYTES),
              "s_mov_b32 s%d, 0x20000" % (S_X+3),
              "s_mov_b32 s%d, %d" % (S_Wd+2, W_BYTES),
              "s_mov_b32 s%d, 0x20000" % (S_Wd+3),
              "s_waitcnt lgkmcnt(0)",
              "s_mov_b32 s%d, s4" % S_X,
              "s_and_b32 s%d, s5, 0xffff" % (S_X+1),
              "s_mov_b32 s%d, s6" % S_Wd,
              "s_and_b32 s%d, s7, 0xffff" % (S_Wd+1)]: e(s)
    stamp()
    def wpf():
        e("s_lshr_b32 s%d, s2, 3" % S_TMP)
        e("s_and_b32 s%d, s%d, 7" % (S_TMP, S_TMP))
        e("s_mul_i32 s%d, s%d, 20736" % (S_TMP, S_TMP))
        e("v_lshlrev_b32 v15, 7, v0")
        e("v_add_u32 v15, s%d, v15" % S_TMP)
        e("buffer_load_dword v15, v15, s[%d:%d], 0 offen" % (S_Wd, S_Wd+3))
        vm.issue()
    S = []; need = {}
    if ORD == 0:
        seq = [('x',0,0), ('w',0,0), ('x',0,1), ('w',0,1), ('x',0,2), ('w',0,2), ('x',0,3), ('w',0,3), ('x',0,4), ('w',0,4)]
        seq += [('w',0,k) for k in range(5, 14)]
    elif ORD == 1:
        seq = [('w',0,k) for k in range(14)] + [('x',0,t) for t in range(5)]
    elif ORD == 2:
        seq = [('w',0,k) for k in range(5)] + [('x',0,t) for t in range(5)] + [('w',0,k) for k in range(5, 14)]
    elif ORD == 3:
        seq = [('x',0,t) for t in range(5)] + [('w',0,k) for k in range(14)]
    elif ORD == 4:
        seq = [('w',0,k) for k in range(9)] + [('x',0,t) for t in range(5)] + [('w',0,k) for k in range(9, 14)]
    if ORD == 8:
        seq = []
        for u in range(2):
            for k in range(14):
                if k % XIL == 0 and k // XIL < 5: seq.append(('x', u, k // XIL))
                seq.append(('w', u, k))
    elif ORD == 5:
        seq = [('x',0,0), ('w',0,0), ('x',0,1), ('w',0,1), ('x',0,2), ('w',0,2), ('x',0,3), ('w',0,3), ('x',0,4), ('w',0,4)]
        seq += [('w',0,5), ('x',1,0), ('w',0,6), ('w',0,7), ('x',1,1), ('w',0,8), ('w',0,9), ('x',1,2), ('w',0,10), ('w',0,11), ('x',1,3), ('w',0,12), ('w',0,13), ('x',1,4)]
        seq += [('w',1,k) for k in range(14)]
    elif ORD == 6:
        seq = [('x',0,0), ('w',0,0), ('x',0,1), ('w',0,1), ('x',0,2), ('w',0,2), ('x',0,3), ('w',0,3), ('x',0,4), ('w',0,4)]
        seq += [('w',0,5), ('w',0,6), ('w',0,7), ('w',0,8), ('x',1,0), ('w',0,9), ('x',1,1), ('w',0,10), ('x',1,2), ('w',0,11), ('x',1,3), ('w',0,12), ('x',1,4), ('w',0,13)]
        seq += [('w',1,k) for k in range(14)]
    elif ORD == 7:
        seq = [('x',0,0), ('w',0,0), ('x',0,1), ('w',0,1), ('x',0,2), ('w',0,2), ('x',0,3), ('w',0,3), ('x',0,4), ('w',0,4)]
        seq += [('w',0,k) for k in range(5, 14)]
        seq += [('x',1,0), ('w',1,0), ('x',1,1), ('w',1,1), ('x',1,2), ('w',1,2), ('x',1,3), ('w',1,3), ('x',1,4), ('w',1,4)] + [('w',1,k) for k in range(5, 14)]
    else:
        seq += [('x',1,t) for t in range(5)] + [('w',1,k) for k in range(14)]
    w13 = ["s_add_u32 s%d, s%d, %d" % (S_W2L, S_WM0, WA + 13*4096),
          "s_add_u32 s%d, s%d, %d" % (S_W2L1, S_WM0, WB1 + 13*4096),
          "s_cmp_ge_u32 s%d, 2\n    s_cselect_b32 s%d, %d, s%d\n    s_cselect_b32 s%d, %d, s%d" % (S_WAVE, S_W2L, SPARE, S_W2L, S_W2L1, SPARE, S_W2L1)]
    for d in seq:
        if d[1] != 0: continue
        if d[0] == 'x' and d[2] > 0: S += xoff_calc(d[2]); need[d] = len(S)
        if d[0] == 'w' and d[2] in (1, 2): S += woff_calc(d[2]); need[d] = len(S)
        if d == ('w',0,13): S += w13; need[d] = len(S)
    S += must_setup(); nmust = len(S)
    S += later_setup()
    pos = 0
    for di, d in enumerate(seq):
        us = x_units(d[1], d[2]) if d[0] == 'x' else w_units(d[2], d[1])
        if di >= PRO:
            left_dma.append((d, us)); continue
        tgt = max(need.get(d, 0), min(len(S), pos + (QUO if di >= 2 else 0)))
        if d in (('w',0,13), ('xa',1,0)):
            while pos < need[d]: e(S[pos]); pos += 1
        us[0]()
        while pos < tgt: e(S[pos]); pos += 1
        us[1](); us[2]()
        if WPF and di == WPF - 1: wpf()
    while pos < nmust: e(S[pos]); pos += 1
    for s in S[pos:]: left_setup.append(lambda s=s: e(s))
    stamp()

wid = {}
def tr_units(f):
    ks_l = (f // 3) % 9
    tp = f % 3
    us = []
    for hf in range(2):
        def u(hf=hf):
            off = ks_l*6144 + hf*768
            e("ds_read_b64_tr_b16 %s, v%d offset:%d" % (wfrag_half(f, hf), (V_WTR1 if f // 27 == 1 else V_WTR) + tp, off))
            i = lg.issue()
            if hf == 1: wid[f] = i
        us.append(u)
    return us
def triple(ks):
    us = []
    for tp in range(3): us += tr_units(ks*3 + tp)
    return us

swid = {}
def epi_units(t, m):
    if DIRECT:
        acc = V_ACC + 72 + 12*m
        pk = 4 + 6*(m % 2)
        us = [(lambda d=d: e("v_cvt_pk_bf16_f32 v%d, v%d, v%d" % (pk+d, acc+2*d, acc+2*d+1))) for d in range(6)]
        def s4():
            e("buffer_store_dwordx4 %s, v%d, s[%d:%d], 0 offen offset:%d %s" % (vr(pk, 4), V_SR + (m // 2), S_O, S_O+3, (m % 2)*3072, SNT)); vm.issue()
        def s2():
            e("buffer_store_dwordx2 %s, v%d, s[%d:%d], 0 offen offset:%d %s" % (vr(pk+4, 2), V_SR + (m // 2), S_O, S_O+3, (m % 2)*3072 + 16, SNT)); vm.issue()
        us.insert(4, s4); us.append(s2)
        if m == 2:
            us += [lambda: e("v_add_u32 v%d, %d, v%d" % (V_SR, 2*ROWB, V_SR)), lambda: e("v_add_u32 v%d, %d, v%d" % (V_SR+1, 2*ROWB, V_SR+1)), lambda: e("s_mov_b32 s%d, %d" % (S_O+2, X_BYTES))]
        swid[t] = None
        return us
    if NOEPI:
        swid[t] = None
        return []
    acc = V_ACC + 72 + 12*m
    pk = V_PK
    us = []
    for d in range(3):
        us.append(lambda d=d: e("v_cvt_pk_bf16_f32 v%d, v%d, v%d" % (pk+2*d, acc+4*d, acc+4*d+1)))
        us.append(lambda d=d: e("v_cvt_pk_bf16_f32 v%d, v%d, v%d" % (pk+2*d+1, acc+4*d+2, acc+4*d+3)))
        def w(d=d):
            e("ds_write_b64 v%d, %s offset:%d" % (V_SW, vr(pk+2*d, 2), m*2*OPITCH + 8*d))
            swid[t] = lg.issue()
        us.append(w)
    return us

def readback_units(t, part=False):
    if NORB or DIRECT: return []
    us = []
    rid = {}
    for i in range(5):
        def r(i=i):
            e("ds_read_b128 %s, v%d" % (vr(4 + 4*(i % 3), 4), V_SR + i))
            rid[i] = lg.issue()
        def s(i=i):
            if NOST: return
            lg.wait(rid[i])
            if i < 4: e("buffer_store_dwordx4 %s, v%d, s[%d:%d], 0 offen offset:%d %s" % (vr(4 + 4*(i % 3), 4), (22 if part and i > 0 else V_OA), S_O, S_O+3, 1024*i, SNT))
            else: e("buffer_store_dwordx4 %s, v%d, s[%d:%d], 0 offen %s" % (vr(4 + 4*(i % 3), 4), V_OA+1, S_O, S_O+3, SNT))
            vm.issue()
        us.append((r, s))
    adv = [lambda: e("v_add_u32 v%d, %d, v%d" % (V_OA, 2*ROWB, V_OA)), lambda: e("v_add_u32 v%d, %d, v%d" % (V_OA+1, 2*ROWB, V_OA+1)), lambda: e("s_mov_b32 s%d, %d" % (S_O+2, X_BYTES))]
    tog = [lambda i=i: e("v_add_u32 v%d, s%d, v%d" % (V_SR+i, S_TG, V_SR+i)) for i in range(5)]
    tog += [lambda: e("v_add_u32 v%d, s%d, v%d" % (V_SW, S_TG, V_SW)), lambda: e("s_sub_u32 s%d, 0, s%d" % (S_TG, S_TG))]
    if part: return [us[0][0], us[1][0], us[2][0], us[0][1], us[3][0], us[1][1], us[4][0], us[2][1], us[3][1], us[4][1]]
    return [(0, [us[0][0], us[1][0], us[2][0]]), (SSP, [us[0][1], us[3][0]]), (2*SSP, [us[1][1], us[4][0]]), (3*SSP, [us[2][1]] + tog), (4*SSP, [us[3][1]]), (5*SSP, [us[4][1]] + adv)]

def main_loop():
    items = []; Fq = []
    for q in range(8):
        Fq.append(len(items))
        if q < 2:
            for kq in range(9):
                for a in range(3): items.append((q, a + kq // 3, kq % 3, [(a, kq // 3)]))
        else:
            for b in range(5):
                for kk in range(3): items.append((q, b, kk, [(a, b - a) for a in range(3) if 0 <= b - a <= 2]))
    N = len(items); Fq.append(N)
    lastb = {}
    for n, it in enumerate(items): lastb[(it[0], it[1])] = n
    lastb = set(lastb.values())
    ev = {}; evm = {}
    def at(n, fn): ev.setdefault(max(n, 0), []).append(fn)
    def atq(n, units): at(n, lambda: fq.extend(units))
    def atm(q, k, units): evm.setdefault((q, k), []).append(units)
    F = lambda q: Fq[q]
    E = lambda q: F(q+1) - D
    ldid = {}
    def load(n):
        if n >= N: return
        q, b, kk, _ = items[n]
        if NOLD and q >= 2: ldid[n] = 0
        else:
            e("ds_read_b128 %s, v%d offset:%d" % (vr(V_B + 4*(n % NB), 4), V_BA + b, kk*64))
            ldid[n] = lg.issue()
        if n in lastb and q < 7: e("v_add_u32 v%d, s%d, v%d" % (V_BA+b, S_DL, V_BA+b))
    def dl_calc():
        e("s_lshr_b32 s%d, s%d, 4" % (S_RT, S_RT))
        e("s_and_b32 s%d, s%d, 15" % (S_TMP, S_RT))
        e("s_mul_i32 s%d, s%d, 10240" % (S_TMP, S_TMP))
        e("s_sub_u32 s%d, s%d, s%d" % (S_DL, S_TMP, S_CUR))
        e("s_mov_b32 s%d, s%d" % (S_CUR, S_TMP))
    def barrier(vmids=(), lgids=(), dl=False):
        def fn():
            flush()
            if dl: dl_calc()
            for x in lgids: lg.wait(x())
            for x in vmids: vm.wait(x())
            e("s_barrier")
            stamp()
        return fn
    W = lambda i, k: (lambda: ids[('w', i, k)])
    X = lambda u: (lambda: ids.get(('x', u)))
    assert LQ == 2
    pos = 0
    for d, us in left_dma:
        atq(pos, us); pos += SPL
    atq(max(pos, 6), left_setup)
    for i in range(2):
        for kq in range(9):
            if i == 0 and kq < 2: continue
            p = F(i) + 3*(kq-1) - 1
            if kq == 3: at(p, barrier(vmids=[W(i,8)]))
            if kq == 6: at(p, barrier(vmids=[W(i,13)]))
            if i == 1 and kq == 0:
                assert p == E(0)
                at(p, barrier(vmids=[X(1), W(1, 4)], lgids=[lambda: wid[26], lambda: ldid[26]], dl=True))
                q = p + 1
                atq(q, xd_units())
                if XW2 == 0:
                    for tt in range(5): atq(q, x_units(2, tt, dyn=True)); q += SPW
                    for k in range(14): atq(q, w_units(k, 2)); q += SPW
                else:
                    for k in range(14):
                        if k % XW2 == 0 and k // XW2 < 5: atq(q, x_units(2, k // XW2, dyn=True)); q += SPW
                        atq(q, w_units(k, 2)); q += SPW
            atq(p, triple(9*i + kq))
    at(F(1) + W2B, barrier(vmids=[W(2,8)]))
    for kq in range(6): atq(F(1) + W2B + (kq*(E(1) - F(1) - W2B))//6, triple(18 + kq))
    at(E(1), barrier(vmids=[X(2), W(2, 13)], lgids=[lambda: wid[53], lambda: wid[23*3+2]], dl=True))
    for kq in range(6, 9): atq(E(1), triple(18 + kq))
    atq(E(1) + 1, xd_units())
    for tt in range(5): atq(E(1) + 1 + tt // 2, x_units(3, tt, dyn=True))
    for q in range(2, 8):
        b = F(q)
        ni = 3 if q <= 5 else 8 - q
        sc = lambda k: (k * ni) // 3
        atm(q, sc(6), epi_units(q-3, 2))
        if q <= 5:
            atm(q, sc(18), multi("s_cmp_eq_u32 s%d, 3\n    s_cselect_b32 s%d, s%d, %d\n    s_cmp_ge_u32 s%d, 5\n    s_cselect_b32 s%d, 0, %d" % (S_IT, S_XINC, S_XJ, 2*ROWB, S_IT, S_X+2, X_BYTES)))
            atm(q, sc(18), xd_units())
        sb = SB if q < 7 else SB + 1
        at(b + sb, barrier(lgids=[lambda q=q: swid[q-3]]))
        m0 = sc(27 + 18*(sb - 3)) + 1
        for o, u in readback_units(q-3): atm(q, m0 + sc(o*RSP), u)
        if q <= 5:
            for tt in range(5):
                if not NOXD: atm(q, m0 + sc((3*tt + 1)*RSP + 1), x_units(q+2, tt, dyn=True))
        atm(q, sc(162 + 9), epi_units(q-2, 0))
        atm(q, sc(216 + 9), epi_units(q-2, 1))
        if q <= 5: at(E(q), barrier(vmids=[X(q+1)], dl=True))
        elif q == 6: pass
    vm.wait(max(ids[('w',0,4)], ids[('x',0)]))
    e("s_barrier")
    stamp()
    dl_calc()
    for u in triple(0): u()
    for n in range(D): load(n)
    for u in triple(1): u()
    marks = []
    def close_loop():
        flush()
        marks.append(len(out))
        inloop[0] = False
        bodies = [out[marks[k]:marks[k+1]] for k in range(6 - LQ)]
        assert all(len(bd) == len(bodies[0]) for bd in bodies), [len(bd) for bd in bodies]
        merged = []
        rx = re.compile(r"\s*s_waitcnt (\w+)\((\d+)\)")
        for lines in zip(*bodies):
            if all(l == lines[0] for l in lines):
                if ";opt" in lines[0]: continue
                merged.append(lines[0]); continue
            ms = [rx.match(l) for l in lines]
            assert all(ms) and len(set(mm.group(1) for mm in ms)) == 1, lines
            merged.append("    s_waitcnt %s(%d)" % (ms[0].group(1), min(int(mm.group(2)) for mm in ms)))
        del out[marks[0]:]
        out.append("L_loop:")
        out.extend(merged)
        e("s_add_u32 s%d, s%d, 1" % (S_IT, S_IT))
        e("s_cmp_lt_u32 s%d, 6" % S_IT)
        e("s_cbranch_scc1 L_loop")
        stamp()
    mc = 0
    for n in range(N):
        q, b_, kk, combos = items[n]
        if n == F(q): mc = 0
        if n == F(q) and LQ <= q <= 5:
            flush()
            if q == LQ: stamp()
            inloop[0] = True
            marks.append(len(out))
        if n == F(6): close_loop()
        for fn in ev.get(n, []): fn()
        iset = [i for i in (2, 1, 0) if 0 <= q - i <= 5]
        needw = [(9*i + 3*j + kk)*3 + tp for (a, j) in combos for i in iset for tp in range(3)]
        load(n + D)
        while any(f not in wid for f in needw): fq.popleft()()
        lg.wait(max([ldid[n]] + [wid[f] for f in needw]))
        b = vr(V_B + 4*(n % NB), 4)
        cnt = 0; tot = 3*len(iset)*len(combos)
        for (a_, j) in combos:
            for i in iset:
                for tp in range(3):
                    a = vr(V_ACC + 36*i + 12*a_ + 4*tp, 4)
                    c = a if (j, kk) != (0, 0) else "0" if i == 0 else vr(V_ACC + 36*(i-1) + 12*a_ + 4*tp, 4)
                    e("v_mfma_f32_16x16x32_bf16 %s, %s, %s, %s" % (a, wfrag((9*i+3*j+kk)*3+tp), b, c))
                    cnt += 1; mc += 1
                    for us in evm.get((q, mc), []): fq.extend(us)
                    fill(0 if (cnt == tot and tot > 3) else 1)
    flush()
    stamp()
    e("s_nop 7")
    e("s_nop 7")
    if TT:
        acc = V_ACC + 72 + 24
        for d in range(6): e("v_cvt_pk_bf16_f32 v%d, v%d, v%d" % (V_PK+d, acc+2*d, acc+2*d+1))
        e("buffer_store_dwordx4 %s, v21, s[%d:%d], 0 offen %s" % (vr(V_PK, 4), S_O, S_O+3, SNT))
        e("buffer_store_dwordx2 %s, v21, s[%d:%d], 0 offen offset:16 %s" % (vr(V_PK+4, 2), S_O, S_O+3, SNT))
    else:
        for u in epi_units(5, 2): u()
        if not DIRECT: barrier(lgids=[lambda: swid[5]])()
        for o, us in readback_units(5):
            for u in us: u()
    stamp()
    e("s_waitcnt vmcnt(0)")
    stamp()
    rstamp()
    if STAMP:
        e("s_mov_b32 s%d, s90" % (64 + nstamp[0])); nstamp[0] += 1
    dump_stamps()
    if SK:
        e("s_memrealtime s[68:69]")
        e("s_memtime s[70:71]")
        e("s_load_dwordx2 s[46:47], s[0:1], 32")
        e("s_waitcnt lgkmcnt(0)")
        e("s_mov_b32 s48, s46")
        e("s_and_b32 s49, s47, 0xffff")
        e("s_mov_b32 s50, 65536")
        e("s_mov_b32 s51, 0x20000")
        e("s_lshl_b32 s53, s2, 2")
        e("s_add_u32 s53, s53, s%d" % S_WAVE)
        e("s_lshl_b32 s53, s53, 4")
        e("v_mov_b32 v1, s53")
        e("v_mov_b32 v4, s64")
        e("v_mov_b32 v5, s68")
        e("v_mov_b32 v6, s66")
        e("v_mov_b32 v7, s70")
        e("buffer_store_dwordx4 v[4:7], v1, s[48:51], 0 offen")
        e("s_waitcnt vmcnt(0)")

header()
prologue()
main_loop()
footer()
open(sys.argv[1], "w").write("\n".join(out) + "\n")
print("lines", len(out), "stamps", nstamp[0])
```

```python
import sys, os, re
from collections import deque

KNAME = "standalone__dilated_atrous__vision_kernel"
X_BYTES = 384*384*96*2
W_BYTES = 9*96*96*2
ROWB = 384*192
SLOT = 10240
WA = 0
XB = 55296
WB1 = 106496
SPARE = 161792
OPITCH = 208
NB = 5
def P(n, d): return int(os.environ.get(n, str(d)))
D = P("D", 4)
PRO = P("PRO", 24)
QUO = P("QUO", 8)
SPL = P("SPL", 1)
SPW = P("SPW", 1)
SSP = P("SSP", 3)
WSPLIT = P("WSPLIT", 1)
CPF = P("CPF", 1)
WPF = P("WPF", 0)
FC = [int(c) for c in os.environ.get("FC", "111")]
FC0 = [int(c) for c in os.environ.get("FC0", "111")]
LQ = P("LQ", 2)
XPF = P("XPF", 0)
XPP = P("XPP", 99)
FRONT = P("FRONT", 0)
C0P = P("C0P", 12)
C1P = P("C1P", 13)
J1A = P("J1A", 3)
J1B = P("J1B", 8)
G2S = P("G2S", 1)
W2O = 10240
DIRECT = P("DIRECT", 0)
NOLD = P("NOLD", 0)
NOST = P("NOST", 0)
TT = P("TT", 0)
TB = P("TB", 22)
XIL = P("XIL", 3)
XW2 = P("XW2", 0)
W2B = P("W2B", 18)
SB = P("SB", 3)
RSP = P("RSP", 3)
SK = P("SK", 0)
ORD = P("ORD", 0)
XSP = P("XSP", 0)
LDP = P("LDP", 0)
LDP0 = P("LDP0", 0)
SPLITS = P("SPLITS", 0)
BOOST = P("BOOST", 7)
NOBA = P("NOBA", 0); NOXD = P("NOXD", 0); NOEPI = P("NOEPI", 0); NORB = P("NORB", 0); NOBAR = P("NOBAR", 0)
XNT = os.environ.get("XNT", "nt ")
SNT = os.environ.get("SNT", "sc1")

STAMP = len(sys.argv) > 2 and sys.argv[2] == "stamp"
out = []
def e(s): out.append("    " + s)

V_XOFF = 16; V_WOFF = 21; V_WTR = 24; V_BA = 64; V_SW = 30; V_SR = 31; V_OA = 36; V_PK = 38; V_B = 44; V_ACC = 80
V_W = 188; V_WTR1 = 13

def wfrag(f):
    if f < 64: return "a[%d:%d]" % (4*f, 4*f+3)
    b = V_W + 4*(f-64)
    return "v[%d:%d]" % (b, b+3)
def wfrag_half(f, hf):
    if f < 64: return "a[%d:%d]" % (4*f+2*hf, 4*f+2*hf+1)
    b = V_W + 4*(f-64) + 2*hf
    return "v[%d:%d]" % (b, b+1)
def vr(b, n): return "v[%d:%d]" % (b, b+n-1)

S_X = 8; S_Wd = 12; S_O = 16
S_WAVE = 20; S_HH = 21; S_S = 22; S_CS = 23; S_PAR = 24; S_G = 25
S_T0 = 26; S_T1 = 27; S_T2 = 28; S_T3 = 29
S_XM0 = 32; S_WM0 = 33; S_COL0 = 34; S_W2L = 35; S_LO = 38; S_N = 39; S_XBASE = 42; S_W2L1 = 43
S_RT = 56; S_LT = 57; S_CUR = 58
S_TG = 59; S_XD = 60; S_IT = 61; S_TMP = 62; S_DL = 63; S_XH = 30; S_XINC = 31; S_XJ = 40; S_TMP2 = 41; S_W2L2 = 84; S_TMP3 = 85

nstamp = [0]
inloop = [False]
def stamp():
    if not STAMP or inloop[0]: return
    k = nstamp[0]; nstamp[0] += 1
    e("s_memtime s[44:45]")
    e("s_waitcnt lgkmcnt(0)")
    lg.clear()
    e("s_mov_b32 s%d, s44" % (64 + k))
def rstamp():
    if not STAMP: return
    k = nstamp[0]; nstamp[0] += 1
    e("s_memrealtime s[44:45]")
    e("s_waitcnt lgkmcnt(0)")
    lg.clear()
    e("s_mov_b32 s%d, s44" % (64 + k))
def dump_stamps():
    if not STAMP: return
    e("s_load_dwordx2 s[46:47], s[0:1], 24")
    e("s_waitcnt lgkmcnt(0)")
    e("s_mov_b32 s48, s46")
    e("s_and_b32 s49, s47, 0xffff")
    e("s_mov_b32 s50, 256")
    e("s_mov_b32 s51, 0x20000")
    e("s_mov_b32 s52, 1024")
    e("s_lshl_b32 s53, s2, 2")
    e("s_add_u32 s53, s53, s%d" % S_WAVE)
    e("s_cmp_eq_u32 s53, 0")
    e("s_cselect_b32 s52, 0, s52")
    e("s_cmp_eq_u32 s53, %d" % (133*4+3))
    e("s_cselect_b32 s52, 128, s52")
    e("v_mov_b32 v1, s52")
    n = nstamp[0]
    e("s_sub_u32 s92, s%d, s%d" % (64+n-2, 64+n-1))
    e("v_mov_b32 v2, s92")
    e("buffer_store_dword v2, v1, s[48:51], 0 offen offset:0")
    for k in range(1, n-2):
        e("s_sub_u32 s92, s%d, s64" % (64+k))
        e("v_mov_b32 v2, s92")
        e("buffer_store_dword v2, v1, s[48:51], 0 offen offset:%d" % (4*k))
    e("s_waitcnt vmcnt(0)")

class Tracker:
    def __init__(self, name, maxv):
        self.name = name; self.maxv = maxv; self.done = 0; self.n = 0
    def issue(self):
        self.n += 1
        return self.n
    def wait(self, opid):
        if opid is None or opid <= self.done:
            if inloop[0]: e("s_waitcnt %s(%d) ;opt" % (self.name, self.maxv))
            return
        cnt = min(self.n - opid, self.maxv)
        e("s_waitcnt %s(%d)" % (self.name, cnt))
        self.done = self.n - cnt
    def clear(self):
        self.done = self.n
lg = Tracker("lgkmcnt", 15)
vm = Tracker("vmcnt", 63)

def header():
    out.append("""; Kernarg layout for this problem (40 bytes, ptrs only, base s[0:1]):
;   offset   0: d_in[0] x  shape=(1, 384, 384, 96) dtype=bfloat16
;   offset   8: d_in[1] w  shape=(3, 3, 96, 96) dtype=bfloat16
;   offset  16: d_out     shape=(1, 384, 384, 96) dtype=bfloat16 (2 bytes/elem)
;   offset  24: d_debug   256 bytes
;   offset  32: d_ws      268435456 bytes workspace
; @launch grid=(256,1,1) block=(256,1,1) lds=163840
.amdgcn_target "amdgcn-amd-amdhsa--gfx950"
.text
.globl %s
.p2align 8
.type %s,@function
%s:""" % (KNAME, KNAME, KNAME))

def footer():
    out.append("""L_end:
    s_endpgm
.section .rodata,"a"
.p2align 6
.amdhsa_kernel %s
  .amdhsa_next_free_vgpr 512
  .amdhsa_next_free_sgpr 100
  .amdhsa_accum_offset 256
  .amdhsa_group_segment_fixed_size 0
  .amdhsa_kernarg_size 40
  .amdhsa_user_sgpr_count 2
  .amdhsa_user_sgpr_kernarg_segment_ptr 1
  .amdhsa_system_sgpr_workgroup_id_x 1
.end_amdhsa_kernel""" % KNAME)

ids = {}
fq = deque()
def multi(txt):
    parts = [p.strip() for p in txt.split("\n")]
    if not SPLITS: return [lambda: e(txt)]
    return [(lambda p=p: e(p)) for p in parts]
def fill(k=1):
    if len(fq) > BOOST and k > 0: k += 1
    for _ in range(k):
        if fq: fq.popleft()()
def flush():
    while fq: fq.popleft()()

def w_units(k, i):
    r = V_WOFF + (k % 3)
    base = WB1 if i == 1 else WA + W2O if i == 2 else WA
    def u0():
        if k == 13: e("s_mov_b32 m0, s%d" % (S_W2L1 if i == 1 else S_W2L2 if i == 2 else S_W2L))
        else: e("s_add_u32 m0, s%d, %d" % (S_WM0, base + k*4096))
    def u1():
        if " m0," in out[-1]: e("s_nop 0")
        e("buffer_load_dwordx4 v%d, s[%d:%d], 0 offen lds" % (r, S_Wd, S_Wd+3))
        ids[('w', i, k)] = vm.issue()
    def u2():
        c = k % 3
        if k + 3 <= 13: adv = 12288
        else: adv = 55296 - (k - c)*4096
        e("v_add_u32 v%d, 0x%x, v%d" % (r, adv, r))
    return [u0, u1, u2]
def x_units(u, t, dyn=False):
    def u0():
        if dyn: e("s_add_u32 m0, s%d, %d" % (S_XD, t*1024))
        else: e("s_add_u32 m0, s%d, %d" % (S_XM0, XB + 20480*u + t*1024))
    def u1():
        if " m0," in out[-1]: e("s_nop 0")
        e("buffer_load_dwordx4 v%d, s[%d:%d], 0 offen %slds" % (V_XOFF+t, S_X, S_X+3, XNT))
        ids[('x', u)] = vm.issue()
    def u2():
        if dyn: e("v_add_u32 v%d, s%d, v%d" % (V_XOFF+t, S_XINC, V_XOFF+t))
        else: e("v_add_u32 v%d, %d, v%d" % (V_XOFF+t, 2*ROWB, V_XOFF+t))
    return [u0, u1, u2]
def xd_units():
    return multi("s_and_b32 s%d, s%d, 15\n    s_cselect_b32 s%d, 45056, 0\n    s_mul_i32 s%d, s%d, 10240\n    s_add_u32 s%d, s%d, s%d\n    s_add_u32 s%d, s%d, s%d\n    s_lshr_b32 s%d, s%d, 4" % (S_TMP2, S_LT, S_TMP3, S_TMP2, S_TMP2, S_XD, S_TMP2, S_XH, S_XD, S_XD, S_TMP3, S_LT, S_LT))

def xoff_calc(t):
    L = []
    if t > 0: L.append("v_add_u32 v3, 64, v3")
    L += ["v_mul_u32_u24 v4, 43691, v3",
          "v_lshrrev_b32 v4, 19, v4",
          "v_mul_u32_u24 v5, 12, v4",
          "v_sub_u32 v5, v3, v5",
          "v_lshrrev_b32 v6, 1, v4",
          "v_and_b32 v6, 2, v6",
          "v_xor_b32 v5, v5, v6",
          "v_mul_u32_u24 v7, 192, v4",
          "v_subrev_u32 v6, s%d, v4" % S_LO,
          "v_lshl_add_u32 v7, v5, 4, v7",
          "v_cmp_gt_u32 vcc, s%d, v6" % S_N,
          "v_add_u32 v7, s%d, v7" % S_XBASE,
          "v_cndmask_b32 v%d, v8, v7, vcc" % (V_XOFF+t)]
    return L
def woff_calc(c):
    L = []
    if c > 0: L.append("v_add_u32 v9, 0x100, v9")
    L += ["v_mul_u32_u24 v10, 43691, v9",
          "v_lshrrev_b32 v10, 19, v10",
          "v_mul_u32_u24 v11, 12, v10",
          "v_sub_u32 v11, v9, v11",
          "v_lshrrev_b32 v12, 2, v10",
          "v_and_b32 v12, 2, v12",
          "v_sub_u32 v11, v11, v12",
          "v_add_u32 v12, 12, v11",
          "v_cmp_gt_i32 vcc, 0, v11",
          "v_mul_u32_u24 v13, 192, v10",
          "v_cndmask_b32 v11, v11, v12, vcc",
          "v_lshl_add_u32 v%d, v11, 4, v13" % (V_WOFF + c)]
    return L
def must_setup():
    L = []
    L += ["v_lshrrev_b32 v3, 4, v2",
          "v_lshrrev_b32 v4, 2, v2",
          "v_and_b32 v4, 3, v4",
          "v_lshl_add_u32 v4, v3, 3, v4",
          "v_mul_u32_u24 v4, 192, v4",
          "v_and_b32 v5, 3, v2",
          "v_mul_u32_u24 v5, 24, v5",
          "s_mul_i32 s%d, s%d, 96" % (S_T2, S_HH),
          "v_add_u32 v5, s%d, v5" % S_T2,
          "v_and_b32 v6, 1, v3",
          "v_lshlrev_b32 v6, 5, v6",
          "v_add_u32 v5, v5, v6"]
    for tp in range(3):
        L += ["v_add_u32 v6, %d, v5" % (8*tp),
              "v_subrev_u32 v7, 192, v6",
              "v_cmp_le_u32 vcc, 192, v6",
              "v_cndmask_b32 v6, v6, v7, vcc",
              "v_add_u32 v%d, v4, v6" % (V_WTR + tp)]
    L += ["v_and_b32 v4, 15, v2",
          "s_mul_i32 s%d, s%d, %d" % (S_CUR, S_S, SLOT),
          "s_add_u32 s%d, s%d, %d" % (S_CUR, S_CUR, XB)]
    L += ["v_lshrrev_b32 v5, 1, v4",
          "v_and_b32 v6, 1, v4",
          "v_mul_u32_u24 v5, 6, v5",
          "v_add_u32 v28, v5, v6"]
    for j in range(5):
        L += ["v_add_u32 v5, %d, v28" % (2*j),
              "v_lshrrev_b32 v6, 1, v5",
              "v_and_b32 v6, 2, v6",
              "v_xor_b32 v6, v6, v3",
              "v_mul_u32_u24 v5, 192, v5",
              "v_lshl_add_u32 v5, v6, 4, v5",
              "v_add_u32 v%d, s%d, v5" % (V_BA+j, S_CUR)]
    L += ["s_mov_b32 s%d, 0x15397042" % S_RT, "s_mov_b32 s%d, 0x713970" % S_LT, "s_mov_b32 s%d, %d" % (S_XJ, 4*ROWB),
          "s_cmp_eq_u32 s%d, 0\n    s_cselect_b32 s%d, 0x42a86531, s%d\n    s_cselect_b32 s%d, 0x65a865, s%d\n    s_cselect_b32 s%d, %d, s%d" % (S_S, S_RT, S_RT, S_LT, S_LT, S_XJ, 14*ROWB, S_XJ),
          "s_mul_i32 s%d, s%d, 5120" % (S_XH, S_HH),
          "s_mov_b32 s%d, %d" % (S_XINC, 2*ROWB)]
    for tp in range(3): L.append("v_add_u32 v%d, %d, v%d" % (V_WTR1+tp, WB1, V_WTR+tp))
    if XPF:
        L += ["v_lshlrev_b32 v29, 7, v2",
              "s_add_u32 s%d, s%d, s%d" % (S_TMP3, S_XBASE, S_XH),
              "s_add_u32 s%d, s%d, %d" % (S_TMP3, S_TMP3, 4*ROWB),
              "v_cmp_gt_u32 vcc, 40, v2",
              "v_add_u32 v29, s%d, v29" % S_TMP3,
              "v_cndmask_b32 v29, v8, v29, vcc"]
    return L
def later_setup():
    L = []
    L += ["s_mov_b32 s%d, s36" % S_O,
          "s_and_b32 s%d, s37, 0xffff" % (S_O+1),
          "s_mov_b32 s%d, %d" % (S_O+2, X_BYTES if LQ == 3 else 0),
          "s_mov_b32 s%d, 0x20000" % (S_O+3),
          "s_mov_b32 s%d, 20480" % S_TG,
          "s_mov_b32 s%d, %d" % (S_IT, LQ),
          "s_mul_i32 s%d, s%d, 9984" % (S_T3, S_S),
          "s_add_u32 s%d, s%d, %d" % (S_T3, S_T3, W2O),
          "s_add_u32 s%d, s%d, s%d" % (S_T2, S_T2, S_T3),
          "v_mul_u32_u24 v5, %d, v28" % OPITCH,
          "v_mul_u32_u24 v6, 24, v3",
          "v_add3_u32 v%d, v5, v6, s%d" % (V_SW, S_T2),
          "s_mul_i32 s%d, s%d, 320" % (S_T2, S_HH),
          "v_add_u32 v5, s%d, v2" % S_T2]
    for i in range(5):
        if i: L.append("v_add_u32 v5, 64, v5")
        L += ["v_mul_u32_u24 v6, 43691, v5",
              "v_lshrrev_b32 v6, 19, v6",
              "v_mul_u32_u24 v7, 12, v6",
              "v_sub_u32 v7, v5, v7",
              "v_mul_u32_u24 v6, %d, v6" % OPITCH,
              "v_lshl_add_u32 v6, v7, 4, v6",
              "v_add_u32 v%d, s%d, v6" % (V_SR + i, S_T3)]
    L += ["s_lshl_b32 s%d, s%d, 1" % (S_T2, S_G),
          "s_add_u32 s%d, s%d, s%d" % (S_T2, S_T2, S_S),
          "s_mul_i32 s%d, s%d, 12" % (S_T2, S_T2),
          "s_sub_u32 s%d, s%d, %d" % (S_T2, S_T2, 0 if LQ == 3 else 2),
          "s_add_u32 s%d, s%d, s%d" % (S_T2, S_T2, S_PAR),
          "s_mul_i32 s%d, s%d, 384" % (S_T2, S_T2),
          "s_add_u32 s%d, s%d, s%d" % (S_T2, S_T2, S_COL0),
          "s_mul_i32 s%d, s%d, 192" % (S_T2, S_T2),
          "s_mul_i32 s%d, s%d, 5120" % (S_T3, S_HH),
          "s_add_u32 s%d, s%d, s%d" % (S_T2, S_T2, S_T3),
          "v_lshlrev_b32 v5, 4, v2",
          "v_add_u32 v%d, s%d, v5" % (V_OA, S_T2),
          "s_mul_i32 s%d, s%d, 0x40000000" % (S_T3, S_HH),
          "s_add_u32 s%d, s%d, 4096" % (S_T3, S_T3),
          "v_add_u32 v%d, s%d, v%d" % (V_OA+1, S_T3, V_OA)]
    if DIRECT:
        L += ["v_mul_u32_u24 v5, 192, v4", "v_mul_u32_u24 v6, 24, v3",
              "s_mul_i32 s%d, s%d, %d" % (S_T3, S_HH, 96 - 5120),
              "s_add_u32 s%d, s%d, s%d" % (S_T2, S_T2, S_T3),
              "v_add3_u32 v%d, v5, v6, s%d" % (V_SR, S_T2),
              "v_add_u32 v%d, 6144, v%d" % (V_SR+1, V_SR)]
    return L

left_dma = []
left_setup = []
def prologue():
    e("s_cmp_ge_u32 s2, 256")
    e("s_cbranch_scc1 L_end")
    stamp()
    if SK:
        e("s_memrealtime s[64:65]")
        if SK == 1: e("s_memtime s[66:67]")
    if STAMP:
        e("s_memrealtime s[44:45]")
        e("s_waitcnt lgkmcnt(0)")
        e("s_mov_b32 s90, s44")
    e("s_load_dwordx4 s[4:7], s[0:1], 0")
    e("s_load_dwordx2 s[36:37], s[0:1], 16")
    if CPF:
        e("s_getpc_b64 s[54:55]")
        out.append("L_pc:")
        e("v_lshlrev_b32 v10, 7, v0")
        e("v_min_u32 v10, (L_end - L_pc), v10")
        e("v_mov_b32 v11, s55")
        e("v_add_co_u32 v10, vcc, s54, v10")
        e("v_addc_co_u32 v11, vcc, 0, v11, vcc")
        e("global_load_dword v63, v[10:11], off")
        vm.issue()
    for s in [
              "v_lshrrev_b32 v1, 6, v0",
              "v_and_b32 v2, 63, v0",
              "s_and_b32 s%d, s2, 7" % S_CS,
              "v_readfirstlane_b32 s%d, v1" % S_WAVE,
              "s_lshr_b32 s%d, s2, 3" % S_T0,
              "s_and_b32 s%d, s%d, 1" % (S_PAR, S_T0),
              "s_lshr_b32 s%d, s%d, 1" % (S_G, S_T0),
              "s_mul_i32 s%d, s%d, 48" % (S_COL0, S_CS),
              "s_and_b32 s%d, s%d, 1" % (S_HH, S_WAVE),
              "s_lshr_b32 s%d, s%d, 1" % (S_S, S_WAVE),
              "s_mul_i32 s%d, s%d, 320" % (S_T1, S_HH),
              "v_add_u32 v3, s%d, v2" % S_T1,
              "v_mov_b32 v9, v0",
              "v_bfrev_b32 v8, 1",
              "s_mul_i32 s%d, s%d, 24" % (S_T0, S_G),
              "s_add_u32 s%d, s%d, s%d" % (S_T0, S_T0, S_PAR),
              "s_mul_i32 s%d, s%d, 12" % (S_T1, S_S),
              "s_add_u32 s%d, s%d, s%d" % (S_T0, S_T0, S_T1),
              "s_sub_u32 s%d, s%d, 2" % (S_T0, S_T0),
              "s_mul_i32 s%d, s%d, 384" % (S_T0, S_T0),
              "s_add_u32 s%d, s%d, s%d" % (S_T0, S_T0, S_COL0),
              "s_sub_u32 s%d, s%d, 2" % (S_T0, S_T0),
              "s_mul_i32 s%d, s%d, 192" % (S_XBASE, S_T0),
              "s_cmp_eq_u32 s%d, 0" % S_CS,
              "s_cselect_b32 s%d, 2, 0" % S_LO,
              "s_cmp_eq_u32 s%d, 7" % S_CS,
              "s_cselect_b32 s%d, 50, 52" % S_N,
              "s_sub_u32 s%d, s%d, s%d" % (S_N, S_N, S_LO),
              "s_mul_i32 s%d, s%d, 5120" % (S_XM0, S_WAVE),
              "s_lshl_b32 s%d, s%d, 10" % (S_WM0, S_WAVE)]: e(s)
    if WPF:
        e("s_lshr_b32 s%d, s2, 3" % S_TMP)
        e("s_mul_i32 s%d, s%d, 5184" % (S_TMP, S_TMP))
        e("v_lshlrev_b32 v61, 7, v0")
        e("v_cmp_gt_u32 vcc, 5184, v61")
        e("v_add_u32 v61, s%d, v61" % S_TMP)
        e("v_cndmask_b32 v61, v8, v61, vcc")
    for s in woff_calc(0): e(s)
    for s in xoff_calc(0): e(s)
    for s in ["s_mov_b32 s%d, %d" % (S_X+2, X_BYTES),
              "s_mov_b32 s%d, 0x20000" % (S_X+3),
              "s_mov_b32 s%d, %d" % (S_Wd+2, W_BYTES),
              "s_mov_b32 s%d, 0x20000" % (S_Wd+3),
              "s_waitcnt lgkmcnt(0)",
              "s_mov_b32 s%d, s4" % S_X,
              "s_and_b32 s%d, s5, 0xffff" % (S_X+1),
              "s_mov_b32 s%d, s6" % S_Wd,
              "s_and_b32 s%d, s7, 0xffff" % (S_Wd+1)]: e(s)
    stamp()
    def wpf():
        e("buffer_load_dword v62, v61, s[%d:%d], 0 offen" % (S_Wd, S_Wd+3))
        vm.issue()
    if WPF == 99: wpf()
    S = []; need = {}
    if ORD == 0:
        seq = [('x',0,0), ('w',0,0), ('x',0,1), ('w',0,1), ('x',0,2), ('w',0,2), ('x',0,3), ('w',0,3), ('x',0,4), ('w',0,4)]
        seq += [('w',0,k) for k in range(5, 14)]
    elif ORD == 1:
        seq = [('w',0,k) for k in range(14)] + [('x',0,t) for t in range(5)]
    elif ORD == 2:
        seq = [('w',0,k) for k in range(5)] + [('x',0,t) for t in range(5)] + [('w',0,k) for k in range(5, 14)]
    elif ORD == 3:
        seq = [('x',0,t) for t in range(5)] + [('w',0,k) for k in range(14)]
    elif ORD == 4:
        seq = [('w',0,k) for k in range(9)] + [('x',0,t) for t in range(5)] + [('w',0,k) for k in range(9, 14)]
    if ORD == 9:
        seq = [('x',0,0), ('w',0,0), ('x',0,1), ('w',0,1), ('x',0,2), ('w',0,2), ('x',0,3), ('w',0,3), ('x',0,4), ('w',0,4)]
        seq += [('x',1,t) for t in range(5)] + [('w',0,k) for k in range(5, 14)] + [('w',1,k) for k in range(14)]
    elif ORD == 10:
        seq = [('x',0,t) for t in range(5)] + [('x',1,t) for t in range(5)] + [('w',0,k) for k in range(14)] + [('w',1,k) for k in range(14)]
    elif ORD == 11:
        seq = [('x',0,t) for t in range(5)] + [('w',0,k) for k in range(5)] + [('x',1,t) for t in range(5)] + [('w',0,k) for k in range(5, 14)] + [('w',1,k) for k in range(14)]
    elif ORD == 12:
        seq = [('x',0,0), ('w',0,0), ('x',0,1), ('w',0,1), ('x',0,2), ('w',0,2), ('x',0,3), ('w',0,3), ('x',0,4), ('w',0,4)]
        seq += [('w',0,k) for k in range(5, 9)] + [('x',1,t) for t in range(5)] + [('w',0,k) for k in range(9, 14)] + [('w',1,k) for k in range(14)]
    elif ORD == 8:
        seq = []
        for u in range(2):
            for k in range(14):
                if k % XIL == 0 and k // XIL < 5: seq.append(('x', u, k // XIL))
                seq.append(('w', u, k))
    elif ORD == 5:
        seq = [('x',0,0), ('w',0,0), ('x',0,1), ('w',0,1), ('x',0,2), ('w',0,2), ('x',0,3), ('w',0,3), ('x',0,4), ('w',0,4)]
        seq += [('w',0,5), ('x',1,0), ('w',0,6), ('w',0,7), ('x',1,1), ('w',0,8), ('w',0,9), ('x',1,2), ('w',0,10), ('w',0,11), ('x',1,3), ('w',0,12), ('w',0,13), ('x',1,4)]
        seq += [('w',1,k) for k in range(14)]
    elif ORD == 6:
        seq = [('x',0,0), ('w',0,0), ('x',0,1), ('w',0,1), ('x',0,2), ('w',0,2), ('x',0,3), ('w',0,3), ('x',0,4), ('w',0,4)]
        seq += [('w',0,5), ('w',0,6), ('w',0,7), ('w',0,8), ('x',1,0), ('w',0,9), ('x',1,1), ('w',0,10), ('x',1,2), ('w',0,11), ('x',1,3), ('w',0,12), ('x',1,4), ('w',0,13)]
        seq += [('w',1,k) for k in range(14)]
    elif ORD == 7:
        seq = [('x',0,0), ('w',0,0), ('x',0,1), ('w',0,1), ('x',0,2), ('w',0,2), ('x',0,3), ('w',0,3), ('x',0,4), ('w',0,4)]
        seq += [('w',0,k) for k in range(5, 14)]
        seq += [('x',1,0), ('w',1,0), ('x',1,1), ('w',1,1), ('x',1,2), ('w',1,2), ('x',1,3), ('w',1,3), ('x',1,4), ('w',1,4)] + [('w',1,k) for k in range(5, 14)]
    else:
        seq += [('x',1,t) for t in range(5)] + [('w',1,k) for k in range(14)]
    w13 = ["s_add_u32 s%d, s%d, %d" % (S_W2L, S_WM0, WA + 13*4096),
          "s_add_u32 s%d, s%d, %d" % (S_W2L1, S_WM0, WB1 + 13*4096),
          "s_add_u32 s%d, s%d, %d" % (S_W2L2, S_WM0, WA + W2O + 13*4096),
          "s_cmp_ge_u32 s%d, 2\n    s_cselect_b32 s%d, %d, s%d\n    s_cselect_b32 s%d, %d, s%d\n    s_cselect_b32 s%d, %d, s%d" % (S_WAVE, S_W2L, SPARE, S_W2L, S_W2L1, SPARE, S_W2L1, S_W2L2, SPARE, S_W2L2)]
    for d in seq:
        if d[1] != 0: continue
        if d[0] == 'x' and d[2] > 0: S += xoff_calc(d[2]); need[d] = len(S)
        if d[0] == 'w' and d[2] in (1, 2): S += woff_calc(d[2]); need[d] = len(S)
        if d == ('w',0,13): S += w13; need[d] = len(S)
    S += must_setup(); nmust = len(S)
    S += later_setup()
    pos = 0
    for di, d in enumerate(seq):
        us = x_units(d[1], d[2]) if d[0] == 'x' else w_units(d[2], d[1])
        if di >= PRO:
            left_dma.append((d, us)); continue
        tgt = max(need.get(d, 0), min(len(S), pos + (QUO if di >= 2 else 0)))
        if d in (('w',0,13), ('xa',1,0)):
            while pos < need[d]: e(S[pos]); pos += 1
        us[0]()
        while pos < tgt: e(S[pos]); pos += 1
        us[1](); us[2]()
        if WPF and di == WPF - 1: wpf()
    while pos < nmust: e(S[pos]); pos += 1
    for s in S[pos:]: left_setup.append(lambda s=s: e(s))
    stamp()

wid = {}
def tr_units(f):
    ks_l = (f // 3) % 9
    tp = f % 3
    us = []
    for hf in range(2):
        def u(hf=hf):
            off = ks_l*6144 + hf*768 + (W2O if f // 27 == 2 else 0)
            e("ds_read_b64_tr_b16 %s, v%d offset:%d" % (wfrag_half(f, hf), (V_WTR1 if f // 27 == 1 else V_WTR) + tp, off))
            i = lg.issue()
            if hf == 1: wid[f] = i
        us.append(u)
    return us
def triple(ks):
    us = []
    for tp in range(3): us += tr_units(ks*3 + tp)
    return us

swid = {}
def epi_units(t, m):
    if DIRECT:
        acc = V_ACC + 72 + 12*m
        pk = 4 + 6*(m % 2)
        us = [(lambda d=d: e("v_cvt_pk_bf16_f32 v%d, v%d, v%d" % (pk+d, acc+2*d, acc+2*d+1))) for d in range(6)]
        def s4():
            e("buffer_store_dwordx4 %s, v%d, s[%d:%d], 0 offen offset:%d %s" % (vr(pk, 4), V_SR + (m // 2), S_O, S_O+3, (m % 2)*3072, SNT)); vm.issue()
        def s2():
            e("buffer_store_dwordx2 %s, v%d, s[%d:%d], 0 offen offset:%d %s" % (vr(pk+4, 2), V_SR + (m // 2), S_O, S_O+3, (m % 2)*3072 + 16, SNT)); vm.issue()
        us.insert(4, s4); us.append(s2)
        if m == 2:
            us += [lambda: e("v_add_u32 v%d, %d, v%d" % (V_SR, 2*ROWB, V_SR)), lambda: e("v_add_u32 v%d, %d, v%d" % (V_SR+1, 2*ROWB, V_SR+1)), lambda: e("s_mov_b32 s%d, %d" % (S_O+2, X_BYTES))]
        swid[t] = None
        return us
    if NOEPI:
        swid[t] = None
        return []
    acc = V_ACC + 72 + 12*m
    pk = V_PK
    us = []
    for d in range(3):
        us.append(lambda d=d: e("v_cvt_pk_bf16_f32 v%d, v%d, v%d" % (pk+2*d, acc+4*d, acc+4*d+1)))
        us.append(lambda d=d: e("v_cvt_pk_bf16_f32 v%d, v%d, v%d" % (pk+2*d+1, acc+4*d+2, acc+4*d+3)))
        def w(d=d):
            e("ds_write_b64 v%d, %s offset:%d" % (V_SW, vr(pk+2*d, 2), m*2*OPITCH + 8*d))
            swid[t] = lg.issue()
        us.append(w)
    return us

def readback_units(t, part=False):
    if NORB or DIRECT: return []
    us = []
    rid = {}
    for i in range(5):
        def r(i=i):
            e("ds_read_b128 %s, v%d" % (vr(4 + 4*(i % 3), 4), V_SR + i))
            rid[i] = lg.issue()
        def s(i=i):
            if NOST: return
            lg.wait(rid[i])
            if i < 4: e("buffer_store_dwordx4 %s, v%d, s[%d:%d], 0 offen offset:%d %s" % (vr(4 + 4*(i % 3), 4), (22 if part and i > 0 else V_OA), S_O, S_O+3, 1024*i, SNT))
            else: e("buffer_store_dwordx4 %s, v%d, s[%d:%d], 0 offen %s" % (vr(4 + 4*(i % 3), 4), V_OA+1, S_O, S_O+3, SNT))
            vm.issue()
        us.append((r, s))
    adv = [lambda: e("v_add_u32 v%d, %d, v%d" % (V_OA, 2*ROWB, V_OA)), lambda: e("v_add_u32 v%d, %d, v%d" % (V_OA+1, 2*ROWB, V_OA+1)), lambda: e("s_mov_b32 s%d, %d" % (S_O+2, X_BYTES))]
    tog = [lambda i=i: e("v_add_u32 v%d, s%d, v%d" % (V_SR+i, S_TG, V_SR+i)) for i in range(5)]
    tog += [lambda: e("v_add_u32 v%d, s%d, v%d" % (V_SW, S_TG, V_SW)), lambda: e("s_sub_u32 s%d, 0, s%d" % (S_TG, S_TG))]
    if part: return [us[0][0], us[1][0], us[2][0], us[0][1], us[3][0], us[1][1], us[4][0], us[2][1], us[3][1], us[4][1]]
    return [(0, [us[0][0], us[1][0], us[2][0]]), (SSP, [us[0][1], us[3][0]]), (2*SSP, [us[1][1], us[4][0]]), (3*SSP, [us[2][1]] + tog), (4*SSP, [us[3][1]]), (5*SSP, [us[4][1]] + adv)]

def main_loop():
    items = []; Fq = []
    for q in range(8):
        Fq.append(len(items))
        if q < 2:
            for kq in range(9):
                for a in range(3): items.append((q, a + kq // 3, kq % 3, [(a, kq // 3)]))
        else:
            for b in range(5):
                for kk in range(3): items.append((q, b, kk, [(a, b - a) for a in range(3) if 0 <= b - a <= 2]))
    N = len(items); Fq.append(N)
    lastb = {}
    for n, it in enumerate(items): lastb[(it[0], it[1])] = n
    lastb = set(lastb.values())
    ev = {}; evm = {}
    def at(n, fn): ev.setdefault(max(n, 0), []).append(fn)
    def atq(n, units): at(n, lambda: fq.extend(units))
    def atm(q, k, units): evm.setdefault((q, k), []).append(units)
    F = lambda q: Fq[q]
    E = lambda q: F(q+1) - D
    ldid = {}
    def load(n):
        if n >= N: return
        q, b, kk, _ = items[n]
        if NOLD and q >= 2: ldid[n] = 0
        else:
            e("ds_read_b128 %s, v%d offset:%d" % (vr(V_B + 4*(n % NB), 4), V_BA + b, kk*64))
            ldid[n] = lg.issue()
        if n in lastb and q < 7: e("v_add_u32 v%d, s%d, v%d" % (V_BA+b, S_DL, V_BA+b))
    def dl_calc():
        e("s_lshr_b32 s%d, s%d, 4" % (S_RT, S_RT))
        e("s_and_b32 s%d, s%d, 15" % (S_TMP, S_RT))
        e("s_cselect_b32 s%d, 45056, 0" % S_DL)
        e("s_mul_i32 s%d, s%d, 10240" % (S_TMP, S_TMP))
        e("s_add_u32 s%d, s%d, s%d" % (S_TMP, S_TMP, S_DL))
        e("s_sub_u32 s%d, s%d, s%d" % (S_DL, S_TMP, S_CUR))
        e("s_mov_b32 s%d, s%d" % (S_CUR, S_TMP))
    def barrier(vmids=(), lgids=(), dl=False):
        def fn():
            flush()
            if dl: dl_calc()
            for x in lgids: lg.wait(x())
            for x in vmids: vm.wait(x())
            e("s_barrier")
            stamp()
        return fn
    W = lambda i, k: (lambda: ids[('w', i, k)])
    X = lambda u: (lambda: ids.get(('x', u)))
    assert LQ == 2
    pos = 0
    for d, us in left_dma:
        atq(pos, us); pos += SPL
    if XPF:
        def xpf():
            e("buffer_load_dword v27, v29, s[%d:%d], 0 offen" % (S_X, S_X+3)); vm.issue()
        for r in range(XPF):
            atq(min(pos, XPP), [xpf, lambda: e("v_add_u32 v29, %d, v29" % (2*ROWB))])
    atq(max(pos, 6), left_setup)
    def g2seq(lo, hi):
        sq = []
        for k in range(lo, hi):
            if XW2 and k % XW2 == 0 and k // XW2 < 5: sq.append(x_units(2, k // XW2, dyn=True))
            sq.append(w_units(k, 2))
        return sq
    if not FRONT:
        for i in range(2):
            for kq in range(9):
                if i == 0 and kq < 2: continue
                p = F(i) + 3*(kq-1) - 1
                if kq == 3: at(p, barrier(vmids=[W(i,8)]))
                if kq == 6: at(p, barrier(vmids=[W(i,13)]))
                if i == 1 and kq == 0:
                    assert p == E(0)
                    at(p, barrier(vmids=[X(1), W(1, 4)], lgids=[lambda: wid[26], lambda: ldid[26]], dl=True))
                    q = p + 1
                    atq(q, xd_units())
                    if XW2 == 0:
                        for tt in range(5): atq(q, x_units(2, tt, dyn=True)); q += SPW
                    for us in g2seq(0, 14): atq(q, us); q += SPW
                atq(p, triple(9*i + kq))
        l3p = E(1) + 1
    else:
        for kq in range(2, 9): atq(kq - 2, triple(kq))
        at(C0P, barrier(lgids=[lambda: wid[26]]))
        q = C0P
        atq(q, xd_units())
        if XW2 == 0:
            for tt in range(5): atq(q, x_units(2, tt, dyn=True)); q += G2S
        for us in g2seq(0, 11): atq(q, us); q += G2S
        at(E(0), barrier(vmids=[X(1), W(1, 4)], lgids=[lambda: ldid[26]], dl=True))
        q = max(q, E(0) + 1)
        for us in g2seq(11, 14): atq(q, us); q += 1
        for kq in range(3): atq(E(0) + kq, triple(9 + kq))
        at(F(1) + J1A, barrier(vmids=[W(1,8)]))
        for kq in range(3, 6): atq(F(1) + J1A + kq - 3, triple(9 + kq))
        at(F(1) + J1B, barrier(vmids=[W(1,13)]))
        for kq in range(6, 9): atq(F(1) + J1B + kq - 6, triple(9 + kq))
        at(F(1) + C1P, barrier(lgids=[lambda: wid[53]]))
        l3p = F(1) + C1P
    at(F(1) + W2B, barrier(vmids=[W(2,8)]))
    for kq in range(6): atq(F(1) + W2B + (kq*(E(1) - F(1) - W2B))//6, triple(18 + kq))
    at(E(1), barrier(vmids=[X(2), W(2, 13)], lgids=[lambda: wid[53], lambda: wid[23*3+2]], dl=True))
    for kq in range(6, 9): atq(E(1), triple(18 + kq))
    atq(l3p, xd_units())
    for tt in range(5): atq(l3p + (tt if FRONT else tt // 2), x_units(3, tt, dyn=True))
    for q in range(2, 8):
        b = F(q)
        ni = 3 if q <= 5 else 8 - q
        sc = lambda k: (k * ni) // 3
        atm(q, sc(6), epi_units(q-3, 2))
        if q <= 5:
            atm(q, sc(18), multi("s_cmp_eq_u32 s%d, 3\n    s_cselect_b32 s%d, s%d, %d\n    s_cmp_ge_u32 s%d, 5\n    s_cselect_b32 s%d, 0, %d" % (S_IT, S_XINC, S_XJ, 2*ROWB, S_IT, S_X+2, X_BYTES)))
            atm(q, sc(18), xd_units())
        sb = SB if q < 7 else SB + 1
        at(b + sb, barrier(lgids=[lambda q=q: swid[q-3]]))
        m0 = sc(27 + 18*(sb - 3)) + 1
        for o, u in readback_units(q-3): atm(q, m0 + sc(o*RSP), u)
        if q <= 5:
            for tt in range(5):
                if not NOXD: atm(q, m0 + sc((3*tt + 1)*RSP + 1), x_units(q+2, tt, dyn=True))
        atm(q, sc(162 + 9), epi_units(q-2, 0))
        atm(q, sc(216 + 9), epi_units(q-2, 1))
        if q <= 5: at(E(q), barrier(vmids=[X(q+1)], dl=True))
        elif q == 6: pass
    vm.wait(max(ids[('w',0,13 if FRONT else 4)], ids[('x',0)]))
    e("s_barrier")
    stamp()
    dl_calc()
    for u in triple(0): u()
    for n in range(D): load(n)
    for u in triple(1): u()
    marks = []
    def close_loop():
        flush()
        marks.append(len(out))
        inloop[0] = False
        bodies = [out[marks[k]:marks[k+1]] for k in range(6 - LQ)]
        assert all(len(bd) == len(bodies[0]) for bd in bodies), [len(bd) for bd in bodies]
        merged = []
        rx = re.compile(r"\s*s_waitcnt (\w+)\((\d+)\)")
        for lines in zip(*bodies):
            if all(l == lines[0] for l in lines):
                if ";opt" in lines[0]: continue
                merged.append(lines[0]); continue
            ms = [rx.match(l) for l in lines]
            assert all(ms) and len(set(mm.group(1) for mm in ms)) == 1, lines
            merged.append("    s_waitcnt %s(%d)" % (ms[0].group(1), min(int(mm.group(2)) for mm in ms)))
        del out[marks[0]:]
        out.append("L_loop:")
        out.extend(merged)
        e("s_add_u32 s%d, s%d, 1" % (S_IT, S_IT))
        e("s_cmp_lt_u32 s%d, 6" % S_IT)
        e("s_cbranch_scc1 L_loop")
        stamp()
        if SK == 2:
            e("s_memrealtime s[70:71]"); e("s_waitcnt lgkmcnt(0)"); lg.clear()
    mc = 0
    for n in range(N):
        q, b_, kk, combos = items[n]
        if n == F(q): mc = 0
        if n == F(q) and LQ <= q <= 5:
            flush()
            if q == LQ:
                stamp()
                if SK == 2:
                    e("s_memrealtime s[66:67]"); e("s_waitcnt lgkmcnt(0)"); lg.clear()
            inloop[0] = True
            marks.append(len(out))
        if n == F(6): close_loop()
        for fn in ev.get(n, []): fn()
        iset = [i for i in (2, 1, 0) if 0 <= q - i <= 5]
        needw = [(9*i + 3*j + kk)*3 + tp for (a, j) in combos for i in iset for tp in range(3)]
        load(n + D)
        while any(f not in wid for f in needw): fq.popleft()()
        lg.wait(max([ldid[n]] + [wid[f] for f in needw]))
        b = vr(V_B + 4*(n % NB), 4)
        cnt = 0; tot = 3*len(iset)*len(combos)
        for (a_, j) in combos:
            for i in iset:
                for tp in range(3):
                    a = vr(V_ACC + 36*i + 12*a_ + 4*tp, 4)
                    c = a if (j, kk) != (0, 0) else "0" if i == 0 else vr(V_ACC + 36*(i-1) + 12*a_ + 4*tp, 4)
                    e("v_mfma_f32_16x16x32_bf16 %s, %s, %s, %s" % (a, wfrag((9*i+3*j+kk)*3+tp), b, c))
                    cnt += 1; mc += 1
                    for us in evm.get((q, mc), []): fq.extend(us)
                    fill(0 if (cnt == tot and tot > 3) else 1)
    flush()
    stamp()
    e("s_nop 7")
    e("s_nop 7")
    if TT:
        acc = V_ACC + 72 + 24
        for d in range(6): e("v_cvt_pk_bf16_f32 v%d, v%d, v%d" % (V_PK+d, acc+2*d, acc+2*d+1))
        e("buffer_store_dwordx4 %s, v21, s[%d:%d], 0 offen %s" % (vr(V_PK, 4), S_O, S_O+3, SNT))
        e("buffer_store_dwordx2 %s, v21, s[%d:%d], 0 offen offset:16 %s" % (vr(V_PK+4, 2), S_O, S_O+3, SNT))
    else:
        for u in epi_units(5, 2): u()
        if not DIRECT: barrier(lgids=[lambda: swid[5]])()
        for o, us in readback_units(5):
            for u in us: u()
    stamp()
    e("s_waitcnt vmcnt(0)")
    stamp()
    rstamp()
    if STAMP:
        e("s_mov_b32 s%d, s90" % (64 + nstamp[0])); nstamp[0] += 1
    dump_stamps()
    if SK:
        e("s_memrealtime s[68:69]")
        if SK == 1: e("s_memtime s[70:71]")
        e("s_load_dwordx2 s[46:47], s[0:1], 32")
        e("s_waitcnt lgkmcnt(0)")
        e("s_mov_b32 s48, s46")
        e("s_and_b32 s49, s47, 0xffff")
        e("s_mov_b32 s50, 65536")
        e("s_mov_b32 s51, 0x20000")
        e("s_lshl_b32 s53, s2, 2")
        e("s_add_u32 s53, s53, s%d" % S_WAVE)
        e("s_lshl_b32 s53, s53, 4")
        e("v_mov_b32 v1, s53")
        e("v_mov_b32 v4, s64")
        e("v_mov_b32 v5, s68")
        e("v_mov_b32 v6, s66")
        e("v_mov_b32 v7, s70")
        e("buffer_store_dwordx4 v[4:7], v1, s[48:51], 0 offen")
        e("s_waitcnt vmcnt(0)")

header()
prologue()
main_loop()
footer()
open(sys.argv[1], "w").write("\n".join(out) + "\n")
print("lines", len(out), "stamps", nstamp[0])
```

```python
import sys, os, re
from collections import deque

KNAME = "standalone__dilated_atrous__vision_kernel"
X_BYTES = 384*384*96*2
W_BYTES = 9*96*96*2
ROWB = 384*192
SLOT = 10240
WA = 0
XB = 55296
WB1 = 106496
SPARE = 161792
OPITCH = 208
NB = 5
def P(n, d): return int(os.environ.get(n, str(d)))
D = P("D", 4)
PRO = P("PRO", 24)
QUO = P("QUO", 8)
SPL = P("SPL", 1)
SPW = P("SPW", 1)
SSP = P("SSP", 3)
WSPLIT = P("WSPLIT", 1)
CPF = P("CPF", 1)
WPF = P("WPF", 0)
FC = [int(c) for c in os.environ.get("FC", "111")]
FC0 = [int(c) for c in os.environ.get("FC0", "111")]
LQ = P("LQ", 2)
WSL = P("WSL", 32)
XPF = P("XPF", 0)
XPP = P("XPP", 99)
FRONT = P("FRONT", 0)
C0P = P("C0P", 12)
C1P = P("C1P", 13)
J1A = P("J1A", 3)
J1B = P("J1B", 8)
G2S = P("G2S", 1)
W2O = 10240
DIRECT = P("DIRECT", 0)
NOLD = P("NOLD", 0)
NOST = P("NOST", 0)
TT = P("TT", 0)
TB = P("TB", 22)
XIL = P("XIL", 3)
XW2 = P("XW2", 0)
W2B = P("W2B", 18)
SB = P("SB", 3)
RSP = P("RSP", 3)
SK = P("SK", 0)
ORD = P("ORD", 0)
XSP = P("XSP", 0)
LDP = P("LDP", 0)
LDP0 = P("LDP0", 0)
SPLITS = P("SPLITS", 0)
BOOST = P("BOOST", 7)
NOBA = P("NOBA", 0); NOXD = P("NOXD", 0); NOEPI = P("NOEPI", 0); NORB = P("NORB", 0); NOBAR = P("NOBAR", 0)
XNT = os.environ.get("XNT", "nt ")
SNT = os.environ.get("SNT", "sc1")

STAMP = len(sys.argv) > 2 and sys.argv[2] == "stamp"
out = []
def e(s): out.append("    " + s)

V_XOFF = 16; V_WOFF = 21; V_WTR = 24; V_BA = 64; V_SW = 30; V_SR = 31; V_OA = 36; V_PK = 38; V_B = 44; V_ACC = 80
V_W = 188; V_WTR1 = 13

def wfrag(f):
    if f < 64: return "a[%d:%d]" % (4*f, 4*f+3)
    b = V_W + 4*(f-64)
    return "v[%d:%d]" % (b, b+3)
def wfrag_half(f, hf):
    if f < 64: return "a[%d:%d]" % (4*f+2*hf, 4*f+2*hf+1)
    b = V_W + 4*(f-64) + 2*hf
    return "v[%d:%d]" % (b, b+1)
def vr(b, n): return "v[%d:%d]" % (b, b+n-1)

S_X = 8; S_Wd = 12; S_O = 16
S_WAVE = 20; S_HH = 21; S_S = 22; S_CS = 23; S_PAR = 24; S_G = 25
S_T0 = 26; S_T1 = 27; S_T2 = 28; S_T3 = 29
S_XM0 = 32; S_WM0 = 33; S_COL0 = 34; S_W2L = 35; S_LO = 38; S_N = 39; S_XBASE = 42; S_W2L1 = 43
S_RT = 56; S_LT = 57; S_CUR = 58
S_TG = 59; S_XD = 60; S_IT = 61; S_TMP = 62; S_DL = 63; S_XH = 30; S_XINC = 31; S_XJ = 40; S_TMP2 = 41; S_W2L2 = 84; S_TMP3 = 85

nstamp = [0]
inloop = [False]
def stamp():
    if not STAMP or inloop[0]: return
    k = nstamp[0]; nstamp[0] += 1
    e("s_memtime s[44:45]")
    e("s_waitcnt lgkmcnt(0)")
    lg.clear()
    e("s_mov_b32 s%d, s44" % (64 + k))
def rstamp():
    if not STAMP: return
    k = nstamp[0]; nstamp[0] += 1
    e("s_memrealtime s[44:45]")
    e("s_waitcnt lgkmcnt(0)")
    lg.clear()
    e("s_mov_b32 s%d, s44" % (64 + k))
def dump_stamps():
    if not STAMP: return
    e("s_load_dwordx2 s[46:47], s[0:1], 24")
    e("s_waitcnt lgkmcnt(0)")
    e("s_mov_b32 s48, s46")
    e("s_and_b32 s49, s47, 0xffff")
    e("s_mov_b32 s50, 256")
    e("s_mov_b32 s51, 0x20000")
    e("s_mov_b32 s52, 1024")
    e("s_lshl_b32 s53, s2, 2")
    e("s_add_u32 s53, s53, s%d" % S_WAVE)
    e("s_cmp_eq_u32 s53, 0")
    e("s_cselect_b32 s52, 0, s52")
    e("s_cmp_eq_u32 s53, %d" % (133*4+3))
    e("s_cselect_b32 s52, 128, s52")
    e("v_mov_b32 v1, s52")
    n = nstamp[0]
    e("s_sub_u32 s92, s%d, s%d" % (64+n-2, 64+n-1))
    e("v_mov_b32 v2, s92")
    e("buffer_store_dword v2, v1, s[48:51], 0 offen offset:0")
    for k in range(1, n-2):
        e("s_sub_u32 s92, s%d, s64" % (64+k))
        e("v_mov_b32 v2, s92")
        e("buffer_store_dword v2, v1, s[48:51], 0 offen offset:%d" % (4*k))
    e("s_waitcnt vmcnt(0)")

class Tracker:
    def __init__(self, name, maxv):
        self.name = name; self.maxv = maxv; self.done = 0; self.n = 0
    def issue(self):
        self.n += 1
        return self.n
    def wait(self, opid):
        if opid is None or opid <= self.done:
            if inloop[0]: e("s_waitcnt %s(%d) ;opt" % (self.name, self.maxv))
            return
        cnt = min(self.n - opid, self.maxv)
        e("s_waitcnt %s(%d)" % (self.name, cnt))
        self.done = self.n - cnt
    def clear(self):
        self.done = self.n
lg = Tracker("lgkmcnt", 15)
vm = Tracker("vmcnt", 63)

def header():
    out.append("""; Kernarg layout for this problem (40 bytes, ptrs only, base s[0:1]):
;   offset   0: d_in[0] x  shape=(1, 384, 384, 96) dtype=bfloat16
;   offset   8: d_in[1] w  shape=(3, 3, 96, 96) dtype=bfloat16
;   offset  16: d_out     shape=(1, 384, 384, 96) dtype=bfloat16 (2 bytes/elem)
;   offset  24: d_debug   256 bytes
;   offset  32: d_ws      268435456 bytes workspace
; @launch grid=(256,1,1) block=(256,1,1) lds=163840
.amdgcn_target "amdgcn-amd-amdhsa--gfx950"
.text
.globl %s
.p2align 8
.type %s,@function
%s:""" % (KNAME, KNAME, KNAME))

def footer():
    out.append("""L_end:
    s_endpgm
.section .rodata,"a"
.p2align 6
.amdhsa_kernel %s
  .amdhsa_next_free_vgpr 512
  .amdhsa_next_free_sgpr 100
  .amdhsa_accum_offset 256
  .amdhsa_group_segment_fixed_size 0
  .amdhsa_kernarg_size 40
  .amdhsa_user_sgpr_count 2
  .amdhsa_user_sgpr_kernarg_segment_ptr 1
  .amdhsa_system_sgpr_workgroup_id_x 1
.end_amdhsa_kernel""" % KNAME)

ids = {}
fq = deque()
def multi(txt):
    parts = [p.strip() for p in txt.split("\n")]
    if not SPLITS: return [lambda: e(txt)]
    return [(lambda p=p: e(p)) for p in parts]
def fill(k=1):
    if len(fq) > BOOST and k > 0: k += 1
    for _ in range(k):
        if fq: fq.popleft()()
def flush():
    while fq: fq.popleft()()

def w_units(k, i):
    r = V_WOFF + (k % 3)
    base = WB1 if i == 1 else WA + W2O if i == 2 else WA
    def u0():
        if k == 13: e("s_mov_b32 m0, s%d" % (S_W2L1 if i == 1 else S_W2L2 if i == 2 else S_W2L))
        else: e("s_add_u32 m0, s%d, %d" % (S_WM0, base + k*4096))
    def u1():
        if " m0," in out[-1]: e("s_nop 0")
        e("buffer_load_dwordx4 v%d, s[%d:%d], 0 offen lds" % (r, S_Wd, S_Wd+3))
        ids[('w', i, k)] = vm.issue()
    def u2():
        c = k % 3
        if k + 3 <= 13: adv = 12288
        else: adv = 55296 - (k - c)*4096
        e("v_add_u32 v%d, 0x%x, v%d" % (r, adv, r))
    return [u0, u1, u2]
def x_units(u, t, dyn=False):
    def u0():
        if dyn: e("s_add_u32 m0, s%d, %d" % (S_XD, t*1024))
        else: e("s_add_u32 m0, s%d, %d" % (S_XM0, XB + 20480*u + t*1024))
    def u1():
        if " m0," in out[-1]: e("s_nop 0")
        e("buffer_load_dwordx4 v%d, s[%d:%d], 0 offen %slds" % (V_XOFF+t, S_X, S_X+3, XNT))
        ids[('x', u)] = vm.issue()
    def u2():
        if dyn: e("v_add_u32 v%d, s%d, v%d" % (V_XOFF+t, S_XINC, V_XOFF+t))
        else: e("v_add_u32 v%d, %d, v%d" % (V_XOFF+t, 2*ROWB, V_XOFF+t))
    return [u0, u1, u2]
def xd_units():
    return multi("s_and_b32 s%d, s%d, 15\n    s_cselect_b32 s%d, 45056, 0\n    s_mul_i32 s%d, s%d, 10240\n    s_add_u32 s%d, s%d, s%d\n    s_add_u32 s%d, s%d, s%d\n    s_lshr_b32 s%d, s%d, 4" % (S_TMP2, S_LT, S_TMP3, S_TMP2, S_TMP2, S_XD, S_TMP2, S_XH, S_XD, S_XD, S_TMP3, S_LT, S_LT))

def xoff_calc(t):
    L = []
    if t > 0: L.append("v_add_u32 v3, 64, v3")
    L += ["v_mul_u32_u24 v4, 43691, v3",
          "v_lshrrev_b32 v4, 19, v4",
          "v_mul_u32_u24 v5, 12, v4",
          "v_sub_u32 v5, v3, v5",
          "v_lshrrev_b32 v6, 1, v4",
          "v_and_b32 v6, 2, v6",
          "v_xor_b32 v5, v5, v6",
          "v_mul_u32_u24 v7, 192, v4",
          "v_subrev_u32 v6, s%d, v4" % S_LO,
          "v_lshl_add_u32 v7, v5, 4, v7",
          "v_cmp_gt_u32 vcc, s%d, v6" % S_N,
          "v_add_u32 v7, s%d, v7" % S_XBASE,
          "v_cndmask_b32 v%d, v8, v7, vcc" % (V_XOFF+t)]
    return L
def woff_calc(c):
    L = []
    if c > 0: L.append("v_add_u32 v9, 0x100, v9")
    L += ["v_mul_u32_u24 v10, 43691, v9",
          "v_lshrrev_b32 v10, 19, v10",
          "v_mul_u32_u24 v11, 12, v10",
          "v_sub_u32 v11, v9, v11",
          "v_lshrrev_b32 v12, 2, v10",
          "v_and_b32 v12, 2, v12",
          "v_sub_u32 v11, v11, v12",
          "v_add_u32 v12, 12, v11",
          "v_cmp_gt_i32 vcc, 0, v11",
          "v_mul_u32_u24 v13, 192, v10",
          "v_cndmask_b32 v11, v11, v12, vcc",
          "v_lshl_add_u32 v%d, v11, 4, v13" % (V_WOFF + c)]
    return L
def must_setup():
    L = []
    L += ["v_lshrrev_b32 v3, 4, v2",
          "v_lshrrev_b32 v4, 2, v2",
          "v_and_b32 v4, 3, v4",
          "v_lshl_add_u32 v4, v3, 3, v4",
          "v_mul_u32_u24 v4, 192, v4",
          "v_and_b32 v5, 3, v2",
          "v_mul_u32_u24 v5, 24, v5",
          "s_mul_i32 s%d, s%d, 96" % (S_T2, S_HH),
          "v_add_u32 v5, s%d, v5" % S_T2,
          "v_and_b32 v6, 1, v3",
          "v_lshlrev_b32 v6, 5, v6",
          "v_add_u32 v5, v5, v6"]
    for tp in range(3):
        L += ["v_add_u32 v6, %d, v5" % (8*tp),
              "v_subrev_u32 v7, 192, v6",
              "v_cmp_le_u32 vcc, 192, v6",
              "v_cndmask_b32 v6, v6, v7, vcc",
              "v_add_u32 v%d, v4, v6" % (V_WTR + tp)]
    L += ["v_and_b32 v4, 15, v2",
          "s_mul_i32 s%d, s%d, %d" % (S_CUR, S_S, SLOT),
          "s_add_u32 s%d, s%d, %d" % (S_CUR, S_CUR, XB)]
    L += ["v_lshrrev_b32 v5, 1, v4",
          "v_and_b32 v6, 1, v4",
          "v_mul_u32_u24 v5, 6, v5",
          "v_add_u32 v28, v5, v6"]
    for j in range(5):
        L += ["v_add_u32 v5, %d, v28" % (2*j),
              "v_lshrrev_b32 v6, 1, v5",
              "v_and_b32 v6, 2, v6",
              "v_xor_b32 v6, v6, v3",
              "v_mul_u32_u24 v5, 192, v5",
              "v_lshl_add_u32 v5, v6, 4, v5",
              "v_add_u32 v%d, s%d, v5" % (V_BA+j, S_CUR)]
    L += ["s_mov_b32 s%d, 0x15397042" % S_RT, "s_mov_b32 s%d, 0x713970" % S_LT, "s_mov_b32 s%d, %d" % (S_XJ, 4*ROWB),
          "s_cmp_eq_u32 s%d, 0\n    s_cselect_b32 s%d, 0x42a86531, s%d\n    s_cselect_b32 s%d, 0x65a865, s%d\n    s_cselect_b32 s%d, %d, s%d" % (S_S, S_RT, S_RT, S_LT, S_LT, S_XJ, 14*ROWB, S_XJ),
          "s_mul_i32 s%d, s%d, 5120" % (S_XH, S_HH),
          "s_mov_b32 s%d, %d" % (S_XINC, 2*ROWB)]
    for tp in range(3): L.append("v_add_u32 v%d, %d, v%d" % (V_WTR1+tp, WB1, V_WTR+tp))
    if XPF:
        L += ["v_lshlrev_b32 v29, 7, v2",
              "s_add_u32 s%d, s%d, s%d" % (S_TMP3, S_XBASE, S_XH),
              "s_add_u32 s%d, s%d, %d" % (S_TMP3, S_TMP3, 4*ROWB),
              "v_cmp_gt_u32 vcc, 40, v2",
              "v_add_u32 v29, s%d, v29" % S_TMP3,
              "v_cndmask_b32 v29, v8, v29, vcc"]
    return L
def later_setup():
    L = []
    L += ["s_mov_b32 s%d, s36" % S_O,
          "s_and_b32 s%d, s37, 0xffff" % (S_O+1),
          "s_mov_b32 s%d, %d" % (S_O+2, X_BYTES if LQ == 3 else 0),
          "s_mov_b32 s%d, 0x20000" % (S_O+3),
          "s_mov_b32 s%d, 20480" % S_TG,
          "s_mov_b32 s%d, %d" % (S_IT, LQ),
          "s_mul_i32 s%d, s%d, 9984" % (S_T3, S_S),
          "s_add_u32 s%d, s%d, %d" % (S_T3, S_T3, W2O),
          "s_add_u32 s%d, s%d, s%d" % (S_T2, S_T2, S_T3),
          "v_mul_u32_u24 v5, %d, v28" % OPITCH,
          "v_mul_u32_u24 v6, 24, v3",
          "v_add3_u32 v%d, v5, v6, s%d" % (V_SW, S_T2),
          "s_mul_i32 s%d, s%d, 320" % (S_T2, S_HH),
          "v_add_u32 v5, s%d, v2" % S_T2]
    for i in range(5):
        if i: L.append("v_add_u32 v5, 64, v5")
        L += ["v_mul_u32_u24 v6, 43691, v5",
              "v_lshrrev_b32 v6, 19, v6",
              "v_mul_u32_u24 v7, 12, v6",
              "v_sub_u32 v7, v5, v7",
              "v_mul_u32_u24 v6, %d, v6" % OPITCH,
              "v_lshl_add_u32 v6, v7, 4, v6",
              "v_add_u32 v%d, s%d, v6" % (V_SR + i, S_T3)]
    L += ["s_lshl_b32 s%d, s%d, 1" % (S_T2, S_G),
          "s_add_u32 s%d, s%d, s%d" % (S_T2, S_T2, S_S),
          "s_mul_i32 s%d, s%d, 12" % (S_T2, S_T2),
          "s_sub_u32 s%d, s%d, %d" % (S_T2, S_T2, 0 if LQ == 3 else 2),
          "s_add_u32 s%d, s%d, s%d" % (S_T2, S_T2, S_PAR),
          "s_mul_i32 s%d, s%d, 384" % (S_T2, S_T2),
          "s_add_u32 s%d, s%d, s%d" % (S_T2, S_T2, S_COL0),
          "s_mul_i32 s%d, s%d, 192" % (S_T2, S_T2),
          "s_mul_i32 s%d, s%d, 5120" % (S_T3, S_HH),
          "s_add_u32 s%d, s%d, s%d" % (S_T2, S_T2, S_T3),
          "v_lshlrev_b32 v5, 4, v2",
          "v_add_u32 v%d, s%d, v5" % (V_OA, S_T2),
          "s_mul_i32 s%d, s%d, 0x40000000" % (S_T3, S_HH),
          "s_add_u32 s%d, s%d, 4096" % (S_T3, S_T3),
          "v_add_u32 v%d, s%d, v%d" % (V_OA+1, S_T3, V_OA)]
    if DIRECT:
        L += ["v_mul_u32_u24 v5, 192, v4", "v_mul_u32_u24 v6, 24, v3",
              "s_mul_i32 s%d, s%d, %d" % (S_T3, S_HH, 96 - 5120),
              "s_add_u32 s%d, s%d, s%d" % (S_T2, S_T2, S_T3),
              "v_add3_u32 v%d, v5, v6, s%d" % (V_SR, S_T2),
              "v_add_u32 v%d, 6144, v%d" % (V_SR+1, V_SR)]
    return L

left_dma = []
left_setup = []
def prologue():
    e("s_cmp_ge_u32 s2, 256")
    e("s_cbranch_scc1 L_end")
    stamp()
    if SK:
        e("s_memrealtime s[64:65]")
        if SK == 1: e("s_memtime s[66:67]")
    if STAMP:
        e("s_memrealtime s[44:45]")
        e("s_waitcnt lgkmcnt(0)")
        e("s_mov_b32 s90, s44")
    e("s_load_dwordx4 s[4:7], s[0:1], 0")
    e("s_load_dwordx2 s[36:37], s[0:1], 16")
    if CPF:
        e("s_getpc_b64 s[54:55]")
        out.append("L_pc:")
        e("v_lshlrev_b32 v10, 7, v0")
        e("v_min_u32 v10, (L_end - L_pc), v10")
        e("v_mov_b32 v11, s55")
        e("v_add_co_u32 v10, vcc, s54, v10")
        e("v_addc_co_u32 v11, vcc, 0, v11, vcc")
        e("global_load_dword v63, v[10:11], off")
        vm.issue()
    for s in [
              "v_lshrrev_b32 v1, 6, v0",
              "v_and_b32 v2, 63, v0",
              "s_and_b32 s%d, s2, 7" % S_CS,
              "v_readfirstlane_b32 s%d, v1" % S_WAVE,
              "s_lshr_b32 s%d, s2, 3" % S_T0,
              "s_and_b32 s%d, s%d, 1" % (S_PAR, S_T0),
              "s_lshr_b32 s%d, s%d, 1" % (S_G, S_T0),
              "s_mul_i32 s%d, s%d, 48" % (S_COL0, S_CS),
              "s_and_b32 s%d, s%d, 1" % (S_HH, S_WAVE),
              "s_lshr_b32 s%d, s%d, 1" % (S_S, S_WAVE),
              "s_mul_i32 s%d, s%d, 320" % (S_T1, S_HH),
              "v_add_u32 v3, s%d, v2" % S_T1,
              "v_mov_b32 v9, v0",
              "v_bfrev_b32 v8, 1",
              "s_mul_i32 s%d, s%d, 24" % (S_T0, S_G),
              "s_add_u32 s%d, s%d, s%d" % (S_T0, S_T0, S_PAR),
              "s_mul_i32 s%d, s%d, 12" % (S_T1, S_S),
              "s_add_u32 s%d, s%d, s%d" % (S_T0, S_T0, S_T1),
              "s_sub_u32 s%d, s%d, 2" % (S_T0, S_T0),
              "s_mul_i32 s%d, s%d, 384" % (S_T0, S_T0),
              "s_add_u32 s%d, s%d, s%d" % (S_T0, S_T0, S_COL0),
              "s_sub_u32 s%d, s%d, 2" % (S_T0, S_T0),
              "s_mul_i32 s%d, s%d, 192" % (S_XBASE, S_T0),
              "s_cmp_eq_u32 s%d, 0" % S_CS,
              "s_cselect_b32 s%d, 2, 0" % S_LO,
              "s_cmp_eq_u32 s%d, 7" % S_CS,
              "s_cselect_b32 s%d, 50, 52" % S_N,
              "s_sub_u32 s%d, s%d, s%d" % (S_N, S_N, S_LO),
              "s_mul_i32 s%d, s%d, 5120" % (S_XM0, S_WAVE),
              "s_lshl_b32 s%d, s%d, 10" % (S_WM0, S_WAVE)]: e(s)
    if WPF:
        sl = W_BYTES // WSL
        e("s_lshr_b32 s%d, s2, 3" % S_TMP)
        e("s_and_b32 s%d, s%d, %d" % (S_TMP, S_TMP, WSL - 1))
        e("s_mul_i32 s%d, s%d, %d" % (S_TMP, S_TMP, sl))
        e("v_lshlrev_b32 v61, 7, v0")
        if sl > 32768:
            e("v_add_u32 v60, 32768, v61")
            e("v_cmp_gt_u32 vcc, %d, v60" % sl)
            e("v_add_u32 v60, s%d, v60" % S_TMP)
            e("v_cndmask_b32 v60, v8, v60, vcc")
            e("v_add_u32 v61, s%d, v61" % S_TMP)
        else:
            e("v_cmp_gt_u32 vcc, %d, v61" % sl)
            e("v_add_u32 v61, s%d, v61" % S_TMP)
            e("v_cndmask_b32 v61, v8, v61, vcc")
    for s in woff_calc(0): e(s)
    for s in xoff_calc(0): e(s)
    for s in ["s_mov_b32 s%d, %d" % (S_X+2, X_BYTES),
              "s_mov_b32 s%d, 0x20000" % (S_X+3),
              "s_mov_b32 s%d, %d" % (S_Wd+2, W_BYTES),
              "s_mov_b32 s%d, 0x20000" % (S_Wd+3),
              "s_waitcnt lgkmcnt(0)",
              "s_mov_b32 s%d, s4" % S_X,
              "s_and_b32 s%d, s5, 0xffff" % (S_X+1),
              "s_mov_b32 s%d, s6" % S_Wd,
              "s_and_b32 s%d, s7, 0xffff" % (S_Wd+1)]: e(s)
    stamp()
    def wpf():
        e("buffer_load_dword v62, v61, s[%d:%d], 0 offen" % (S_Wd, S_Wd+3))
        vm.issue()
        if W_BYTES // WSL > 32768:
            e("buffer_load_dword v59, v60, s[%d:%d], 0 offen" % (S_Wd, S_Wd+3))
            vm.issue()
    if WPF == 99: wpf()
    S = []; need = {}
    if ORD == 0:
        seq = [('x',0,0), ('w',0,0), ('x',0,1), ('w',0,1), ('x',0,2), ('w',0,2), ('x',0,3), ('w',0,3), ('x',0,4), ('w',0,4)]
        seq += [('w',0,k) for k in range(5, 14)]
    elif ORD == 1:
        seq = [('w',0,k) for k in range(14)] + [('x',0,t) for t in range(5)]
    elif ORD == 2:
        seq = [('w',0,k) for k in range(5)] + [('x',0,t) for t in range(5)] + [('w',0,k) for k in range(5, 14)]
    elif ORD == 3:
        seq = [('x',0,t) for t in range(5)] + [('w',0,k) for k in range(14)]
    elif ORD == 4:
        seq = [('w',0,k) for k in range(9)] + [('x',0,t) for t in range(5)] + [('w',0,k) for k in range(9, 14)]
    if ORD == 9:
        seq = [('x',0,0), ('w',0,0), ('x',0,1), ('w',0,1), ('x',0,2), ('w',0,2), ('x',0,3), ('w',0,3), ('x',0,4), ('w',0,4)]
        seq += [('x',1,t) for t in range(5)] + [('w',0,k) for k in range(5, 14)] + [('w',1,k) for k in range(14)]
    elif ORD == 10:
        seq = [('x',0,t) for t in range(5)] + [('x',1,t) for t in range(5)] + [('w',0,k) for k in range(14)] + [('w',1,k) for k in range(14)]
    elif ORD == 11:
        seq = [('x',0,t) for t in range(5)] + [('w',0,k) for k in range(5)] + [('x',1,t) for t in range(5)] + [('w',0,k) for k in range(5, 14)] + [('w',1,k) for k in range(14)]
    elif ORD == 12:
        seq = [('x',0,0), ('w',0,0), ('x',0,1), ('w',0,1), ('x',0,2), ('w',0,2), ('x',0,3), ('w',0,3), ('x',0,4), ('w',0,4)]
        seq += [('w',0,k) for k in range(5, 9)] + [('x',1,t) for t in range(5)] + [('w',0,k) for k in range(9, 14)] + [('w',1,k) for k in range(14)]
    elif ORD == 8:
        seq = []
        for u in range(2):
            for k in range(14):
                if k % XIL == 0 and k // XIL < 5: seq.append(('x', u, k // XIL))
                seq.append(('w', u, k))
    elif ORD == 5:
        seq = [('x',0,0), ('w',0,0), ('x',0,1), ('w',0,1), ('x',0,2), ('w',0,2), ('x',0,3), ('w',0,3), ('x',0,4), ('w',0,4)]
        seq += [('w',0,5), ('x',1,0), ('w',0,6), ('w',0,7), ('x',1,1), ('w',0,8), ('w',0,9), ('x',1,2), ('w',0,10), ('w',0,11), ('x',1,3), ('w',0,12), ('w',0,13), ('x',1,4)]
        seq += [('w',1,k) for k in range(14)]
    elif ORD == 6:
        seq = [('x',0,0), ('w',0,0), ('x',0,1), ('w',0,1), ('x',0,2), ('w',0,2), ('x',0,3), ('w',0,3), ('x',0,4), ('w',0,4)]
        seq += [('w',0,5), ('w',0,6), ('w',0,7), ('w',0,8), ('x',1,0), ('w',0,9), ('x',1,1), ('w',0,10), ('x',1,2), ('w',0,11), ('x',1,3), ('w',0,12), ('x',1,4), ('w',0,13)]
        seq += [('w',1,k) for k in range(14)]
    elif ORD == 7:
        seq = [('x',0,0), ('w',0,0), ('x',0,1), ('w',0,1), ('x',0,2), ('w',0,2), ('x',0,3), ('w',0,3), ('x',0,4), ('w',0,4)]
        seq += [('w',0,k) for k in range(5, 14)]
        seq += [('x',1,0), ('w',1,0), ('x',1,1), ('w',1,1), ('x',1,2), ('w',1,2), ('x',1,3), ('w',1,3), ('x',1,4), ('w',1,4)] + [('w',1,k) for k in range(5, 14)]
    else:
        seq += [('x',1,t) for t in range(5)] + [('w',1,k) for k in range(14)]
    w13 = ["s_add_u32 s%d, s%d, %d" % (S_W2L, S_WM0, WA + 13*4096),
          "s_add_u32 s%d, s%d, %d" % (S_W2L1, S_WM0, WB1 + 13*4096),
          "s_add_u32 s%d, s%d, %d" % (S_W2L2, S_WM0, WA + W2O + 13*4096),
          "s_cmp_ge_u32 s%d, 2\n    s_cselect_b32 s%d, %d, s%d\n    s_cselect_b32 s%d, %d, s%d\n    s_cselect_b32 s%d, %d, s%d" % (S_WAVE, S_W2L, SPARE, S_W2L, S_W2L1, SPARE, S_W2L1, S_W2L2, SPARE, S_W2L2)]
    for d in seq:
        if d[1] != 0: continue
        if d[0] == 'x' and d[2] > 0: S += xoff_calc(d[2]); need[d] = len(S)
        if d[0] == 'w' and d[2] in (1, 2): S += woff_calc(d[2]); need[d] = len(S)
        if d == ('w',0,13): S += w13; need[d] = len(S)
    S += must_setup(); nmust = len(S)
    S += later_setup()
    pos = 0
    for di, d in enumerate(seq):
        us = x_units(d[1], d[2]) if d[0] == 'x' else w_units(d[2], d[1])
        if di >= PRO:
            left_dma.append((d, us)); continue
        tgt = max(need.get(d, 0), min(len(S), pos + (QUO if di >= 2 else 0)))
        if d in (('w',0,13), ('xa',1,0)):
            while pos < need[d]: e(S[pos]); pos += 1
        us[0]()
        while pos < tgt: e(S[pos]); pos += 1
        us[1](); us[2]()
        if WPF and di == WPF - 1: wpf()
    while pos < nmust: e(S[pos]); pos += 1
    for s in S[pos:]: left_setup.append(lambda s=s: e(s))
    stamp()

wid = {}
def tr_units(f):
    ks_l = (f // 3) % 9
    tp = f % 3
    us = []
    for hf in range(2):
        def u(hf=hf):
            off = ks_l*6144 + hf*768 + (W2O if f // 27 == 2 else 0)
            e("ds_read_b64_tr_b16 %s, v%d offset:%d" % (wfrag_half(f, hf), (V_WTR1 if f // 27 == 1 else V_WTR) + tp, off))
            i = lg.issue()
            if hf == 1: wid[f] = i
        us.append(u)
    return us
def triple(ks):
    us = []
    for tp in range(3): us += tr_units(ks*3 + tp)
    return us

swid = {}
def epi_units(t, m):
    if DIRECT:
        acc = V_ACC + 72 + 12*m
        pk = 4 + 6*(m % 2)
        us = [(lambda d=d: e("v_cvt_pk_bf16_f32 v%d, v%d, v%d" % (pk+d, acc+2*d, acc+2*d+1))) for d in range(6)]
        def s4():
            e("buffer_store_dwordx4 %s, v%d, s[%d:%d], 0 offen offset:%d %s" % (vr(pk, 4), V_SR + (m // 2), S_O, S_O+3, (m % 2)*3072, SNT)); vm.issue()
        def s2():
            e("buffer_store_dwordx2 %s, v%d, s[%d:%d], 0 offen offset:%d %s" % (vr(pk+4, 2), V_SR + (m // 2), S_O, S_O+3, (m % 2)*3072 + 16, SNT)); vm.issue()
        us.insert(4, s4); us.append(s2)
        if m == 2:
            us += [lambda: e("v_add_u32 v%d, %d, v%d" % (V_SR, 2*ROWB, V_SR)), lambda: e("v_add_u32 v%d, %d, v%d" % (V_SR+1, 2*ROWB, V_SR+1)), lambda: e("s_mov_b32 s%d, %d" % (S_O+2, X_BYTES))]
        swid[t] = None
        return us
    if NOEPI:
        swid[t] = None
        return []
    acc = V_ACC + 72 + 12*m
    pk = V_PK
    us = []
    for d in range(3):
        us.append(lambda d=d: e("v_cvt_pk_bf16_f32 v%d, v%d, v%d" % (pk+2*d, acc+4*d, acc+4*d+1)))
        us.append(lambda d=d: e("v_cvt_pk_bf16_f32 v%d, v%d, v%d" % (pk+2*d+1, acc+4*d+2, acc+4*d+3)))
        def w(d=d):
            e("ds_write_b64 v%d, %s offset:%d" % (V_SW, vr(pk+2*d, 2), m*2*OPITCH + 8*d))
            swid[t] = lg.issue()
        us.append(w)
    return us

def readback_units(t, part=False):
    if NORB or DIRECT: return []
    us = []
    rid = {}
    for i in range(5):
        def r(i=i):
            e("ds_read_b128 %s, v%d" % (vr(4 + 4*(i % 3), 4), V_SR + i))
            rid[i] = lg.issue()
        def s(i=i):
            if NOST: return
            lg.wait(rid[i])
            if i < 4: e("buffer_store_dwordx4 %s, v%d, s[%d:%d], 0 offen offset:%d %s" % (vr(4 + 4*(i % 3), 4), (22 if part and i > 0 else V_OA), S_O, S_O+3, 1024*i, SNT))
            else: e("buffer_store_dwordx4 %s, v%d, s[%d:%d], 0 offen %s" % (vr(4 + 4*(i % 3), 4), V_OA+1, S_O, S_O+3, SNT))
            vm.issue()
        us.append((r, s))
    adv = [lambda: e("v_add_u32 v%d, %d, v%d" % (V_OA, 2*ROWB, V_OA)), lambda: e("v_add_u32 v%d, %d, v%d" % (V_OA+1, 2*ROWB, V_OA+1)), lambda: e("s_mov_b32 s%d, %d" % (S_O+2, X_BYTES))]
    tog = [lambda i=i: e("v_add_u32 v%d, s%d, v%d" % (V_SR+i, S_TG, V_SR+i)) for i in range(5)]
    tog += [lambda: e("v_add_u32 v%d, s%d, v%d" % (V_SW, S_TG, V_SW)), lambda: e("s_sub_u32 s%d, 0, s%d" % (S_TG, S_TG))]
    if part: return [us[0][0], us[1][0], us[2][0], us[0][1], us[3][0], us[1][1], us[4][0], us[2][1], us[3][1], us[4][1]]
    return [(0, [us[0][0], us[1][0], us[2][0]]), (SSP, [us[0][1], us[3][0]]), (2*SSP, [us[1][1], us[4][0]]), (3*SSP, [us[2][1]] + tog), (4*SSP, [us[3][1]]), (5*SSP, [us[4][1]] + adv)]

def main_loop():
    items = []; Fq = []
    for q in range(8):
        Fq.append(len(items))
        if q < 2:
            for kq in range(9):
                for a in range(3): items.append((q, a + kq // 3, kq % 3, [(a, kq // 3)]))
        else:
            for b in range(5):
                for kk in range(3): items.append((q, b, kk, [(a, b - a) for a in range(3) if 0 <= b - a <= 2]))
    N = len(items); Fq.append(N)
    lastb = {}
    for n, it in enumerate(items): lastb[(it[0], it[1])] = n
    lastb = set(lastb.values())
    ev = {}; evm = {}
    def at(n, fn): ev.setdefault(max(n, 0), []).append(fn)
    def atq(n, units): at(n, lambda: fq.extend(units))
    def atm(q, k, units): evm.setdefault((q, k), []).append(units)
    F = lambda q: Fq[q]
    E = lambda q: F(q+1) - D
    ldid = {}
    def load(n):
        if n >= N: return
        q, b, kk, _ = items[n]
        if NOLD and q >= 2: ldid[n] = 0
        else:
            e("ds_read_b128 %s, v%d offset:%d" % (vr(V_B + 4*(n % NB), 4), V_BA + b, kk*64))
            ldid[n] = lg.issue()
        if n in lastb and q < 7: e("v_add_u32 v%d, s%d, v%d" % (V_BA+b, S_DL, V_BA+b))
    def dl_calc():
        e("s_lshr_b32 s%d, s%d, 4" % (S_RT, S_RT))
        e("s_and_b32 s%d, s%d, 15" % (S_TMP, S_RT))
        e("s_cselect_b32 s%d, 45056, 0" % S_DL)
        e("s_mul_i32 s%d, s%d, 10240" % (S_TMP, S_TMP))
        e("s_add_u32 s%d, s%d, s%d" % (S_TMP, S_TMP, S_DL))
        e("s_sub_u32 s%d, s%d, s%d" % (S_DL, S_TMP, S_CUR))
        e("s_mov_b32 s%d, s%d" % (S_CUR, S_TMP))
    def barrier(vmids=(), lgids=(), dl=False):
        def fn():
            flush()
            if dl: dl_calc()
            for x in lgids: lg.wait(x())
            for x in vmids: vm.wait(x())
            e("s_barrier")
            stamp()
        return fn
    W = lambda i, k: (lambda: ids[('w', i, k)])
    X = lambda u: (lambda: ids.get(('x', u)))
    assert LQ == 2
    pos = 0
    for d, us in left_dma:
        atq(pos, us); pos += SPL
    if XPF:
        def xpf():
            e("buffer_load_dword v27, v29, s[%d:%d], 0 offen" % (S_X, S_X+3)); vm.issue()
        for r in range(XPF):
            atq(min(pos, XPP), [xpf, lambda: e("v_add_u32 v29, %d, v29" % (2*ROWB))])
    atq(max(pos, 6), left_setup)
    def g2seq(lo, hi):
        sq = []
        for k in range(lo, hi):
            if XW2 and k % XW2 == 0 and k // XW2 < 5: sq.append(x_units(2, k // XW2, dyn=True))
            sq.append(w_units(k, 2))
        return sq
    if not FRONT:
        for i in range(2):
            for kq in range(9):
                if i == 0 and kq < 2: continue
                p = F(i) + 3*(kq-1) - 1
                if kq == 3: at(p, barrier(vmids=[W(i,8)]))
                if kq == 6: at(p, barrier(vmids=[W(i,13)]))
                if i == 1 and kq == 0:
                    assert p == E(0)
                    at(p, barrier(vmids=[X(1), W(1, 4)], lgids=[lambda: wid[26], lambda: ldid[26]], dl=True))
                    q = p + 1
                    atq(q, xd_units())
                    if XW2 == 0:
                        for tt in range(5): atq(q, x_units(2, tt, dyn=True)); q += SPW
                    for us in g2seq(0, 14): atq(q, us); q += SPW
                atq(p, triple(9*i + kq))
        l3p = E(1) + 1
    else:
        for kq in range(2, 9): atq(kq - 2, triple(kq))
        at(C0P, barrier(lgids=[lambda: wid[26]]))
        q = C0P
        atq(q, xd_units())
        if XW2 == 0:
            for tt in range(5): atq(q, x_units(2, tt, dyn=True)); q += G2S
        for us in g2seq(0, 11): atq(q, us); q += G2S
        at(E(0), barrier(vmids=[X(1), W(1, 4)], lgids=[lambda: ldid[26]], dl=True))
        q = max(q, E(0) + 1)
        for us in g2seq(11, 14): atq(q, us); q += 1
        for kq in range(3): atq(E(0) + kq, triple(9 + kq))
        at(F(1) + J1A, barrier(vmids=[W(1,8)]))
        for kq in range(3, 6): atq(F(1) + J1A + kq - 3, triple(9 + kq))
        at(F(1) + J1B, barrier(vmids=[W(1,13)]))
        for kq in range(6, 9): atq(F(1) + J1B + kq - 6, triple(9 + kq))
        at(F(1) + C1P, barrier(lgids=[lambda: wid[53]]))
        l3p = F(1) + C1P
    at(F(1) + W2B, barrier(vmids=[W(2,8)]))
    for kq in range(6): atq(F(1) + W2B + (kq*(E(1) - F(1) - W2B))//6, triple(18 + kq))
    at(E(1), barrier(vmids=[X(2), W(2, 13)], lgids=[lambda: wid[53], lambda: wid[23*3+2]], dl=True))
    for kq in range(6, 9): atq(E(1), triple(18 + kq))
    atq(l3p, xd_units())
    for tt in range(5): atq(l3p + (tt if FRONT else tt // 2), x_units(3, tt, dyn=True))
    for q in range(2, 8):
        b = F(q)
        ni = 3 if q <= 5 else 8 - q
        sc = lambda k: (k * ni) // 3
        atm(q, sc(6), epi_units(q-3, 2))
        if q <= 5:
            atm(q, sc(18), multi("s_cmp_eq_u32 s%d, 3\n    s_cselect_b32 s%d, s%d, %d\n    s_cmp_ge_u32 s%d, 5\n    s_cselect_b32 s%d, 0, %d" % (S_IT, S_XINC, S_XJ, 2*ROWB, S_IT, S_X+2, X_BYTES)))
            atm(q, sc(18), xd_units())
        sb = SB if q < 7 else SB + 1
        at(b + sb, barrier(lgids=[lambda q=q: swid[q-3]]))
        m0 = sc(27 + 18*(sb - 3)) + 1
        for o, u in readback_units(q-3): atm(q, m0 + sc(o*RSP), u)
        if q <= 5:
            for tt in range(5):
                if not NOXD: atm(q, m0 + sc((3*tt + 1)*RSP + 1), x_units(q+2, tt, dyn=True))
        atm(q, sc(162 + 9), epi_units(q-2, 0))
        atm(q, sc(216 + 9), epi_units(q-2, 1))
        if q <= 5: at(E(q), barrier(vmids=[X(q+1)], dl=True))
        elif q == 6: pass
    vm.wait(max(ids[('w',0,13 if FRONT else 4)], ids[('x',0)]))
    e("s_barrier")
    stamp()
    dl_calc()
    for u in triple(0): u()
    for n in range(D): load(n)
    for u in triple(1): u()
    marks = []
    def close_loop():
        flush()
        marks.append(len(out))
        inloop[0] = False
        bodies = [out[marks[k]:marks[k+1]] for k in range(6 - LQ)]
        assert all(len(bd) == len(bodies[0]) for bd in bodies), [len(bd) for bd in bodies]
        merged = []
        rx = re.compile(r"\s*s_waitcnt (\w+)\((\d+)\)")
        for lines in zip(*bodies):
            if all(l == lines[0] for l in lines):
                if ";opt" in lines[0]: continue
                merged.append(lines[0]); continue
            ms = [rx.match(l) for l in lines]
            assert all(ms) and len(set(mm.group(1) for mm in ms)) == 1, lines
            merged.append("    s_waitcnt %s(%d)" % (ms[0].group(1), min(int(mm.group(2)) for mm in ms)))
        del out[marks[0]:]
        out.append("L_loop:")
        out.extend(merged)
        e("s_add_u32 s%d, s%d, 1" % (S_IT, S_IT))
        e("s_cmp_lt_u32 s%d, 6" % S_IT)
        e("s_cbranch_scc1 L_loop")
        stamp()
        if SK == 2:
            e("s_memrealtime s[70:71]"); e("s_waitcnt lgkmcnt(0)"); lg.clear()
    mc = 0
    for n in range(N):
        q, b_, kk, combos = items[n]
        if n == F(q): mc = 0
        if n == F(q) and LQ <= q <= 5:
            flush()
            if q == LQ:
                stamp()
                if SK == 2:
                    e("s_memrealtime s[66:67]"); e("s_waitcnt lgkmcnt(0)"); lg.clear()
            inloop[0] = True
            marks.append(len(out))
        if n == F(6): close_loop()
        for fn in ev.get(n, []): fn()
        iset = [i for i in (2, 1, 0) if 0 <= q - i <= 5]
        needw = [(9*i + 3*j + kk)*3 + tp for (a, j) in combos for i in iset for tp in range(3)]
        load(n + D)
        while any(f not in wid for f in needw): fq.popleft()()
        lg.wait(max([ldid[n]] + [wid[f] for f in needw]))
        b = vr(V_B + 4*(n % NB), 4)
        cnt = 0; tot = 3*len(iset)*len(combos)
        for (a_, j) in combos:
            for i in iset:
                for tp in range(3):
                    a = vr(V_ACC + 36*i + 12*a_ + 4*tp, 4)
                    c = a if (j, kk) != (0, 0) else "0" if i == 0 else vr(V_ACC + 36*(i-1) + 12*a_ + 4*tp, 4)
                    e("v_mfma_f32_16x16x32_bf16 %s, %s, %s, %s" % (a, wfrag((9*i+3*j+kk)*3+tp), b, c))
                    cnt += 1; mc += 1
                    for us in evm.get((q, mc), []): fq.extend(us)
                    fill(0 if (cnt == tot and tot > 3) else 1)
    flush()
    stamp()
    e("s_nop 7")
    e("s_nop 7")
    if TT:
        acc = V_ACC + 72 + 24
        for d in range(6): e("v_cvt_pk_bf16_f32 v%d, v%d, v%d" % (V_PK+d, acc+2*d, acc+2*d+1))
        e("buffer_store_dwordx4 %s, v21, s[%d:%d], 0 offen %s" % (vr(V_PK, 4), S_O, S_O+3, SNT))
        e("buffer_store_dwordx2 %s, v21, s[%d:%d], 0 offen offset:16 %s" % (vr(V_PK+4, 2), S_O, S_O+3, SNT))
    else:
        for u in epi_units(5, 2): u()
        if not DIRECT: barrier(lgids=[lambda: swid[5]])()
        for o, us in readback_units(5):
            for u in us: u()
    stamp()
    e("s_waitcnt vmcnt(0)")
    stamp()
    rstamp()
    if STAMP:
        e("s_mov_b32 s%d, s90" % (64 + nstamp[0])); nstamp[0] += 1
    dump_stamps()
    if SK:
        e("s_memrealtime s[68:69]")
        if SK == 1: e("s_memtime s[70:71]")
        e("s_load_dwordx2 s[46:47], s[0:1], 32")
        e("s_waitcnt lgkmcnt(0)")
        e("s_mov_b32 s48, s46")
        e("s_and_b32 s49, s47, 0xffff")
        e("s_mov_b32 s50, 65536")
        e("s_mov_b32 s51, 0x20000")
        e("s_lshl_b32 s53, s2, 2")
        e("s_add_u32 s53, s53, s%d" % S_WAVE)
        e("s_lshl_b32 s53, s53, 4")
        e("v_mov_b32 v1, s53")
        e("v_mov_b32 v4, s64")
        e("v_mov_b32 v5, s68")
        e("v_mov_b32 v6, s66")
        e("v_mov_b32 v7, s70")
        e("buffer_store_dwordx4 v[4:7], v1, s[48:51], 0 offen")
        e("s_waitcnt vmcnt(0)")

header()
prologue()
main_loop()
footer()
open(sys.argv[1], "w").write("\n".join(out) + "\n")
print("lines", len(out), "stamps", nstamp[0])
```

```python
import sys, os, re
from collections import deque

KNAME = "standalone__dilated_atrous__vision_kernel"
X_BYTES = 384*384*96*2
W_BYTES = 9*96*96*2
ROWB = 384*192
SLOT = 10240
WA = 0
XB = 55296
WB1 = 106496
SPARE = 161792
OPITCH = 208
NB = 5
def P(n, d): return int(os.environ.get(n, str(d)))
D = P("D", 4)
PRO = 19
QUO = P("QUO", 8)
SPL = P("SPL", 1)
SPW = P("SPW", 1)
SSP = P("SSP", 3)
WSPLIT = P("WSPLIT", 1)
CPF = P("CPF", 1)
WPF = P("WPF", 0)
FC = [int(c) for c in os.environ.get("FC", "111")]
FC0 = [int(c) for c in os.environ.get("FC0", "111")]
LQ = 3
XO = P("XO", 0)
B0P = P("B0P", 4)
E1P = P("E1P", 8)
JD = P("JD", 4)
E6P = P("E6P", 6)
E7P = P("E7P", 5)
E8P = P("E8P", 4)
E11P = P("E11P", 8)
X4P = P("X4P", 4)
SP2 = P("SP2", 1)
DIRECT = P("DIRECT", 0)
NOLD = P("NOLD", 0)
NOST = P("NOST", 0)
TT = P("TT", 0)
TB = P("TB", 22)
XIL = P("XIL", 3)
XW2 = P("XW2", 0)
W2B = P("W2B", 18)
SB = P("SB", 3)
RSP = P("RSP", 3)
SK = P("SK", 0)
ORD = P("ORD", 0)
XSP = P("XSP", 0)
LDP = P("LDP", 0)
LDP0 = P("LDP0", 0)
SPLITS = P("SPLITS", 0)
BOOST = P("BOOST", 7)
NOBA = P("NOBA", 0); NOXD = P("NOXD", 0); NOEPI = P("NOEPI", 0); NORB = P("NORB", 0); NOBAR = P("NOBAR", 0)
XNT = os.environ.get("XNT", "nt ")
SNT = os.environ.get("SNT", "sc1")

STAMP = len(sys.argv) > 2 and sys.argv[2] == "stamp"
out = []
def e(s): out.append("    " + s)

V_XOFF = 16; V_WOFF = 21; V_WTR = 24; V_BA = 64; V_SW = 30; V_SR = 31; V_OA = 36; V_PK = 38; V_B = 44; V_ACC = 80
V_W = 188; V_WTR1 = 13

def wfrag(f):
    if f < 64: return "a[%d:%d]" % (4*f, 4*f+3)
    b = V_W + 4*(f-64)
    return "v[%d:%d]" % (b, b+3)
def wfrag_half(f, hf):
    if f < 64: return "a[%d:%d]" % (4*f+2*hf, 4*f+2*hf+1)
    b = V_W + 4*(f-64) + 2*hf
    return "v[%d:%d]" % (b, b+1)
def vr(b, n): return "v[%d:%d]" % (b, b+n-1)

S_X = 8; S_Wd = 12; S_O = 16
S_WAVE = 20; S_HH = 21; S_S = 22; S_CS = 23; S_PAR = 24; S_G = 25
S_T0 = 26; S_T1 = 27; S_T2 = 28; S_T3 = 29
S_XM0 = 32; S_WM0 = 33; S_COL0 = 34; S_W2L = 35; S_LO = 38; S_N = 39; S_XBASE = 42; S_W2L1 = 43
S_RT = 56; S_LT = 57; S_CUR = 58
S_TG = 59; S_XD = 60; S_IT = 61; S_TMP = 62; S_DL = 63; S_XH = 30; S_XINC = 31; S_XJ = 40; S_TMP2 = 41

nstamp = [0]
inloop = [False]
def stamp():
    if not STAMP or inloop[0]: return
    k = nstamp[0]; nstamp[0] += 1
    e("s_memtime s[44:45]")
    e("s_waitcnt lgkmcnt(0)")
    lg.clear()
    e("s_mov_b32 s%d, s44" % (64 + k))
def rstamp():
    if not STAMP: return
    k = nstamp[0]; nstamp[0] += 1
    e("s_memrealtime s[44:45]")
    e("s_waitcnt lgkmcnt(0)")
    lg.clear()
    e("s_mov_b32 s%d, s44" % (64 + k))
def dump_stamps():
    if not STAMP: return
    e("s_load_dwordx2 s[46:47], s[0:1], 24")
    e("s_waitcnt lgkmcnt(0)")
    e("s_mov_b32 s48, s46")
    e("s_and_b32 s49, s47, 0xffff")
    e("s_mov_b32 s50, 256")
    e("s_mov_b32 s51, 0x20000")
    e("s_mov_b32 s52, 1024")
    e("s_lshl_b32 s53, s2, 2")
    e("s_add_u32 s53, s53, s%d" % S_WAVE)
    e("s_cmp_eq_u32 s53, 0")
    e("s_cselect_b32 s52, 0, s52")
    e("s_cmp_eq_u32 s53, %d" % (133*4+3))
    e("s_cselect_b32 s52, 128, s52")
    e("v_mov_b32 v1, s52")
    n = nstamp[0]
    e("s_sub_u32 s92, s%d, s%d" % (64+n-2, 64+n-1))
    e("v_mov_b32 v2, s92")
    e("buffer_store_dword v2, v1, s[48:51], 0 offen offset:0")
    for k in range(1, n-2):
        e("s_sub_u32 s92, s%d, s64" % (64+k))
        e("v_mov_b32 v2, s92")
        e("buffer_store_dword v2, v1, s[48:51], 0 offen offset:%d" % (4*k))
    e("s_waitcnt vmcnt(0)")

class Tracker:
    def __init__(self, name, maxv):
        self.name = name; self.maxv = maxv; self.done = 0; self.n = 0
    def issue(self):
        self.n += 1
        return self.n
    def wait(self, opid):
        if opid is None or opid <= self.done:
            if inloop[0]: e("s_waitcnt %s(%d) ;opt" % (self.name, self.maxv))
            return
        cnt = min(self.n - opid, self.maxv)
        e("s_waitcnt %s(%d)" % (self.name, cnt))
        self.done = self.n - cnt
    def clear(self):
        self.done = self.n
lg = Tracker("lgkmcnt", 15)
vm = Tracker("vmcnt", 63)

def header():
    out.append("""; Kernarg layout for this problem (40 bytes, ptrs only, base s[0:1]):
;   offset   0: d_in[0] x  shape=(1, 384, 384, 96) dtype=bfloat16
;   offset   8: d_in[1] w  shape=(3, 3, 96, 96) dtype=bfloat16
;   offset  16: d_out     shape=(1, 384, 384, 96) dtype=bfloat16 (2 bytes/elem)
;   offset  24: d_debug   256 bytes
;   offset  32: d_ws      268435456 bytes workspace
; @launch grid=(256,1,1) block=(256,1,1) lds=163840
.amdgcn_target "amdgcn-amd-amdhsa--gfx950"
.text
.globl %s
.p2align 8
.type %s,@function
%s:""" % (KNAME, KNAME, KNAME))

def footer():
    out.append("""L_end:
    s_endpgm
.section .rodata,"a"
.p2align 6
.amdhsa_kernel %s
  .amdhsa_next_free_vgpr 512
  .amdhsa_next_free_sgpr 100
  .amdhsa_accum_offset 256
  .amdhsa_group_segment_fixed_size 0
  .amdhsa_kernarg_size 40
  .amdhsa_user_sgpr_count 2
  .amdhsa_user_sgpr_kernarg_segment_ptr 1
  .amdhsa_system_sgpr_workgroup_id_x 1
.end_amdhsa_kernel""" % KNAME)

ids = {}
fq = deque()
def multi(txt):
    parts = [p.strip() for p in txt.split("\n")]
    if not SPLITS: return [lambda: e(txt)]
    return [(lambda p=p: e(p)) for p in parts]
def fill(k=1):
    if len(fq) > BOOST and k > 0: k += 1
    for _ in range(k):
        if fq: fq.popleft()()
def flush():
    while fq: fq.popleft()()

def w_units(k, i):
    r = V_WOFF + (k % 3)
    base = WB1 if i == 1 else WA
    def u0():
        if k == 13: e("s_mov_b32 m0, s%d" % (S_W2L1 if i == 1 else S_W2L))
        else: e("s_add_u32 m0, s%d, %d" % (S_WM0, base + k*4096))
    def u1():
        if " m0," in out[-1]: e("s_nop 0")
        e("buffer_load_dwordx4 v%d, s[%d:%d], 0 offen lds" % (r, S_Wd, S_Wd+3))
        ids[('w', i, k)] = vm.issue()
    def u2():
        c = k % 3
        if k + 3 <= 13: adv = 12288
        else: adv = 55296 - (k - c)*4096
        e("v_add_u32 v%d, 0x%x, v%d" % (r, adv, r))
    return [u0, u1, u2]
def x_units(u, t, dyn=False):
    def u0():
        if dyn: e("s_add_u32 m0, s%d, %d" % (S_XD, t*1024))
        else: e("s_add_u32 m0, s%d, %d" % (S_XM0, XB + 20480*u + t*1024))
    def u1():
        if " m0," in out[-1]: e("s_nop 0")
        e("buffer_load_dwordx4 v%d, s[%d:%d], 0 offen %slds" % (V_XOFF+t, S_X, S_X+3, XNT))
        ids[('x', u)] = vm.issue()
    def u2():
        if dyn: e("v_add_u32 v%d, s%d, v%d" % (V_XOFF+t, S_XINC, V_XOFF+t))
        else: e("v_add_u32 v%d, %d, v%d" % (V_XOFF+t, 2*ROWB, V_XOFF+t))
    return [u0, u1, u2]
def xd_units():
    return multi("s_and_b32 s%d, s%d, 15\n    s_mul_i32 s%d, s%d, 10240\n    s_add_u32 s%d, s%d, s%d\n    s_lshr_b32 s%d, s%d, 4" % (S_TMP2, S_LT, S_TMP2, S_TMP2, S_XD, S_TMP2, S_XH, S_LT, S_LT))

def xoff_calc(t):
    L = []
    if t > 0: L.append("v_add_u32 v3, 64, v3")
    L += ["v_mul_u32_u24 v4, 43691, v3",
          "v_lshrrev_b32 v4, 19, v4",
          "v_mul_u32_u24 v5, 12, v4",
          "v_sub_u32 v5, v3, v5",
          "v_lshrrev_b32 v6, 1, v4",
          "v_and_b32 v6, 2, v6",
          "v_xor_b32 v5, v5, v6",
          "v_mul_u32_u24 v7, 192, v4",
          "v_subrev_u32 v6, s%d, v4" % S_LO,
          "v_lshl_add_u32 v7, v5, 4, v7",
          "v_cmp_gt_u32 vcc, s%d, v6" % S_N,
          "v_add_u32 v7, s%d, v7" % S_XBASE,
          "v_cndmask_b32 v%d, v8, v7, vcc" % (V_XOFF+t)]
    return L
def woff_calc(c):
    L = []
    if c > 0: L.append("v_add_u32 v9, 0x100, v9")
    L += ["v_mul_u32_u24 v10, 43691, v9",
          "v_lshrrev_b32 v10, 19, v10",
          "v_mul_u32_u24 v11, 12, v10",
          "v_sub_u32 v11, v9, v11",
          "v_lshrrev_b32 v12, 2, v10",
          "v_and_b32 v12, 2, v12",
          "v_sub_u32 v11, v11, v12",
          "v_add_u32 v12, 12, v11",
          "v_cmp_gt_i32 vcc, 0, v11",
          "v_mul_u32_u24 v13, 192, v10",
          "v_cndmask_b32 v11, v11, v12, vcc",
          "v_lshl_add_u32 v%d, v11, 4, v13" % (V_WOFF + c)]
    return L
def must_setup():
    L = []
    L += ["v_lshrrev_b32 v3, 4, v2",
          "v_lshrrev_b32 v4, 2, v2",
          "v_and_b32 v4, 3, v4",
          "v_lshl_add_u32 v4, v3, 3, v4",
          "v_mul_u32_u24 v4, 192, v4",
          "v_and_b32 v5, 3, v2",
          "v_mul_u32_u24 v5, 24, v5",
          "s_mul_i32 s%d, s%d, 96" % (S_T2, S_HH),
          "v_add_u32 v5, s%d, v5" % S_T2,
          "v_and_b32 v6, 1, v3",
          "v_lshlrev_b32 v6, 5, v6",
          "v_add_u32 v5, v5, v6"]
    for tp in range(3):
        L += ["v_add_u32 v6, %d, v5" % (8*tp),
              "v_subrev_u32 v7, 192, v6",
              "v_cmp_le_u32 vcc, 192, v6",
              "v_cndmask_b32 v6, v6, v7, vcc",
              "v_add_u32 v%d, v4, v6" % (V_WTR + tp)]
    L += ["v_and_b32 v4, 15, v2",
          "s_mul_i32 s%d, s%d, %d" % (S_CUR, S_S, SLOT),
          "s_add_u32 s%d, s%d, %d" % (S_T3, S_CUR, XB)]
    L += ["v_lshrrev_b32 v5, 1, v4",
          "v_and_b32 v6, 1, v4",
          "v_mul_u32_u24 v5, 6, v5",
          "v_add_u32 v28, v5, v6"]
    for j in range(5):
        L += ["v_add_u32 v5, %d, v28" % (2*j),
              "v_lshrrev_b32 v6, 1, v5",
              "v_and_b32 v6, 2, v6",
              "v_xor_b32 v6, v6, v3",
              "v_mul_u32_u24 v5, 192, v5",
              "v_lshl_add_u32 v5, v6, 4, v5",
              "v_add_u32 v%d, s%d, v5" % (V_BA+j, S_T3)]
    L += ["s_mov_b32 s%d, 0x04286031" % S_RT, "s_mov_b32 s%d, 0x602860" % S_LT, "s_mov_b32 s%d, %d" % (S_XJ, 4*ROWB),
          "s_cmp_eq_u32 s%d, 0\n    s_cselect_b32 s%d, 0x31975420, s%d\n    s_cselect_b32 s%d, 0x549754, s%d\n    s_cselect_b32 s%d, %d, s%d" % (S_S, S_RT, S_RT, S_LT, S_LT, S_XJ, 14*ROWB, S_XJ),
          "s_mul_i32 s%d, s%d, 5120" % (S_XH, S_HH),
          "s_add_u32 s%d, s%d, %d" % (S_XH, S_XH, XB),
          "s_mov_b32 s%d, %d" % (S_XINC, 2*ROWB)]
    for tp in range(3): L.append("v_add_u32 v%d, %d, v%d" % (V_WTR1+tp, WB1, V_WTR+tp))
    return L
def later_setup():
    L = []
    L += ["s_mov_b32 s%d, s36" % S_O,
          "s_and_b32 s%d, s37, 0xffff" % (S_O+1),
          "s_mov_b32 s%d, %d" % (S_O+2, X_BYTES if LQ == 3 else 0),
          "s_mov_b32 s%d, 0x20000" % (S_O+3),
          "s_mov_b32 s%d, 20480" % S_TG,
          "s_mov_b32 s%d, %d" % (S_IT, LQ),
          "s_mul_i32 s%d, s%d, 9984" % (S_T3, S_S),
          "s_add_u32 s%d, s%d, s%d" % (S_T2, S_T2, S_T3),
          "v_mul_u32_u24 v5, %d, v28" % OPITCH,
          "v_mul_u32_u24 v6, 24, v3",
          "v_add3_u32 v%d, v5, v6, s%d" % (V_SW, S_T2),
          "s_mul_i32 s%d, s%d, 320" % (S_T2, S_HH),
          "v_add_u32 v5, s%d, v2" % S_T2]
    for i in range(5):
        if i: L.append("v_add_u32 v5, 64, v5")
        L += ["v_mul_u32_u24 v6, 43691, v5",
              "v_lshrrev_b32 v6, 19, v6",
              "v_mul_u32_u24 v7, 12, v6",
              "v_sub_u32 v7, v5, v7",
              "v_mul_u32_u24 v6, %d, v6" % OPITCH,
              "v_lshl_add_u32 v6, v7, 4, v6",
              "v_add_u32 v%d, s%d, v6" % (V_SR + i, S_T3)]
    L += ["s_lshl_b32 s%d, s%d, 1" % (S_T2, S_G),
          "s_add_u32 s%d, s%d, s%d" % (S_T2, S_T2, S_S),
          "s_mul_i32 s%d, s%d, 12" % (S_T2, S_T2),
          "s_sub_u32 s%d, s%d, %d" % (S_T2, S_T2, 0 if LQ == 3 else 2),
          "s_add_u32 s%d, s%d, s%d" % (S_T2, S_T2, S_PAR),
          "s_mul_i32 s%d, s%d, 384" % (S_T2, S_T2),
          "s_add_u32 s%d, s%d, s%d" % (S_T2, S_T2, S_COL0),
          "s_mul_i32 s%d, s%d, 192" % (S_T2, S_T2),
          "s_mul_i32 s%d, s%d, 5120" % (S_T3, S_HH),
          "s_add_u32 s%d, s%d, s%d" % (S_T2, S_T2, S_T3),
          "v_lshlrev_b32 v5, 4, v2",
          "v_add_u32 v%d, s%d, v5" % (V_OA, S_T2),
          "s_mul_i32 s%d, s%d, 0x40000000" % (S_T3, S_HH),
          "s_add_u32 s%d, s%d, 4096" % (S_T3, S_T3),
          "v_add_u32 v%d, s%d, v%d" % (V_OA+1, S_T3, V_OA)]
    if DIRECT:
        L += ["v_mul_u32_u24 v5, 192, v4", "v_mul_u32_u24 v6, 24, v3",
              "s_mul_i32 s%d, s%d, %d" % (S_T3, S_HH, 96 - 5120),
              "s_add_u32 s%d, s%d, s%d" % (S_T2, S_T2, S_T3),
              "v_add3_u32 v%d, v5, v6, s%d" % (V_SR, S_T2),
              "v_add_u32 v%d, 6144, v%d" % (V_SR+1, V_SR)]
    return L

left_dma = []
left_setup = []
def prologue():
    e("s_cmp_ge_u32 s2, 256")
    e("s_cbranch_scc1 L_end")
    stamp()
    if SK:
        e("s_memrealtime s[64:65]")
        if SK == 1: e("s_memtime s[66:67]")
    if STAMP:
        e("s_memrealtime s[44:45]")
        e("s_waitcnt lgkmcnt(0)")
        e("s_mov_b32 s90, s44")
    e("s_load_dwordx4 s[4:7], s[0:1], 0")
    e("s_load_dwordx2 s[36:37], s[0:1], 16")
    if CPF:
        e("s_getpc_b64 s[54:55]")
        out.append("L_pc:")
        e("v_lshlrev_b32 v10, 7, v0")
        e("v_min_u32 v10, (L_end - L_pc), v10")
        e("v_mov_b32 v11, s55")
        e("v_add_co_u32 v10, vcc, s54, v10")
        e("v_addc_co_u32 v11, vcc, 0, v11, vcc")
        e("global_load_dword v63, v[10:11], off")
        vm.issue()
    for s in [
              "v_lshrrev_b32 v1, 6, v0",
              "v_and_b32 v2, 63, v0",
              "s_and_b32 s%d, s2, 7" % S_CS,
              "v_readfirstlane_b32 s%d, v1" % S_WAVE,
              "s_lshr_b32 s%d, s2, 3" % S_T0,
              "s_and_b32 s%d, s%d, 1" % (S_PAR, S_T0),
              "s_lshr_b32 s%d, s%d, 1" % (S_G, S_T0),
              "s_mul_i32 s%d, s%d, 48" % (S_COL0, S_CS),
              "s_and_b32 s%d, s%d, 1" % (S_HH, S_WAVE),
              "s_lshr_b32 s%d, s%d, 1" % (S_S, S_WAVE),
              "s_mul_i32 s%d, s%d, 320" % (S_T1, S_HH),
              "v_add_u32 v3, s%d, v2" % S_T1,
              "v_mov_b32 v9, v0",
              "v_bfrev_b32 v8, 1",
              "s_mul_i32 s%d, s%d, 24" % (S_T0, S_G),
              "s_add_u32 s%d, s%d, s%d" % (S_T0, S_T0, S_PAR),
              "s_mul_i32 s%d, s%d, 12" % (S_T1, S_S),
              "s_add_u32 s%d, s%d, s%d" % (S_T0, S_T0, S_T1),
              "s_sub_u32 s%d, s%d, 2" % (S_T0, S_T0),
              "s_mul_i32 s%d, s%d, 384" % (S_T0, S_T0),
              "s_add_u32 s%d, s%d, s%d" % (S_T0, S_T0, S_COL0),
              "s_sub_u32 s%d, s%d, 2" % (S_T0, S_T0),
              "s_mul_i32 s%d, s%d, 192" % (S_XBASE, S_T0),
              "s_cmp_eq_u32 s%d, 0" % S_CS,
              "s_cselect_b32 s%d, 2, 0" % S_LO,
              "s_cmp_eq_u32 s%d, 7" % S_CS,
              "s_cselect_b32 s%d, 50, 52" % S_N,
              "s_sub_u32 s%d, s%d, s%d" % (S_N, S_N, S_LO),
              "s_mul_i32 s%d, s%d, 5120" % (S_XM0, S_WAVE),
              "s_lshl_b32 s%d, s%d, 10" % (S_WM0, S_WAVE)]: e(s)
    for s in woff_calc(0): e(s)
    for s in xoff_calc(0): e(s)
    for s in ["s_mov_b32 s%d, %d" % (S_X+2, X_BYTES),
              "s_mov_b32 s%d, 0x20000" % (S_X+3),
              "s_mov_b32 s%d, %d" % (S_Wd+2, W_BYTES),
              "s_mov_b32 s%d, 0x20000" % (S_Wd+3),
              "s_waitcnt lgkmcnt(0)",
              "s_mov_b32 s%d, s4" % S_X,
              "s_and_b32 s%d, s5, 0xffff" % (S_X+1),
              "s_mov_b32 s%d, s6" % S_Wd,
              "s_and_b32 s%d, s7, 0xffff" % (S_Wd+1)]: e(s)
    stamp()
    def wpf():
        e("s_lshr_b32 s%d, s2, 3" % S_TMP)
        e("s_and_b32 s%d, s%d, 7" % (S_TMP, S_TMP))
        e("s_mul_i32 s%d, s%d, 20736" % (S_TMP, S_TMP))
        e("v_lshlrev_b32 v15, 7, v0")
        e("v_add_u32 v15, s%d, v15" % S_TMP)
        e("buffer_load_dword v15, v15, s[%d:%d], 0 offen" % (S_Wd, S_Wd+3))
        vm.issue()
    S = []; need = {}
    seq = [('x',0,0), ('w',0,0), ('x',0,1), ('w',0,1), ('x',0,2), ('w',0,2), ('x',0,3), ('w',0,3), ('x',0,4), ('w',0,4)]
    seq += [('x',1,t) for t in range(5)] + [('w',0,k) for k in range(5, 14)] + [('w',1,k) for k in range(14)]
    w13 = ["s_add_u32 s%d, s%d, %d" % (S_W2L, S_WM0, WA + 13*4096),
          "s_add_u32 s%d, s%d, %d" % (S_W2L1, S_WM0, WB1 + 13*4096),
          "s_cmp_ge_u32 s%d, 2\n    s_cselect_b32 s%d, %d, s%d\n    s_cselect_b32 s%d, %d, s%d" % (S_WAVE, S_W2L, SPARE, S_W2L, S_W2L1, SPARE, S_W2L1)]
    for d in seq:
        if d[1] != 0: continue
        if d[0] == 'x' and d[2] > 0: S += xoff_calc(d[2]); need[d] = len(S)
        if d[0] == 'w' and d[2] in (1, 2): S += woff_calc(d[2]); need[d] = len(S)
        if d == ('w',0,13): S += w13; need[d] = len(S)
    S += must_setup(); nmust = len(S)
    S += later_setup()
    pos = 0
    for di, d in enumerate(seq):
        us = x_units(d[1], d[2]) if d[0] == 'x' else w_units(d[2], d[1])
        if di >= PRO:
            left_dma.append((d, us)); continue
        tgt = max(need.get(d, 0), min(len(S), pos + (QUO if di >= 2 else 0)))
        if d in (('w',0,13), ('xa',1,0)):
            while pos < need[d]: e(S[pos]); pos += 1
        us[0]()
        while pos < tgt: e(S[pos]); pos += 1
        us[1](); us[2]()
        if WPF and di == WPF - 1: wpf()
    while pos < nmust: e(S[pos]); pos += 1
    for s in S[pos:]: left_setup.append(lambda s=s: e(s))
    stamp()

wid = {}
def tr_units(f):
    ks_l = (f // 3) % 9
    tp = f % 3
    us = []
    for hf in range(2):
        def u(hf=hf):
            off = ks_l*6144 + hf*768
            e("ds_read_b64_tr_b16 %s, v%d offset:%d" % (wfrag_half(f, hf), (V_WTR1 if f // 27 == 1 else V_WTR) + tp, off))
            i = lg.issue()
            if hf == 1: wid[f] = i
        us.append(u)
    return us
def triple(ks):
    us = []
    for tp in range(3): us += tr_units(ks*3 + tp)
    return us

swid = {}
def epi_units(t, m):
    if DIRECT:
        acc = V_ACC + 72 + 12*m
        pk = 4 + 6*(m % 2)
        us = [(lambda d=d: e("v_cvt_pk_bf16_f32 v%d, v%d, v%d" % (pk+d, acc+2*d, acc+2*d+1))) for d in range(6)]
        def s4():
            e("buffer_store_dwordx4 %s, v%d, s[%d:%d], 0 offen offset:%d %s" % (vr(pk, 4), V_SR + (m // 2), S_O, S_O+3, (m % 2)*3072, SNT)); vm.issue()
        def s2():
            e("buffer_store_dwordx2 %s, v%d, s[%d:%d], 0 offen offset:%d %s" % (vr(pk+4, 2), V_SR + (m // 2), S_O, S_O+3, (m % 2)*3072 + 16, SNT)); vm.issue()
        us.insert(4, s4); us.append(s2)
        if m == 2:
            us += [lambda: e("v_add_u32 v%d, %d, v%d" % (V_SR, 2*ROWB, V_SR)), lambda: e("v_add_u32 v%d, %d, v%d" % (V_SR+1, 2*ROWB, V_SR+1)), lambda: e("s_mov_b32 s%d, %d" % (S_O+2, X_BYTES))]
        swid[t] = None
        return us
    if NOEPI:
        swid[t] = None
        return []
    acc = V_ACC + 72 + 12*m
    pk = V_PK
    us = []
    for d in range(3):
        us.append(lambda d=d: e("v_cvt_pk_bf16_f32 v%d, v%d, v%d" % (pk+2*d, acc+4*d, acc+4*d+1)))
        us.append(lambda d=d: e("v_cvt_pk_bf16_f32 v%d, v%d, v%d" % (pk+2*d+1, acc+4*d+2, acc+4*d+3)))
        def w(d=d):
            e("ds_write_b64 v%d, %s offset:%d" % (V_SW, vr(pk+2*d, 2), m*2*OPITCH + 8*d))
            swid[t] = lg.issue()
        us.append(w)
    return us

def readback_units(t, part=False):
    if NORB or DIRECT: return []
    us = []
    rid = {}
    for i in range(5):
        def r(i=i):
            e("ds_read_b128 %s, v%d" % (vr(4 + 4*(i % 3), 4), V_SR + i))
            rid[i] = lg.issue()
        def s(i=i):
            if NOST: return
            lg.wait(rid[i])
            if i < 4: e("buffer_store_dwordx4 %s, v%d, s[%d:%d], 0 offen offset:%d %s" % (vr(4 + 4*(i % 3), 4), (22 if part and i > 0 else V_OA), S_O, S_O+3, 1024*i, SNT))
            else: e("buffer_store_dwordx4 %s, v%d, s[%d:%d], 0 offen %s" % (vr(4 + 4*(i % 3), 4), V_OA+1, S_O, S_O+3, SNT))
            vm.issue()
        us.append((r, s))
    adv = [lambda: e("v_add_u32 v%d, %d, v%d" % (V_OA, 2*ROWB, V_OA)), lambda: e("v_add_u32 v%d, %d, v%d" % (V_OA+1, 2*ROWB, V_OA+1)), lambda: e("s_mov_b32 s%d, %d" % (S_O+2, X_BYTES))]
    tog = [lambda i=i: e("v_add_u32 v%d, s%d, v%d" % (V_SR+i, S_TG, V_SR+i)) for i in range(5)]
    tog += [lambda: e("v_add_u32 v%d, s%d, v%d" % (V_SW, S_TG, V_SW)), lambda: e("s_sub_u32 s%d, 0, s%d" % (S_TG, S_TG))]
    if part: return [us[0][0], us[1][0], us[2][0], us[0][1], us[3][0], us[1][1], us[4][0], us[2][1], us[3][1], us[4][1]]
    return [(0, [us[0][0], us[1][0], us[2][0]]), (SSP, [us[0][1], us[3][0]]), (2*SSP, [us[1][1], us[4][0]]), (3*SSP, [us[2][1]] + tog), (4*SSP, [us[3][1]]), (5*SSP, [us[4][1]] + adv)]

def main_loop():
    H0 = lambda b, kk: "a[%d:%d]" % (196 + 4*(3*b+kk), 199 + 4*(3*b+kk))
    H1 = lambda b, kk: vr(188 + 4*(3*b+kk), 4)
    SET = lambda k: V_ACC + 36*k
    items = []; Fq = {}; G = {}
    def grp(name, r, i, j):
        G[name] = len(items)
        for kk in range(3):
            for a in range(3):
                items.append((r, a+j, kk, (r, a+j, kk), [(SET(2-(r-i)), i, a, j, "0" if (i, j, kk) == (0, 0, 0) else None)]))
    def strm(name, i, js):
        G[name] = len(items)
        for b in range(5):
            for kk in range(3):
                cb = [(SET(i), i, a, b-a, "0" if (i, b-a, kk) == (0, 0, 0) else None) for a in range(3) if (b-a) in js]
                if cb: items.append((2, b, kk, None, cb))
    grp('a00', 0, 0, 0); grp('a10', 1, 0, 0); grp('a01', 0, 0, 1); grp('a11', 1, 0, 1)
    strm('a2x', 0, (0, 1))
    grp('a02', 0, 0, 2); grp('a12', 1, 0, 2)
    strm('a22', 0, (2,))
    for j in range(3): grp('b1%d' % j, 1, 1, j)
    strm('b2', 1, (0, 1, 2))
    strm('c', 2, (0, 1, 2))
    Fq[2] = G['c']
    for q in range(3, 8):
        Fq[q] = len(items)
        iset = [i for i in (2, 1, 0) if 0 <= q - i <= 5]
        for b in range(5):
            for kk in range(3):
                cb = []
                for a in range(3):
                    j = b - a
                    if not 0 <= j <= 2: continue
                    for i in iset:
                        cb.append((SET(i), i, a, j, None if (j, kk) != (0, 0) else "0" if i == 0 else SET(i-1)))
                items.append((q, b, kk, None, cb))
    N = len(items); Fq[8] = N
    sl = [n for n in range(N) if items[n][3] is None]
    sidx = {n: k for k, n in enumerate(sl)}
    lastb = {}
    for n in sl: lastb[(items[n][0], items[n][1])] = n
    lastb = set(lastb.values())
    ev = {}; evm = {}
    def at(n, fn): ev.setdefault(max(n, 0), []).append(fn)
    def atq(n, units): at(n, lambda: fq.extend(units))
    def atm(q, k, units): evm.setdefault((q, k), []).append(units)
    F = lambda q: Fq[q]
    E = lambda q: F(q+1) - D
    ldid = {}; hid = {}
    nxt = [0]
    def load_upto(n):
        while nxt[0] < len(sl) and sl[nxt[0]] <= n:
            m = sl[nxt[0]]; nxt[0] += 1
            q, b, kk = items[m][:3]
            e("ds_read_b128 %s, v%d offset:%d" % (vr(V_B + 4*(sidx[m] % NB), 4), V_BA + b, kk*64))
            ldid[m] = lg.issue()
            if m in lastb and q < 7: e("v_add_u32 v%d, s%d, v%d" % (V_BA+b, S_DL, V_BA+b))
    def hload(r, b, kk):
        def u():
            e("ds_read_b128 %s, v%d offset:%d" % ((H0 if r == 0 else H1)(b, kk), V_BA + b, kk*64))
            hid[(r, b, kk)] = lg.issue()
        us = [u]
        if kk == 2: us.append(lambda: e("v_add_u32 v%d, s%d, v%d" % (V_BA+b, S_DL, V_BA+b)))
        return us
    def dl_calc():
        e("s_lshr_b32 s%d, s%d, 4" % (S_RT, S_RT))
        e("s_and_b32 s%d, s%d, 15" % (S_TMP, S_RT))
        e("s_mul_i32 s%d, s%d, 10240" % (S_TMP, S_TMP))
        e("s_sub_u32 s%d, s%d, s%d" % (S_DL, S_TMP, S_CUR))
        e("s_mov_b32 s%d, s%d" % (S_CUR, S_TMP))
    def barrier(vmids=(), lgids=(), dl=False):
        def fn():
            flush()
            if dl: dl_calc()
            for x in lgids: lg.wait(x())
            for x in vmids: vm.wait(x())
            e("s_barrier")
            stamp()
        return fn
    W = lambda i, k: (lambda: ids[('w', i, k)])
    X = lambda u: (lambda: ids.get(('x', u)))
    atq(0, sum([hload(0, b, kk) for b in (3, 4) for kk in range(3)], []))
    at(B0P, barrier(lgids=[lambda: hid[(0, 4, 2)]], dl=True))
    d2 = [us for d, us in left_dma]
    x2 = [xd_units() + x_units(2, 0, dyn=True)] + [x_units(2, tt, dyn=True) for tt in range(1, 5)]
    d2 = d2[:XO] + x2 + d2[XO:]
    pos = B0P
    for us in d2:
        atq(pos, us); pos += SP2
    atq(pos, left_setup)
    at(E1P, barrier(vmids=[X(1)]))
    def r1first():
        for kk in range(3):
            for b in range(3):
                for u in hload(1, b, kk): fq.appendleft(None) if False else None
    h1a = sum([hload(1, b, kk) for kk in range(3) for b in range(3)], [])
    h1b = sum([hload(1, b, kk) for b in (3, 4) for kk in range(3)], [])
    def front(units): fq.extendleft(reversed(units))
    at(E1P, lambda: [u() for u in h1a[:3]])
    at(E1P, lambda: front(h1a[3:] + h1b))
    p = G['a01'] - JD
    at(p, barrier(vmids=[W(0, 8)], dl=True))
    for k in range(3): at(p + 3*k, lambda k=k: front(triple(3 + k)))
    at(G['a2x'] - D, barrier(vmids=[X(2)]))
    p = G['a02'] - 2
    at(p, barrier(vmids=[W(0, 13)]))
    at(p, lambda: front(triple(6)))
    at(p + 1, lambda: front(triple(7)))
    at(p + 3, lambda: front(triple(8)))
    p = G['a12'] + E6P
    at(p, barrier(vmids=[W(1, 4)], lgids=[lambda: wid[26]]))
    q_ = p
    for k in range(14):
        atq(q_, w_units(k, 2))
        if k % 4 == 0 and k // 4 < 3: atq(q_, triple(9 + k // 4))
        q_ += 1
    p = G['b11'] - E7P
    at(p, barrier(vmids=[W(1, 8)]))
    for k in range(3): at(p + 2*k, lambda k=k: front(triple(12 + k)))
    p = G['b12'] - E8P
    at(p, barrier(vmids=[W(1, 13)]))
    for k in range(3): at(p + 2*k, lambda k=k: front(triple(15 + k)))
    p = G['b2']
    at(p, barrier(vmids=[W(2, 8)], lgids=[lambda: wid[53]]))
    atq(p, xd_units())
    for tt in range(5): atq(p + tt // 2, x_units(3, tt, dyn=True))
    for k in range(6): atq(p + 1 + k, triple(18 + k))
    p = G['b2'] + E11P
    at(p, barrier(vmids=[W(2, 13)]))
    for k in range(3): atq(p + k, triple(24 + k))
    at(G['c'] + 2, barrier(lgids=[lambda: wid[80]]))
    atq(G['c'] + X4P - 1, xd_units())
    for tt in range(5): atq(G['c'] + X4P + tt // 2, x_units(4, tt, dyn=True))
    atm(2, 57, epi_units(0, 0))
    atm(2, 75, epi_units(0, 1))
    at(E(2), barrier(vmids=[X(3)], dl=True))
    for q in range(3, 8):
        b = F(q)
        ni = 3 if q <= 5 else 8 - q
        sc = lambda k: (k * ni) // 3
        atm(q, sc(6), epi_units(q-3, 2))
        if q <= 5:
            atm(q, sc(18), multi("s_cmp_eq_u32 s%d, 3\n    s_cselect_b32 s%d, s%d, %d\n    s_cmp_ge_u32 s%d, 5\n    s_cselect_b32 s%d, 0, %d" % (S_IT, S_XINC, S_XJ, 2*ROWB, S_IT, S_X+2, X_BYTES)))
            atm(q, sc(18), xd_units())
        sb = SB if q < 7 else SB + 1
        at(b + sb, barrier(lgids=[lambda q=q: swid[q-3]]))
        m0 = sc(27 + 18*(sb - 3)) + 1
        for o, u in readback_units(q-3): atm(q, m0 + sc(o*RSP), u)
        if q <= 5:
            for tt in range(5):
                if not NOXD: atm(q, m0 + sc((3*tt + 1)*RSP + 1), x_units(q+2, tt, dyn=True))
        atm(q, sc(162 + 9), epi_units(q-2, 0))
        atm(q, sc(216 + 9), epi_units(q-2, 1))
        if q <= 5: at(E(q), barrier(vmids=[X(q+1)], dl=True))
    vm.wait(max(ids[('w',0,4)], ids[('x',0)]))
    e("s_barrier")
    stamp()
    dl_calc()
    for kk in range(3):
        for u in triple(kk): u()
        for b in range(3):
            for u in hload(0, b, kk): u()
    marks = []
    def close_loop():
        flush()
        marks.append(len(out))
        inloop[0] = False
        bodies = [out[marks[k]:marks[k+1]] for k in range(6 - LQ)]
        assert all(len(bd) == len(bodies[0]) for bd in bodies), [len(bd) for bd in bodies]
        merged = []
        rx = re.compile(r"\s*s_waitcnt (\w+)\((\d+)\)")
        for lines in zip(*bodies):
            if all(l == lines[0] for l in lines):
                if ";opt" in lines[0]: continue
                merged.append(lines[0]); continue
            ms = [rx.match(l) for l in lines]
            assert all(ms) and len(set(mm.group(1) for mm in ms)) == 1, lines
            merged.append("    s_waitcnt %s(%d)" % (ms[0].group(1), min(int(mm.group(2)) for mm in ms)))
        del out[marks[0]:]
        out.append("L_loop:")
        out.extend(merged)
        e("s_add_u32 s%d, s%d, 1" % (S_IT, S_IT))
        e("s_cmp_lt_u32 s%d, 6" % S_IT)
        e("s_cbranch_scc1 L_loop")
        stamp()
        if SK == 2:
            e("s_memrealtime s[70:71]"); e("s_waitcnt lgkmcnt(0)"); lg.clear()
    mc = 0; curq = -1
    for n in range(N):
        q, b_, kk, held, cb = items[n]
        for qq in range(2, 8):
            if n == F(qq): mc = 0; curq = qq
        if curq >= LQ and n == F(q) and LQ <= q <= 5:
            flush()
            if q == LQ:
                stamp()
                if SK == 2:
                    e("s_memrealtime s[66:67]"); e("s_waitcnt lgkmcnt(0)"); lg.clear()
            inloop[0] = True
            marks.append(len(out))
        if n == F(6): close_loop()
        for fn in ev.get(n, []): fn()
        needw = [(9*i + 3*j + kk)*3 + tp for (_, i, a, j, _) in cb for tp in range(3)]
        load_upto(n + D)
        while any(f not in wid for f in needw) or (held and held not in hid): fq.popleft()()
        lg.wait(max([hid[held] if held else ldid[n]] + [wid[f] for f in needw]))
        b = (H0 if held[0] == 0 else H1)(held[1], held[2]) if held else vr(V_B + 4*(sidx[n] % NB), 4)
        cnt = 0; tot = 3*len(cb)
        for (ab, i, a_, j, first) in cb:
            for tp in range(3):
                a = vr(ab + 12*a_ + 4*tp, 4)
                c = a if first is None else "0" if first == "0" else vr(first + 12*a_ + 4*tp, 4)
                e("v_mfma_f32_16x16x32_bf16 %s, %s, %s, %s" % (a, wfrag((9*i+3*j+kk)*3+tp), b, c))
                cnt += 1; mc += 1
                for us in evm.get((curq, mc), []): fq.extend(us)
                fill(0 if (cnt == tot and tot > 3) else 1)
    flush()
    stamp()
    e("s_nop 7")
    e("s_nop 7")
    if TT:
        acc = V_ACC + 72 + 24
        for d in range(6): e("v_cvt_pk_bf16_f32 v%d, v%d, v%d" % (V_PK+d, acc+2*d, acc+2*d+1))
        e("buffer_store_dwordx4 %s, v21, s[%d:%d], 0 offen %s" % (vr(V_PK, 4), S_O, S_O+3, SNT))
        e("buffer_store_dwordx2 %s, v21, s[%d:%d], 0 offen offset:16 %s" % (vr(V_PK+4, 2), S_O, S_O+3, SNT))
    else:
        for u in epi_units(5, 2): u()
        if not DIRECT: barrier(lgids=[lambda: swid[5]])()
        for o, us in readback_units(5):
            for u in us: u()
    stamp()
    e("s_waitcnt vmcnt(0)")
    stamp()
    rstamp()
    if STAMP:
        e("s_mov_b32 s%d, s90" % (64 + nstamp[0])); nstamp[0] += 1
    dump_stamps()
    if SK:
        e("s_memrealtime s[68:69]")
        if SK == 1: e("s_memtime s[70:71]")
        e("s_load_dwordx2 s[46:47], s[0:1], 32")
        e("s_waitcnt lgkmcnt(0)")
        e("s_mov_b32 s48, s46")
        e("s_and_b32 s49, s47, 0xffff")
        e("s_mov_b32 s50, 65536")
        e("s_mov_b32 s51, 0x20000")
        e("s_lshl_b32 s53, s2, 2")
        e("s_add_u32 s53, s53, s%d" % S_WAVE)
        e("s_lshl_b32 s53, s53, 4")
        e("v_mov_b32 v1, s53")
        e("v_mov_b32 v4, s64")
        e("v_mov_b32 v5, s68")
        e("v_mov_b32 v6, s66")
        e("v_mov_b32 v7, s70")
        e("buffer_store_dwordx4 v[4:7], v1, s[48:51], 0 offen")
        e("s_waitcnt vmcnt(0)")

header()
prologue()
main_loop()
footer()
open(sys.argv[1], "w").write("\n".join(out) + "\n")
print("lines", len(out), "stamps", nstamp[0])
```

```python
import sys, os, re
from collections import deque

KNAME = "standalone__dilated_atrous__vision_kernel"
X_BYTES = 384*384*96*2
W_BYTES = 9*96*96*2
ROWB = 384*192
SLOT = 10240
WA = 0
XB = 55296
WB1 = 106496
SPARE = 161792
OPITCH = 208
NB = 5
def P(n, d): return int(os.environ.get(n, str(d)))
D = P("D", 4)
PRO = P("PRO", 24)
QUO = P("QUO", 8)
SPL = P("SPL", 1)
SPW = P("SPW", 1)
SSP = P("SSP", 3)
WSPLIT = P("WSPLIT", 1)
CPF = P("CPF", 1)
WPF = P("WPF", 0)
FC = [int(c) for c in os.environ.get("FC", "111")]
FC0 = [int(c) for c in os.environ.get("FC0", "111")]
LQ = P("LQ", 2)
DIRECT = P("DIRECT", 0)
NOLD = P("NOLD", 0)
NOST = P("NOST", 0)
TT = P("TT", 0)
TB = P("TB", 22)
XIL = P("XIL", 3)
XW2 = P("XW2", 0)
W2B = P("W2B", 18)
SB = P("SB", 3)
RSP = P("RSP", 3)
SK = P("SK", 0)
ORD = P("ORD", 0)
XSP = P("XSP", 0)
LDP = P("LDP", 0)
LDP0 = P("LDP0", 0)
SPLITS = P("SPLITS", 0)
BOOST = P("BOOST", 7)
CH = 2
E1M = P("E1M", 190)
EP = P("EP", 9)
FM = P("FM", 0); FK = P("FK", 3); FKE = P("FKE", 1)
LB2 = [int(c) for c in os.environ.get("LB2", "-3,-2,-1").split(",")]
NOBA = P("NOBA", 0); NOXD = P("NOXD", 0); NOEPI = P("NOEPI", 0); NORB = P("NORB", 0); NOBAR = P("NOBAR", 0)
XNT = os.environ.get("XNT", "nt ")
SNT = os.environ.get("SNT", "sc1")

STAMP = len(sys.argv) > 2 and sys.argv[2] == "stamp"
out = []
def e(s): out.append("    " + s)

V_XOFF = 16; V_WOFF = 21; V_WTR = 24; BA = [27, 29, 0, 1, 37]; S_O2 = 84; S_O2N = 88; V_SW = 30; V_SR = 31; V_OA = 36; V_PK = 38; V_B = 44; V_ACC = 80
V_W = 188; V_WTR1 = 13

def wfrag(f):
    if f < 64: return "a[%d:%d]" % (4*f, 4*f+3)
    b = V_W + 4*(f-64)
    return "v[%d:%d]" % (b, b+3)
def wfrag_half(f, hf):
    if f < 64: return "a[%d:%d]" % (4*f+2*hf, 4*f+2*hf+1)
    b = V_W + 4*(f-64) + 2*hf
    return "v[%d:%d]" % (b, b+1)
def vr(b, n): return "v[%d:%d]" % (b, b+n-1)

S_X = 8; S_Wd = 12; S_O = 16
S_WAVE = 20; S_HH = 21; S_S = 22; S_CS = 23; S_PAR = 24; S_G = 25
S_T0 = 26; S_T1 = 27; S_T2 = 28; S_T3 = 29
S_XM0 = 32; S_WM0 = 33; S_COL0 = 34; S_W2L = 35; S_LO = 38; S_N = 39; S_XBASE = 42; S_W2L1 = 43
S_RT = 56; S_LT = 57; S_CUR = 58
S_TG = 59; S_XD = 60; S_IT = 61; S_TMP = 62; S_DL = 63; S_XH = 30; S_XINC = 31; S_XJ = 40; S_TMP2 = 41

nstamp = [0]
inloop = [False]
def stamp():
    if not STAMP or inloop[0]: return
    k = nstamp[0]; nstamp[0] += 1
    e("s_memtime s[44:45]")
    e("s_waitcnt lgkmcnt(0)")
    lg.clear()
    e("s_mov_b32 s%d, s44" % (64 + k))
def rstamp():
    if not STAMP: return
    k = nstamp[0]; nstamp[0] += 1
    e("s_memrealtime s[44:45]")
    e("s_waitcnt lgkmcnt(0)")
    lg.clear()
    e("s_mov_b32 s%d, s44" % (64 + k))
def dump_stamps():
    if not STAMP: return
    e("s_load_dwordx2 s[46:47], s[0:1], 24")
    e("s_waitcnt lgkmcnt(0)")
    e("s_mov_b32 s48, s46")
    e("s_and_b32 s49, s47, 0xffff")
    e("s_mov_b32 s50, 256")
    e("s_mov_b32 s51, 0x20000")
    e("s_mov_b32 s52, 1024")
    e("s_lshl_b32 s53, s2, 2")
    e("s_add_u32 s53, s53, s%d" % S_WAVE)
    e("s_cmp_eq_u32 s53, 0")
    e("s_cselect_b32 s52, 0, s52")
    e("s_cmp_eq_u32 s53, %d" % (133*4+3))
    e("s_cselect_b32 s52, 128, s52")
    e("v_mov_b32 v1, s52")
    n = nstamp[0]
    e("s_sub_u32 s92, s%d, s%d" % (64+n-2, 64+n-1))
    e("v_mov_b32 v2, s92")
    e("buffer_store_dword v2, v1, s[48:51], 0 offen offset:0")
    for k in range(1, n-2):
        e("s_sub_u32 s92, s%d, s64" % (64+k))
        e("v_mov_b32 v2, s92")
        e("buffer_store_dword v2, v1, s[48:51], 0 offen offset:%d" % (4*k))
    e("s_waitcnt vmcnt(0)")

class Tracker:
    def __init__(self, name, maxv):
        self.name = name; self.maxv = maxv; self.done = 0; self.n = 0
    def issue(self):
        self.n += 1
        return self.n
    def wait(self, opid):
        if opid is None or opid <= self.done:
            if inloop[0]: e("s_waitcnt %s(%d) ;opt" % (self.name, self.maxv))
            return
        cnt = min(self.n - opid, self.maxv)
        e("s_waitcnt %s(%d)" % (self.name, cnt))
        self.done = self.n - cnt
    def clear(self):
        self.done = self.n
lg = Tracker("lgkmcnt", 15)
vm = Tracker("vmcnt", 63)

def header():
    out.append("""; Kernarg layout for this problem (40 bytes, ptrs only, base s[0:1]):
;   offset   0: d_in[0] x  shape=(1, 384, 384, 96) dtype=bfloat16
;   offset   8: d_in[1] w  shape=(3, 3, 96, 96) dtype=bfloat16
;   offset  16: d_out     shape=(1, 384, 384, 96) dtype=bfloat16 (2 bytes/elem)
;   offset  24: d_debug   256 bytes
;   offset  32: d_ws      268435456 bytes workspace
; @launch grid=(256,1,1) block=(256,1,1) lds=163840
.amdgcn_target "amdgcn-amd-amdhsa--gfx950"
.text
.globl %s
.p2align 8
.type %s,@function
%s:""" % (KNAME, KNAME, KNAME))

def footer():
    out.append("""L_end:
    s_endpgm
.section .rodata,"a"
.p2align 6
.amdhsa_kernel %s
  .amdhsa_next_free_vgpr 512
  .amdhsa_next_free_sgpr 100
  .amdhsa_accum_offset 256
  .amdhsa_group_segment_fixed_size 0
  .amdhsa_kernarg_size 40
  .amdhsa_user_sgpr_count 2
  .amdhsa_user_sgpr_kernarg_segment_ptr 1
  .amdhsa_system_sgpr_workgroup_id_x 1
.end_amdhsa_kernel""" % KNAME)

ids = {}
fq = deque()
def multi(txt):
    parts = [p.strip() for p in txt.split("\n")]
    if not SPLITS: return [lambda: e(txt)]
    return [(lambda p=p: e(p)) for p in parts]
def fill(k=1):
    if len(fq) > BOOST and k > 0: k += 1
    for _ in range(k):
        if fq: fq.popleft()()
def flush():
    while fq: fq.popleft()()

def w_units(k, i):
    r = V_WOFF + (k % 3)
    base = WB1 if i == 1 else WA
    def u0():
        if k == 13: e("s_mov_b32 m0, s%d" % (S_W2L1 if i == 1 else S_W2L))
        else: e("s_add_u32 m0, s%d, %d" % (S_WM0, base + k*4096))
    def u1():
        if " m0," in out[-1]: e("s_nop 0")
        e("buffer_load_dwordx4 v%d, s[%d:%d], 0 offen lds" % (r, S_Wd, S_Wd+3))
        ids[('w', i, k)] = vm.issue()
    def u2():
        c = k % 3
        if k + 3 <= 13: adv = 12288
        else: adv = 55296 - (k - c)*4096
        e("v_add_u32 v%d, 0x%x, v%d" % (r, adv, r))
    return [u0, u1, u2]
def x_units(u, t, dyn=False):
    def u0():
        if dyn: e("s_add_u32 m0, s%d, %d" % (S_XD, t*1024))
        else: e("s_add_u32 m0, s%d, %d" % (S_XM0, XB + 20480*u + t*1024))
    def u1():
        if " m0," in out[-1]: e("s_nop 0")
        e("buffer_load_dwordx4 v%d, s[%d:%d], 0 offen %slds" % (V_XOFF+t, S_X, S_X+3, XNT))
        ids[('x', u)] = vm.issue()
    def u2():
        if dyn: e("v_add_u32 v%d, s%d, v%d" % (V_XOFF+t, S_XINC, V_XOFF+t))
        else: e("v_add_u32 v%d, %d, v%d" % (V_XOFF+t, 2*ROWB, V_XOFF+t))
    return [u0, u1, u2]
def xd_units():
    return multi("s_and_b32 s%d, s%d, 15\n    s_mul_i32 s%d, s%d, 10240\n    s_add_u32 s%d, s%d, s%d\n    s_lshr_b32 s%d, s%d, 4" % (S_TMP2, S_LT, S_TMP2, S_TMP2, S_XD, S_TMP2, S_XH, S_LT, S_LT))

def xoff_calc(t):
    L = []
    if t > 0: L.append("v_add_u32 v3, 64, v3")
    L += ["v_mul_u32_u24 v4, 43691, v3",
          "v_lshrrev_b32 v4, 19, v4",
          "v_mul_u32_u24 v5, 12, v4",
          "v_sub_u32 v5, v3, v5",
          "v_lshrrev_b32 v6, 1, v4",
          "v_and_b32 v6, 2, v6",
          "v_xor_b32 v5, v5, v6",
          "v_mul_u32_u24 v7, 192, v4",
          "v_subrev_u32 v6, s%d, v4" % S_LO,
          "v_lshl_add_u32 v7, v5, 4, v7",
          "v_cmp_gt_u32 vcc, s%d, v6" % S_N,
          "v_add_u32 v7, s%d, v7" % S_XBASE,
          "v_cndmask_b32 v%d, v8, v7, vcc" % (V_XOFF+t)]
    return L
def woff_calc(c):
    L = []
    if c > 0: L.append("v_add_u32 v9, 0x100, v9")
    L += ["v_mul_u32_u24 v10, 43691, v9",
          "v_lshrrev_b32 v10, 19, v10",
          "v_mul_u32_u24 v11, 12, v10",
          "v_sub_u32 v11, v9, v11",
          "v_lshrrev_b32 v12, 2, v10",
          "v_and_b32 v12, 2, v12",
          "v_sub_u32 v11, v11, v12",
          "v_add_u32 v12, 12, v11",
          "v_cmp_gt_i32 vcc, 0, v11",
          "v_mul_u32_u24 v13, 192, v10",
          "v_cndmask_b32 v11, v11, v12, vcc",
          "v_lshl_add_u32 v%d, v11, 4, v13" % (V_WOFF + c)]
    return L
def must_setup():
    L = []
    L += ["v_lshrrev_b32 v3, 4, v2",
          "v_lshrrev_b32 v4, 2, v2",
          "v_and_b32 v4, 3, v4",
          "v_lshl_add_u32 v4, v3, 3, v4",
          "v_mul_u32_u24 v4, 192, v4",
          "v_and_b32 v5, 3, v2",
          "v_mul_u32_u24 v5, 24, v5",
          "s_mul_i32 s%d, s%d, 96" % (S_T2, S_HH),
          "v_add_u32 v5, s%d, v5" % S_T2,
          "v_and_b32 v6, 1, v3",
          "v_lshlrev_b32 v6, 5, v6",
          "v_add_u32 v5, v5, v6"]
    for tp in range(3):
        L += ["v_add_u32 v6, %d, v5" % (8*tp),
              "v_subrev_u32 v7, 192, v6",
              "v_cmp_le_u32 vcc, 192, v6",
              "v_cndmask_b32 v6, v6, v7, vcc",
              "v_add_u32 v%d, v4, v6" % (V_WTR + tp)]
    L += ["v_and_b32 v4, 15, v2",
          "s_mul_i32 s%d, s%d, %d" % (S_CUR, S_S, SLOT),
          "s_add_u32 s%d, s%d, %d" % (S_T3, S_CUR, XB)]
    L += ["v_lshrrev_b32 v5, 1, v4",
          "v_and_b32 v6, 1, v4",
          "v_mul_u32_u24 v5, 6, v5",
          "v_add_u32 v28, v5, v6"]
    for j in range(5):
        L += ["v_add_u32 v5, %d, v28" % (2*j),
              "v_lshrrev_b32 v6, 1, v5",
              "v_and_b32 v6, 2, v6",
              "v_xor_b32 v6, v6, v3",
              "v_mul_u32_u24 v5, 192, v5",
              "v_lshl_add_u32 v5, v6, 4, v5",
              "v_add_u32 v%d, s%d, v5" % (BA[j], S_T3)]
    L += ["s_mov_b32 s%d, 0x04286031" % S_RT, "s_mov_b32 s%d, 0x602860" % S_LT, "s_mov_b32 s%d, %d" % (S_XJ, 4*ROWB),
          "s_cmp_eq_u32 s%d, 0\n    s_cselect_b32 s%d, 0x31975420, s%d\n    s_cselect_b32 s%d, 0x549754, s%d\n    s_cselect_b32 s%d, %d, s%d" % (S_S, S_RT, S_RT, S_LT, S_LT, S_XJ, 14*ROWB, S_XJ),
          "s_mul_i32 s%d, s%d, 5120" % (S_XH, S_HH),
          "s_add_u32 s%d, s%d, %d" % (S_XH, S_XH, XB),
          "s_mov_b32 s%d, %d" % (S_XINC, 2*ROWB)]
    for tp in range(3): L.append("v_add_u32 v%d, %d, v%d" % (V_WTR1+tp, WB1, V_WTR+tp))
    return L
def later_setup():
    L = []
    L += ["s_mov_b32 s%d, s36" % S_O,
          "s_and_b32 s%d, s37, 0xffff" % (S_O+1),
          "s_mov_b32 s%d, %d" % (S_O+2, X_BYTES if LQ == 3 else 0),
          "s_mov_b32 s%d, 0x20000" % (S_O+3),
          "s_mov_b32 s%d, 20480" % S_TG,
          "s_mov_b32 s%d, %d" % (S_IT, LQ),
          "s_mul_i32 s%d, s%d, 9984" % (S_T3, S_S),
          "s_add_u32 s%d, s%d, s%d" % (S_T2, S_T2, S_T3),
          "v_mul_u32_u24 v5, %d, v28" % OPITCH,
          "v_mul_u32_u24 v6, 24, v3",
          "v_add3_u32 v%d, v5, v6, s%d" % (V_SW, S_T2),
          "s_mul_i32 s%d, s%d, 320" % (S_T2, S_HH),
          "v_add_u32 v5, s%d, v2" % S_T2]
    for i in range(5):
        if i: L.append("v_add_u32 v5, 64, v5")
        L += ["v_mul_u32_u24 v6, 43691, v5",
              "v_lshrrev_b32 v6, 19, v6",
              "v_mul_u32_u24 v7, 12, v6",
              "v_sub_u32 v7, v5, v7",
              "v_mul_u32_u24 v6, %d, v6" % OPITCH,
              "v_lshl_add_u32 v6, v7, 4, v6",
              "v_add_u32 v%d, s%d, v6" % (V_SR + i, S_T3)]
    L += ["s_lshl_b32 s%d, s%d, 1" % (S_T2, S_G),
          "s_add_u32 s%d, s%d, s%d" % (S_T2, S_T2, S_S),
          "s_mul_i32 s%d, s%d, 12" % (S_T2, S_T2),
          "s_sub_u32 s%d, s%d, %d" % (S_T2, S_T2, 0 if LQ == 3 else 2),
          "s_add_u32 s%d, s%d, s%d" % (S_T2, S_T2, S_PAR),
          "s_mul_i32 s%d, s%d, 384" % (S_T2, S_T2),
          "s_add_u32 s%d, s%d, s%d" % (S_T2, S_T2, S_COL0),
          "s_mul_i32 s%d, s%d, 192" % (S_T2, S_T2),
          "s_mul_i32 s%d, s%d, 5120" % (S_T3, S_HH),
          "s_add_u32 s%d, s%d, s%d" % (S_T2, S_T2, S_T3),
          "v_lshlrev_b32 v5, 4, v2",
          "v_add_u32 v%d, s%d, v5" % (V_OA, S_T2),
          "s_add_u32 s%d, s36, 4096\n    s_addc_u32 s%d, s37, 0" % (S_O2, S_O2+1),
          "s_and_b32 s%d, s%d, 0xffff" % (S_O2+1, S_O2+1),
          "s_mov_b32 s%d, 0" % (S_O2+2),
          "s_mov_b32 s%d, 0x20000" % (S_O2+3),
          "s_cmp_eq_u32 s%d, 0\n    s_cselect_b32 s%d, %d, 0" % (S_HH, S_O2N, X_BYTES - 4096)]
    if DIRECT:
        L += ["v_mul_u32_u24 v5, 192, v4", "v_mul_u32_u24 v6, 24, v3",
              "s_mul_i32 s%d, s%d, %d" % (S_T3, S_HH, 96 - 5120),
              "s_add_u32 s%d, s%d, s%d" % (S_T2, S_T2, S_T3),
              "v_add3_u32 v%d, v5, v6, s%d" % (V_SR, S_T2),
              "v_add_u32 v%d, 6144, v%d" % (V_SR+1, V_SR)]
    return L

left_dma = []
left_setup = []
def prologue():
    e("s_cmp_ge_u32 s2, 256")
    e("s_cbranch_scc1 L_end")
    stamp()
    if SK:
        e("s_memrealtime s[64:65]")
        if SK == 1: e("s_memtime s[66:67]")
    if STAMP:
        e("s_memrealtime s[44:45]")
        e("s_waitcnt lgkmcnt(0)")
        e("s_mov_b32 s90, s44")
    e("s_load_dwordx4 s[4:7], s[0:1], 0")
    e("s_load_dwordx2 s[36:37], s[0:1], 16")
    if CPF:
        e("s_getpc_b64 s[54:55]")
        out.append("L_pc:")
        e("v_lshlrev_b32 v10, 7, v0")
        e("v_min_u32 v10, (L_end - L_pc), v10")
        e("v_mov_b32 v11, s55")
        e("v_add_co_u32 v10, vcc, s54, v10")
        e("v_addc_co_u32 v11, vcc, 0, v11, vcc")
        e("global_load_dword v63, v[10:11], off")
        vm.issue()
    for s in [
              "v_lshrrev_b32 v1, 6, v0",
              "v_and_b32 v2, 63, v0",
              "s_and_b32 s%d, s2, 7" % S_CS,
              "v_readfirstlane_b32 s%d, v1" % S_WAVE,
              "s_lshr_b32 s%d, s2, 3" % S_T0,
              "s_and_b32 s%d, s%d, 1" % (S_PAR, S_T0),
              "s_lshr_b32 s%d, s%d, 1" % (S_G, S_T0),
              "s_mul_i32 s%d, s%d, 48" % (S_COL0, S_CS),
              "s_and_b32 s%d, s%d, 1" % (S_HH, S_WAVE),
              "s_lshr_b32 s%d, s%d, 1" % (S_S, S_WAVE),
              "s_mul_i32 s%d, s%d, 320" % (S_T1, S_HH),
              "v_add_u32 v3, s%d, v2" % S_T1,
              "v_mov_b32 v9, v0",
              "v_bfrev_b32 v8, 1",
              "s_mul_i32 s%d, s%d, 24" % (S_T0, S_G),
              "s_add_u32 s%d, s%d, s%d" % (S_T0, S_T0, S_PAR),
              "s_mul_i32 s%d, s%d, 12" % (S_T1, S_S),
              "s_add_u32 s%d, s%d, s%d" % (S_T0, S_T0, S_T1),
              "s_sub_u32 s%d, s%d, 2" % (S_T0, S_T0),
              "s_mul_i32 s%d, s%d, 384" % (S_T0, S_T0),
              "s_add_u32 s%d, s%d, s%d" % (S_T0, S_T0, S_COL0),
              "s_sub_u32 s%d, s%d, 2" % (S_T0, S_T0),
              "s_mul_i32 s%d, s%d, 192" % (S_XBASE, S_T0),
              "s_cmp_eq_u32 s%d, 0" % S_CS,
              "s_cselect_b32 s%d, 2, 0" % S_LO,
              "s_cmp_eq_u32 s%d, 7" % S_CS,
              "s_cselect_b32 s%d, 50, 52" % S_N,
              "s_sub_u32 s%d, s%d, s%d" % (S_N, S_N, S_LO),
              "s_mul_i32 s%d, s%d, 5120" % (S_XM0, S_WAVE),
              "s_lshl_b32 s%d, s%d, 10" % (S_WM0, S_WAVE)]: e(s)
    for s in woff_calc(0): e(s)
    for s in xoff_calc(0): e(s)
    for s in ["s_mov_b32 s%d, %d" % (S_X+2, X_BYTES),
              "s_mov_b32 s%d, 0x20000" % (S_X+3),
              "s_mov_b32 s%d, %d" % (S_Wd+2, W_BYTES),
              "s_mov_b32 s%d, 0x20000" % (S_Wd+3),
              "s_waitcnt lgkmcnt(0)",
              "s_mov_b32 s%d, s4" % S_X,
              "s_and_b32 s%d, s5, 0xffff" % (S_X+1),
              "s_mov_b32 s%d, s6" % S_Wd,
              "s_and_b32 s%d, s7, 0xffff" % (S_Wd+1)]: e(s)
    stamp()
    def wpf():
        e("s_lshr_b32 s%d, s2, 3" % S_TMP)
        e("s_and_b32 s%d, s%d, 7" % (S_TMP, S_TMP))
        e("s_mul_i32 s%d, s%d, 20736" % (S_TMP, S_TMP))
        e("v_lshlrev_b32 v15, 7, v0")
        e("v_add_u32 v15, s%d, v15" % S_TMP)
        e("buffer_load_dword v15, v15, s[%d:%d], 0 offen" % (S_Wd, S_Wd+3))
        vm.issue()
    S = []; need = {}
    if ORD == 0:
        seq = [('x',0,0), ('w',0,0), ('x',0,1), ('w',0,1), ('x',0,2), ('w',0,2), ('x',0,3), ('w',0,3), ('x',0,4), ('w',0,4)]
        seq += [('w',0,k) for k in range(5, 14)]
    elif ORD == 1:
        seq = [('w',0,k) for k in range(14)] + [('x',0,t) for t in range(5)]
    elif ORD == 2:
        seq = [('w',0,k) for k in range(5)] + [('x',0,t) for t in range(5)] + [('w',0,k) for k in range(5, 14)]
    elif ORD == 3:
        seq = [('x',0,t) for t in range(5)] + [('w',0,k) for k in range(14)]
    elif ORD == 4:
        seq = [('w',0,k) for k in range(9)] + [('x',0,t) for t in range(5)] + [('w',0,k) for k in range(9, 14)]
    if ORD == 8:
        seq = []
        for u in range(2):
            for k in range(14):
                if k % XIL == 0 and k // XIL < 5: seq.append(('x', u, k // XIL))
                seq.append(('w', u, k))
    elif ORD == 5:
        seq = [('x',0,0), ('w',0,0), ('x',0,1), ('w',0,1), ('x',0,2), ('w',0,2), ('x',0,3), ('w',0,3), ('x',0,4), ('w',0,4)]
        seq += [('w',0,5), ('x',1,0), ('w',0,6), ('w',0,7), ('x',1,1), ('w',0,8), ('w',0,9), ('x',1,2), ('w',0,10), ('w',0,11), ('x',1,3), ('w',0,12), ('w',0,13), ('x',1,4)]
        seq += [('w',1,k) for k in range(14)]
    elif ORD == 6:
        seq = [('x',0,0), ('w',0,0), ('x',0,1), ('w',0,1), ('x',0,2), ('w',0,2), ('x',0,3), ('w',0,3), ('x',0,4), ('w',0,4)]
        seq += [('w',0,5), ('w',0,6), ('w',0,7), ('w',0,8), ('x',1,0), ('w',0,9), ('x',1,1), ('w',0,10), ('x',1,2), ('w',0,11), ('x',1,3), ('w',0,12), ('x',1,4), ('w',0,13)]
        seq += [('w',1,k) for k in range(14)]
    elif ORD == 7:
        seq = [('x',0,0), ('w',0,0), ('x',0,1), ('w',0,1), ('x',0,2), ('w',0,2), ('x',0,3), ('w',0,3), ('x',0,4), ('w',0,4)]
        seq += [('w',0,k) for k in range(5, 14)]
        seq += [('x',1,0), ('w',1,0), ('x',1,1), ('w',1,1), ('x',1,2), ('w',1,2), ('x',1,3), ('w',1,3), ('x',1,4), ('w',1,4)] + [('w',1,k) for k in range(5, 14)]
    else:
        seq += [('x',1,t) for t in range(5)] + [('w',1,k) for k in range(14)]
    w13 = ["s_add_u32 s%d, s%d, %d" % (S_W2L, S_WM0, WA + 13*4096),
          "s_add_u32 s%d, s%d, %d" % (S_W2L1, S_WM0, WB1 + 13*4096),
          "s_cmp_ge_u32 s%d, 2\n    s_cselect_b32 s%d, %d, s%d\n    s_cselect_b32 s%d, %d, s%d" % (S_WAVE, S_W2L, SPARE, S_W2L, S_W2L1, SPARE, S_W2L1)]
    for d in seq:
        if d[1] != 0: continue
        if d[0] == 'x' and d[2] > 0: S += xoff_calc(d[2]); need[d] = len(S)
        if d[0] == 'w' and d[2] in (1, 2): S += woff_calc(d[2]); need[d] = len(S)
        if d == ('w',0,13): S += w13; need[d] = len(S)
    S += must_setup(); nmust = len(S)
    S += later_setup()
    pos = 0
    for di, d in enumerate(seq):
        us = x_units(d[1], d[2]) if d[0] == 'x' else w_units(d[2], d[1])
        if di >= PRO:
            left_dma.append((d, us)); continue
        tgt = max(need.get(d, 0), min(len(S), pos + (QUO if di >= 2 else 0)))
        if d in (('w',0,13), ('xa',1,0)):
            while pos < need[d]: e(S[pos]); pos += 1
        us[0]()
        while pos < tgt: e(S[pos]); pos += 1
        us[1](); us[2]()
        if WPF and di == WPF - 1: wpf()
    while pos < nmust: e(S[pos]); pos += 1
    for s in S[pos:]: left_setup.append(lambda s=s: e(s))
    stamp()

wid = {}
def tr_units(f):
    ks_l = (f // 3) % 9
    tp = f % 3
    us = []
    for hf in range(2):
        def u(hf=hf):
            off = ks_l*6144 + hf*768
            e("ds_read_b64_tr_b16 %s, v%d offset:%d" % (wfrag_half(f, hf), (V_WTR1 if f // 27 == 1 else V_WTR) + tp, off))
            i = lg.issue()
            if hf == 1: wid[f] = i
        us.append(u)
    return us
def triple(ks):
    us = []
    for tp in range(3): us += tr_units(ks*3 + tp)
    return us

swid = {}
def epi_units(t, m):
    if DIRECT:
        acc = V_ACC + 72 + 12*m
        pk = 4 + 6*(m % 2)
        us = [(lambda d=d: e("v_cvt_pk_bf16_f32 v%d, v%d, v%d" % (pk+d, acc+2*d, acc+2*d+1))) for d in range(6)]
        def s4():
            e("buffer_store_dwordx4 %s, v%d, s[%d:%d], 0 offen offset:%d %s" % (vr(pk, 4), V_SR + (m // 2), S_O, S_O+3, (m % 2)*3072, SNT)); vm.issue()
        def s2():
            e("buffer_store_dwordx2 %s, v%d, s[%d:%d], 0 offen offset:%d %s" % (vr(pk+4, 2), V_SR + (m // 2), S_O, S_O+3, (m % 2)*3072 + 16, SNT)); vm.issue()
        us.insert(4, s4); us.append(s2)
        if m == 2:
            us += [lambda: e("v_add_u32 v%d, %d, v%d" % (V_SR, 2*ROWB, V_SR)), lambda: e("v_add_u32 v%d, %d, v%d" % (V_SR+1, 2*ROWB, V_SR+1)), lambda: e("s_mov_b32 s%d, %d" % (S_O+2, X_BYTES))]
        swid[t] = None
        return us
    if NOEPI:
        swid[t] = None
        return []
    acc = V_ACC + 72 + 12*m
    pk = V_PK
    us = []
    for d in range(3):
        us.append(lambda d=d: e("v_cvt_pk_bf16_f32 v%d, v%d, v%d" % (pk+2*d, acc+4*d, acc+4*d+1)))
        us.append(lambda d=d: e("v_cvt_pk_bf16_f32 v%d, v%d, v%d" % (pk+2*d+1, acc+4*d+2, acc+4*d+3)))
        def w(d=d):
            e("ds_write_b64 v%d, %s offset:%d" % (V_SW, vr(pk+2*d, 2), m*2*OPITCH + 8*d))
            swid[t] = lg.issue()
        us.append(w)
    return us

def readback_units(t, part=False):
    if NORB or DIRECT: return []
    us = []
    rid = {}
    for i in range(5):
        def r(i=i):
            e("ds_read_b128 %s, v%d" % (vr(4 + 4*(i % 3), 4), V_SR + i))
            rid[i] = lg.issue()
        def s(i=i):
            if NOST: return
            lg.wait(rid[i])
            if i < 4: e("buffer_store_dwordx4 %s, v%d, s[%d:%d], 0 offen offset:%d %s" % (vr(4 + 4*(i % 3), 4), (22 if part and i > 0 else V_OA), S_O, S_O+3, 1024*i, SNT))
            else: e("buffer_store_dwordx4 %s, v%d, s[%d:%d], 0 offen %s" % (vr(4 + 4*(i % 3), 4), V_OA, S_O2, S_O2+3, SNT))
            vm.issue()
        us.append((r, s))
    adv = [lambda: e("v_add_u32 v%d, %d, v%d" % (V_OA, 2*ROWB, V_OA)), lambda: e("s_mov_b32 s%d, s%d" % (S_O2+2, S_O2N)), lambda: e("s_mov_b32 s%d, %d" % (S_O+2, X_BYTES))]
    tog = [lambda i=i: e("v_add_u32 v%d, s%d, v%d" % (V_SR+i, S_TG, V_SR+i)) for i in range(5)]
    tog += [lambda: e("v_add_u32 v%d, s%d, v%d" % (V_SW, S_TG, V_SW)), lambda: e("s_sub_u32 s%d, 0, s%d" % (S_TG, S_TG))]
    tog = []
    if part: return [us[0][0], us[1][0], us[2][0], us[0][1], us[3][0], us[1][1], us[4][0], us[2][1], us[3][1], us[4][1]]
    return [(0, [us[0][0], us[1][0], us[2][0]]), (SSP, [us[0][1], us[3][0]]), (2*SSP, [us[1][1], us[4][0]]), (3*SSP, [us[2][1]] + tog), (4*SSP, [us[3][1]]), (5*SSP, [us[4][1]] + adv)]

def main_loop():
    items = []; Fq = []
    for q in range(8):
        Fq.append(len(items))
        if q < 2:
            for kq in range(9):
                for a in range(3): items.append((q, a + kq // 3, kq % 3, [(a, kq // 3)]))
        else:
            for b in range(5):
                for kk in range(3): items.append((q, b, kk, [(a, b - a) for a in range(3) if 0 <= b - a <= 2]))
    N = len(items); Fq.append(N)
    lastb = {}
    for n, it in enumerate(items): lastb[(it[0], it[1])] = n
    lastb = set(lastb.values())
    ev = {}; evm = {}
    def at(n, fn): ev.setdefault(max(n, 0), []).append(fn)
    def atq(n, units): at(n, lambda: fq.extend(units))
    def atm(q, k, units): evm.setdefault((q, k), []).append(units)
    F = lambda q: Fq[q]
    E = lambda q: F(q+1) - D
    ldid = {}
    GRP = [0, 1, 2, 0, 1]
    def bufof(n):
        if n < 54: return Q01[n]
        r = (n - 54) % 15
        return 3*GRP[r // 3] + r % 3
    Q01 = {}
    ROT = [5, 4, 3, 8, 2, 7, 1, 6, 0]
    for n in range(54): Q01[n] = ROT[(53 - n) % 9]
    LOFF = {0: [-3, -2, -1], 1: [0, 0, 0], 2: LB2, 3: [3, 4, 5], 4: [9, 9, 10]}
    lsched = {}
    for n in range(N):
        q, b, kk, _ = items[n]
        if q < 2: p = n - D
        else:
            p = F(q) + LOFF[b][kk]
        lsched.setdefault(max(p, -1), []).append(n)
    def load_units(n):
        q, b, kk, _ = items[n]
        def u():
            e("ds_read_b128 %s, v%d offset:%d" % (vr(V_B + 4*bufof(n), 4), BA[b], kk*64))
            ldid[n] = lg.issue()
        us = [u]
        if n in lastb and q < 7: us.append(lambda: e("v_add_u32 v%d, s%d, v%d" % (BA[b], S_DL, BA[b])))
        if q >= 2 and q <= 5 and (b, kk) == (4, 2): us += dl_units()
        return us
    def loads_at(p):
        us = []
        for n in lsched.get(p, []):
            if items[n][0] < 2:
                for u in load_units(n): u()
            else: us += load_units(n)
        fq.extendleft(reversed(us))
    def dl_units():
        return [lambda: e("s_lshr_b32 s%d, s%d, 4" % (S_RT, S_RT)),
                lambda: e("s_and_b32 s%d, s%d, 15" % (S_TMP, S_RT)),
                lambda: e("s_mul_i32 s%d, s%d, 10240" % (S_TMP, S_TMP)),
                lambda: e("s_sub_u32 s%d, s%d, s%d" % (S_DL, S_TMP, S_CUR)),
                lambda: e("s_mov_b32 s%d, s%d" % (S_CUR, S_TMP))]
    def dl_calc():
        e("s_lshr_b32 s%d, s%d, 4" % (S_RT, S_RT))
        e("s_and_b32 s%d, s%d, 15" % (S_TMP, S_RT))
        e("s_mul_i32 s%d, s%d, 10240" % (S_TMP, S_TMP))
        e("s_sub_u32 s%d, s%d, s%d" % (S_DL, S_TMP, S_CUR))
        e("s_mov_b32 s%d, s%d" % (S_CUR, S_TMP))
    def barrier(vmids=(), lgids=(), dl=False):
        def fn():
            flush()
            if dl: dl_calc()
            for x in lgids: lg.wait(x())
            for x in vmids: vm.wait(x())
            e("s_barrier")
            stamp()
        return fn
    W = lambda i, k: (lambda: ids[('w', i, k)])
    X = lambda u: (lambda: ids.get(('x', u)))
    assert LQ == 2
    pos = 0
    for d, us in left_dma:
        atq(pos, us); pos += SPL
    atq(max(pos, 6), left_setup)
    for i in range(2):
        for kq in range(9):
            if i == 0 and kq < 2: continue
            p = F(i) + 3*(kq-1) - 1
            if kq == 3: at(p, barrier(vmids=[W(i,8)]))
            if kq == 6: at(p, barrier(vmids=[W(i,13)]))
            if i == 1 and kq == 0:
                assert p == E(0)
                at(p, barrier(vmids=[X(1), W(1, 4)], lgids=[lambda: wid[26], lambda: ldid[26]], dl=True))
                q = p + 1
                atq(q, xd_units())
                if XW2 == 0:
                    for tt in range(5): atq(q, x_units(2, tt, dyn=True)); q += SPW
                    for k in range(14): atq(q, w_units(k, 2)); q += SPW
                else:
                    for k in range(14):
                        if k % XW2 == 0 and k // XW2 < 5: atq(q, x_units(2, k // XW2, dyn=True)); q += SPW
                        atq(q, w_units(k, 2)); q += SPW
            atq(p, triple(9*i + kq))
    at(F(1) + W2B, barrier(vmids=[W(2,8)]))
    for kq in range(6): atq(F(1) + W2B + (kq*(E(1) - F(1) - W2B))//6, triple(18 + kq))
    at(E(1), barrier(vmids=[X(2), W(2, 13)], lgids=[lambda: wid[53], lambda: wid[23*3+2]], dl=True))
    for kq in range(6, 9): atq(E(1), triple(18 + kq))
    atq(E(1) + 1, xd_units())
    for tt in range(5): atq(E(1) + 1 + tt // 2, x_units(3, tt, dyn=True))
    for q in range(2, 8):
        b = F(q)
        ni = 3 if q <= 5 else 8 - q
        sc = lambda k: (k * ni) // 3
        atm(q, sc(6), epi_units(q-3, 2))
        if q <= 5:
            atm(q, sc(18), multi("s_cmp_eq_u32 s%d, 3\n    s_cselect_b32 s%d, s%d, %d\n    s_cmp_ge_u32 s%d, 5\n    s_cselect_b32 s%d, 0, %d" % (S_IT, S_XINC, S_XJ, 2*ROWB, S_IT, S_X+2, X_BYTES)))
            atm(q, sc(18), xd_units())
        sb = SB if q < 7 else SB + 1
        at(b + sb, barrier(lgids=[lambda q=q: swid[q-3]]))
        m0 = sc(27 + 18*(sb - 3)) + 1
        for o, u in readback_units(q-3): atm(q, m0 + sc(o*RSP), u)
        if q <= 5:
            for tt in range(5):
                if not NOXD: atm(q, m0 + sc((3*tt + 1)*RSP + 1), x_units(q+2, tt, dyn=True))
        atm(q, sc(162 + 9), epi_units(q-2, 0))
        atm(q, sc(E1M), epi_units(q-2, 1))
        at(F(q) + EP, barrier(vmids=([X(q+1)] if q <= 5 else [])))
    vm.wait(max(ids[('w',0,4)], ids[('x',0)]))
    e("s_barrier")
    stamp()
    dl_calc()
    for u in triple(0): u()
    loads_at(-1)
    for u in triple(1): u()
    marks = []
    def close_loop():
        flush()
        marks.append(len(out))
        inloop[0] = False
        bodies = [out[marks[k]:marks[k+1]] for k in range(6 - LQ)]
        assert all(len(bd) == len(bodies[0]) for bd in bodies), [len(bd) for bd in bodies]
        merged = []
        rx = re.compile(r"\s*s_waitcnt (\w+)\((\d+)\)")
        for lines in zip(*bodies):
            if all(l == lines[0] for l in lines):
                if ";opt" in lines[0]: continue
                merged.append(lines[0]); continue
            ms = [rx.match(l) for l in lines]
            assert all(ms) and len(set(mm.group(1) for mm in ms)) == 1, lines
            merged.append("    s_waitcnt %s(%d)" % (ms[0].group(1), min(int(mm.group(2)) for mm in ms)))
        del out[marks[0]:]
        out.append("L_loop:")
        k = len(merged)
        while merged[k-1].strip().startswith("v_mfma"): k -= 1
        assert len(merged) - k >= 4
        merged.insert(len(merged) - 1, "    s_cmp_lt_u32 s%d, 6" % S_IT)
        merged.insert(len(merged) - 3, "    s_add_u32 s%d, s%d, 1" % (S_IT, S_IT))
        out.extend(merged)
        e("s_cbranch_scc1 L_loop")
        stamp()
        if SK == 2:
            e("s_memrealtime s[70:71]"); e("s_waitcnt lgkmcnt(0)"); lg.clear()
    mc = 0
    for n in range(N):
        q, b_, kk, combos = items[n]
        if n == F(q): mc = 0
        if n == F(q) and LQ <= q <= 5:
            flush()
            if q == LQ:
                stamp()
                if SK == 2:
                    e("s_memrealtime s[66:67]"); e("s_waitcnt lgkmcnt(0)"); lg.clear()
            inloop[0] = True
            marks.append(len(out))
        if n == F(6): close_loop()
        for fn in ev.get(n, []): fn()
        iset = [i for i in (2, 1, 0) if 0 <= q - i <= 5]
        if q < 2:
            ops = [(a_, j, i, tp, kk, n) for (a_, j) in combos for i in iset for tp in range(3)]
        else:
            a_ = [0, 0, 1, 2, 2][b_]
            bl = [[0], [1, 2], [1, 2, 3], [2, 3], [4]][b_]
            Lc = [(i, tp) for i in iset for tp in range(3)]
            m = len(Lc) // 3
            ops = [(a_, bb - a_, i, tp, k2, F(q) + 3*bb + k2) for (i, tp) in Lc[kk*m:(kk+1)*m] for bb in bl for k2 in range(3)]
        needw = [(9*i + 3*j + k2)*3 + tp for (a_, j, i, tp, k2, src) in ops]
        loads_at(n)
        while any(f not in wid for f in needw) or any(o[5] not in ldid for o in ops): fq.popleft()()
        if q < 2: lg.wait(max([ldid[n]] + [wid[f] for f in needw]))
        elif kk > 0: lg.wait(max(wid[f] for f in needw))
        cnt = 0; tot = len(ops)
        for (a_, j, i, tp, k2, src) in ops:
            if q >= 2 and kk == 0 and cnt < 3*len(bl) and (cnt == 0 or (b_, (src - F(q)) // 3) in ((0,0), (1,1), (1,2), (2,3), (4,4))): lg.wait(max([ldid[src]] + [wid[f] for f in needw]))
            a = vr(V_ACC + 36*i + 12*a_ + 4*tp, 4)
            c = a if (j, k2) != (0, 0) else "0" if i == 0 else vr(V_ACC + 36*(i-1) + 12*a_ + 4*tp, 4)
            e("v_mfma_f32_16x16x32_bf16 %s, %s, %s, %s" % (a, wfrag((9*i+3*j+k2)*3+tp), vr(V_B + 4*bufof(src), 4), c))
            cnt += 1; mc += 1
            for us in evm.get((q, mc), []): fq.extend(us)
            if FM and q >= 2:
                cl = 3*len(bl)
                if cnt % cl == 0:
                    for _ in range(FK if cnt < tot else FKE):
                        if fq: fq.popleft()()
                elif FM == 2 and cnt % 3 == 0 and fq: fq.popleft()()
            else: fill(0 if (cnt == tot and tot > 3) else 1)
    flush()
    stamp()
    e("s_nop 7")
    e("s_nop 7")
    if TT:
        acc = V_ACC + 72 + 24
        for d in range(6): e("v_cvt_pk_bf16_f32 v%d, v%d, v%d" % (V_PK+d, acc+2*d, acc+2*d+1))
        e("buffer_store_dwordx4 %s, v21, s[%d:%d], 0 offen %s" % (vr(V_PK, 4), S_O, S_O+3, SNT))
        e("buffer_store_dwordx2 %s, v21, s[%d:%d], 0 offen offset:16 %s" % (vr(V_PK+4, 2), S_O, S_O+3, SNT))
    else:
        for u in epi_units(5, 2): u()
        if not DIRECT: barrier(lgids=[lambda: swid[5]])()
        for o, us in readback_units(5):
            for u in us: u()
    stamp()
    e("s_waitcnt vmcnt(0)")
    stamp()
    rstamp()
    if STAMP:
        e("s_mov_b32 s%d, s90" % (64 + nstamp[0])); nstamp[0] += 1
    dump_stamps()
    if SK:
        e("s_memrealtime s[68:69]")
        if SK == 1: e("s_memtime s[70:71]")
        e("s_load_dwordx2 s[46:47], s[0:1], 32")
        e("s_waitcnt lgkmcnt(0)")
        e("s_mov_b32 s48, s46")
        e("s_and_b32 s49, s47, 0xffff")
        e("s_mov_b32 s50, 65536")
        e("s_mov_b32 s51, 0x20000")
        e("s_lshl_b32 s53, s2, 2")
        e("s_add_u32 s53, s53, s%d" % S_WAVE)
        e("s_lshl_b32 s53, s53, 4")
        e("v_mov_b32 v1, s53")
        e("v_mov_b32 v4, s64")
        e("v_mov_b32 v5, s68")
        e("v_mov_b32 v6, s66")
        e("v_mov_b32 v7, s70")
        e("buffer_store_dwordx4 v[4:7], v1, s[48:51], 0 offen")
        e("s_waitcnt vmcnt(0)")

header()
prologue()
main_loop()
footer()
open(sys.argv[1], "w").write("\n".join(out) + "\n")
print("lines", len(out), "stamps", nstamp[0])
```

```python
import sys, os, re
from collections import deque

KNAME = "standalone__dilated_atrous__vision_kernel"
X_BYTES = 384*384*96*2
W_BYTES = 9*96*96*2
ROWB = 384*192
SLOT = 10240
WA = 0
XB = 55296
WB1 = 106496
SPARE = 161792
OPITCH = 208
NB = 5
def P(n, d): return int(os.environ.get(n, str(d)))
D = P("D", 4)
PRO = P("PRO", 24)
QUO = P("QUO", 8)
SPL = P("SPL", 1)
SPW = P("SPW", 1)
SSP = P("SSP", 3)
WSPLIT = P("WSPLIT", 1)
CPF = P("CPF", 1)
WPF = P("WPF", 0)
FC = [int(c) for c in os.environ.get("FC", "111")]
FC0 = [int(c) for c in os.environ.get("FC0", "111")]
LQ = P("LQ", 2)
DIRECT = P("DIRECT", 0)
NOLD = P("NOLD", 0)
NOST = P("NOST", 0)
TT = P("TT", 0)
TB = P("TB", 22)
XIL = P("XIL", 3)
XW2 = P("XW2", 0)
W2B = P("W2B", 18)
SB = P("SB", 3)
RSP = P("RSP", 3)
SK = P("SK", 0)
ORD = P("ORD", 0)
XSP = P("XSP", 0)
LDP = P("LDP", 0)
LDP0 = P("LDP0", 0)
SPLITS = P("SPLITS", 0)
BOOST = P("BOOST", 7)
CH = 2
E1M = P("E1M", 190)
EP = P("EP", 9)
FM = P("FM", 0); FK = P("FK", 3); FKE = P("FKE", 1)
LB2 = [int(c) for c in os.environ.get("LB2", "-3,-2,-1").split(",")]
NOBA = P("NOBA", 0); NOXD = P("NOXD", 0); NOEPI = P("NOEPI", 0); NORB = P("NORB", 0); NOBAR = P("NOBAR", 0)
XNT = os.environ.get("XNT", "nt ")
SNT = os.environ.get("SNT", "sc1")

STAMP = len(sys.argv) > 2 and sys.argv[2] == "stamp"
out = []
def e(s): out.append("    " + s)

V_XOFF = 16; V_WOFF = 21; V_WTR = 24; BA = [27, 29, 0, 1, 37]; S_O2 = 84; S_O2N = 88; V_SW = 30; V_SR = 31; V_OA = 36; V_PK = 38; V_B = 44; V_ACC = 80
V_W = 188; V_WTR1 = 13

def wfrag(f):
    if f < 64: return "a[%d:%d]" % (4*f, 4*f+3)
    b = V_W + 4*(f-64)
    return "v[%d:%d]" % (b, b+3)
def wfrag_half(f, hf):
    if f < 64: return "a[%d:%d]" % (4*f+2*hf, 4*f+2*hf+1)
    b = V_W + 4*(f-64) + 2*hf
    return "v[%d:%d]" % (b, b+1)
def vr(b, n): return "v[%d:%d]" % (b, b+n-1)

S_X = 8; S_Wd = 12; S_O = 16
S_WAVE = 20; S_HH = 21; S_S = 22; S_CS = 23; S_PAR = 24; S_G = 25
S_T0 = 26; S_T1 = 27; S_T2 = 28; S_T3 = 29
S_XM0 = 32; S_WM0 = 33; S_COL0 = 34; S_W2L = 35; S_LO = 38; S_N = 39; S_XBASE = 42; S_W2L1 = 43
S_RT = 56; S_LT = 57; S_CUR = 58
S_TG = 59; S_XD = 60; S_IT = 61; S_TMP = 62; S_DL = 63; S_XH = 30; S_XINC = 31; S_XJ = 40; S_TMP2 = 41

nstamp = [0]
inloop = [False]
def stamp():
    if not STAMP or inloop[0]: return
    k = nstamp[0]; nstamp[0] += 1
    e("s_memtime s[44:45]")
    e("s_waitcnt lgkmcnt(0)")
    lg.clear()
    e("s_mov_b32 s%d, s44" % (64 + k))
def rstamp():
    if not STAMP: return
    k = nstamp[0]; nstamp[0] += 1
    e("s_memrealtime s[44:45]")
    e("s_waitcnt lgkmcnt(0)")
    lg.clear()
    e("s_mov_b32 s%d, s44" % (64 + k))
def dump_stamps():
    if not STAMP: return
    e("s_load_dwordx2 s[46:47], s[0:1], 24")
    e("s_waitcnt lgkmcnt(0)")
    e("s_mov_b32 s48, s46")
    e("s_and_b32 s49, s47, 0xffff")
    e("s_mov_b32 s50, 256")
    e("s_mov_b32 s51, 0x20000")
    e("s_mov_b32 s52, 1024")
    e("s_lshl_b32 s53, s2, 2")
    e("s_add_u32 s53, s53, s%d" % S_WAVE)
    e("s_cmp_eq_u32 s53, 0")
    e("s_cselect_b32 s52, 0, s52")
    e("s_cmp_eq_u32 s53, %d" % (133*4+3))
    e("s_cselect_b32 s52, 128, s52")
    e("v_mov_b32 v1, s52")
    n = nstamp[0]
    e("s_sub_u32 s92, s%d, s%d" % (64+n-2, 64+n-1))
    e("v_mov_b32 v2, s92")
    e("buffer_store_dword v2, v1, s[48:51], 0 offen offset:0")
    for k in range(1, n-2):
        e("s_sub_u32 s92, s%d, s64" % (64+k))
        e("v_mov_b32 v2, s92")
        e("buffer_store_dword v2, v1, s[48:51], 0 offen offset:%d" % (4*k))
    e("s_waitcnt vmcnt(0)")

class Tracker:
    def __init__(self, name, maxv):
        self.name = name; self.maxv = maxv; self.done = 0; self.n = 0
    def issue(self):
        self.n += 1
        return self.n
    def wait(self, opid):
        if opid is None or opid <= self.done:
            if inloop[0]: e("s_waitcnt %s(%d) ;opt" % (self.name, self.maxv))
            return
        cnt = min(self.n - opid, self.maxv)
        e("s_waitcnt %s(%d)" % (self.name, cnt))
        self.done = self.n - cnt
    def clear(self):
        self.done = self.n
lg = Tracker("lgkmcnt", 15)
vm = Tracker("vmcnt", 63)

def header():
    out.append("""; Kernarg layout for this problem (40 bytes, ptrs only, base s[0:1]):
;   offset   0: d_in[0] x  shape=(1, 384, 384, 96) dtype=bfloat16
;   offset   8: d_in[1] w  shape=(3, 3, 96, 96) dtype=bfloat16
;   offset  16: d_out     shape=(1, 384, 384, 96) dtype=bfloat16 (2 bytes/elem)
;   offset  24: d_debug   256 bytes
;   offset  32: d_ws      268435456 bytes workspace
; @launch grid=(256,1,1) block=(256,1,1) lds=163840
.amdgcn_target "amdgcn-amd-amdhsa--gfx950"
.text
.globl %s
.p2align 8
.type %s,@function
%s:""" % (KNAME, KNAME, KNAME))

def footer():
    out.append("""L_end:
    s_endpgm
.section .rodata,"a"
.p2align 6
.amdhsa_kernel %s
  .amdhsa_next_free_vgpr 512
  .amdhsa_next_free_sgpr 100
  .amdhsa_accum_offset 256
  .amdhsa_group_segment_fixed_size 0
  .amdhsa_kernarg_size 40
  .amdhsa_user_sgpr_count 2
  .amdhsa_user_sgpr_kernarg_segment_ptr 1
  .amdhsa_system_sgpr_workgroup_id_x 1
.end_amdhsa_kernel""" % KNAME)

ids = {}
fq = deque()
def multi(txt):
    parts = [p.strip() for p in txt.split("\n")]
    if not SPLITS: return [lambda: e(txt)]
    return [(lambda p=p: e(p)) for p in parts]
def fill(k=1):
    if len(fq) > BOOST and k > 0: k += 1
    for _ in range(k):
        if fq: fq.popleft()()
def flush():
    while fq: fq.popleft()()

def w_units(k, i):
    r = V_WOFF + (k % 3)
    base = WB1 if i == 1 else WA
    def u0():
        if k == 13: e("s_mov_b32 m0, s%d" % (S_W2L1 if i == 1 else S_W2L))
        else: e("s_add_u32 m0, s%d, %d" % (S_WM0, base + k*4096))
    def u1():
        if " m0," in out[-1]: e("s_nop 0")
        e("buffer_load_dwordx4 v%d, s[%d:%d], 0 offen lds" % (r, S_Wd, S_Wd+3))
        ids[('w', i, k)] = vm.issue()
    def u2():
        c = k % 3
        if k + 3 <= 13: adv = 12288
        else: adv = 55296 - (k - c)*4096
        e("v_add_u32 v%d, 0x%x, v%d" % (r, adv, r))
    return [u0, u1, u2]
def x_units(u, t, dyn=False):
    def u0():
        if dyn: e("s_add_u32 m0, s%d, %d" % (S_XD, t*1024))
        else: e("s_add_u32 m0, s%d, %d" % (S_XM0, XB + 20480*u + t*1024))
    def u1():
        if " m0," in out[-1]: e("s_nop 0")
        e("buffer_load_dwordx4 v%d, s[%d:%d], 0 offen %slds" % (V_XOFF+t, S_X, S_X+3, XNT))
        ids[('x', u)] = vm.issue()
    def u2():
        if dyn: e("v_add_u32 v%d, s%d, v%d" % (V_XOFF+t, S_XINC, V_XOFF+t))
        else: e("v_add_u32 v%d, %d, v%d" % (V_XOFF+t, 2*ROWB, V_XOFF+t))
    return [u0, u1, u2]
def xd_units():
    return multi("s_and_b32 s%d, s%d, 15\n    s_mul_i32 s%d, s%d, 10240\n    s_add_u32 s%d, s%d, s%d\n    s_lshr_b32 s%d, s%d, 4" % (S_TMP2, S_LT, S_TMP2, S_TMP2, S_XD, S_TMP2, S_XH, S_LT, S_LT))

def xoff_calc(t):
    L = []
    if t > 0: L.append("v_add_u32 v3, 64, v3")
    L += ["v_mul_u32_u24 v4, 43691, v3",
          "v_lshrrev_b32 v4, 19, v4",
          "v_mul_u32_u24 v5, 12, v4",
          "v_sub_u32 v5, v3, v5",
          "v_lshrrev_b32 v6, 1, v4",
          "v_and_b32 v6, 2, v6",
          "v_xor_b32 v5, v5, v6",
          "v_mul_u32_u24 v7, 192, v4",
          "v_subrev_u32 v6, s%d, v4" % S_LO,
          "v_lshl_add_u32 v7, v5, 4, v7",
          "v_cmp_gt_u32 vcc, s%d, v6" % S_N,
          "v_add_u32 v7, s%d, v7" % S_XBASE,
          "v_cndmask_b32 v%d, v8, v7, vcc" % (V_XOFF+t)]
    return L
def woff_calc(c):
    L = []
    if c > 0: L.append("v_add_u32 v9, 0x100, v9")
    L += ["v_mul_u32_u24 v10, 43691, v9",
          "v_lshrrev_b32 v10, 19, v10",
          "v_mul_u32_u24 v11, 12, v10",
          "v_sub_u32 v11, v9, v11",
          "v_lshrrev_b32 v12, 2, v10",
          "v_and_b32 v12, 2, v12",
          "v_sub_u32 v11, v11, v12",
          "v_add_u32 v12, 12, v11",
          "v_cmp_gt_i32 vcc, 0, v11",
          "v_mul_u32_u24 v13, 192, v10",
          "v_cndmask_b32 v11, v11, v12, vcc",
          "v_lshl_add_u32 v%d, v11, 4, v13" % (V_WOFF + c)]
    return L
def must_setup():
    L = []
    L += ["v_lshrrev_b32 v3, 4, v2",
          "v_lshrrev_b32 v4, 2, v2",
          "v_and_b32 v4, 3, v4",
          "v_lshl_add_u32 v4, v3, 3, v4",
          "v_mul_u32_u24 v4, 192, v4",
          "v_and_b32 v5, 3, v2",
          "v_mul_u32_u24 v5, 24, v5",
          "s_mul_i32 s%d, s%d, 96" % (S_T2, S_HH),
          "v_add_u32 v5, s%d, v5" % S_T2,
          "v_and_b32 v6, 1, v3",
          "v_lshlrev_b32 v6, 5, v6",
          "v_add_u32 v5, v5, v6"]
    for tp in range(3):
        L += ["v_add_u32 v6, %d, v5" % (8*tp),
              "v_subrev_u32 v7, 192, v6",
              "v_cmp_le_u32 vcc, 192, v6",
              "v_cndmask_b32 v6, v6, v7, vcc",
              "v_add_u32 v%d, v4, v6" % (V_WTR + tp)]
    L += ["v_and_b32 v4, 15, v2",
          "s_mul_i32 s%d, s%d, %d" % (S_CUR, S_S, SLOT),
          "s_add_u32 s%d, s%d, %d" % (S_T3, S_CUR, XB)]
    L += ["v_lshrrev_b32 v5, 1, v4",
          "v_and_b32 v6, 1, v4",
          "v_mul_u32_u24 v5, 6, v5",
          "v_add_u32 v28, v5, v6"]
    for j in range(5):
        L += ["v_add_u32 v5, %d, v28" % (2*j),
              "v_lshrrev_b32 v6, 1, v5",
              "v_and_b32 v6, 2, v6",
              "v_xor_b32 v6, v6, v3",
              "v_mul_u32_u24 v5, 192, v5",
              "v_lshl_add_u32 v5, v6, 4, v5",
              "v_add_u32 v%d, s%d, v5" % (BA[j], S_T3)]
    L += ["s_mov_b32 s%d, 0x04286031" % S_RT, "s_mov_b32 s%d, 0x602860" % S_LT, "s_mov_b32 s%d, %d" % (S_XJ, 4*ROWB),
          "s_cmp_eq_u32 s%d, 0\n    s_cselect_b32 s%d, 0x31975420, s%d\n    s_cselect_b32 s%d, 0x549754, s%d\n    s_cselect_b32 s%d, %d, s%d" % (S_S, S_RT, S_RT, S_LT, S_LT, S_XJ, 14*ROWB, S_XJ),
          "s_mul_i32 s%d, s%d, 5120" % (S_XH, S_HH),
          "s_add_u32 s%d, s%d, %d" % (S_XH, S_XH, XB),
          "s_mov_b32 s%d, %d" % (S_XINC, 2*ROWB)]
    for tp in range(3): L.append("v_add_u32 v%d, %d, v%d" % (V_WTR1+tp, WB1, V_WTR+tp))
    return L
def later_setup():
    L = []
    L += ["s_mov_b32 s%d, s36" % S_O,
          "s_and_b32 s%d, s37, 0xffff" % (S_O+1),
          "s_mov_b32 s%d, %d" % (S_O+2, X_BYTES if LQ == 3 else 0),
          "s_mov_b32 s%d, 0x20000" % (S_O+3),
          "s_mov_b32 s%d, 20480" % S_TG,
          "s_mov_b32 s%d, %d" % (S_IT, LQ),
          "s_mul_i32 s%d, s%d, 9984" % (S_T3, S_S),
          "s_add_u32 s%d, s%d, s%d" % (S_T2, S_T2, S_T3),
          "v_mul_u32_u24 v5, %d, v28" % OPITCH,
          "v_mul_u32_u24 v6, 24, v3",
          "v_add3_u32 v%d, v5, v6, s%d" % (V_SW, S_T2),
          "s_mul_i32 s%d, s%d, 320" % (S_T2, S_HH),
          "v_add_u32 v5, s%d, v2" % S_T2]
    for i in range(5):
        if i: L.append("v_add_u32 v5, 64, v5")
        L += ["v_mul_u32_u24 v6, 43691, v5",
              "v_lshrrev_b32 v6, 19, v6",
              "v_mul_u32_u24 v7, 12, v6",
              "v_sub_u32 v7, v5, v7",
              "v_mul_u32_u24 v6, %d, v6" % OPITCH,
              "v_lshl_add_u32 v6, v7, 4, v6",
              "v_add_u32 v%d, s%d, v6" % (V_SR + i, S_T3)]
    L += ["s_lshl_b32 s%d, s%d, 1" % (S_T2, S_G),
          "s_add_u32 s%d, s%d, s%d" % (S_T2, S_T2, S_S),
          "s_mul_i32 s%d, s%d, 12" % (S_T2, S_T2),
          "s_sub_u32 s%d, s%d, %d" % (S_T2, S_T2, 0 if LQ == 3 else 2),
          "s_add_u32 s%d, s%d, s%d" % (S_T2, S_T2, S_PAR),
          "s_mul_i32 s%d, s%d, 384" % (S_T2, S_T2),
          "s_add_u32 s%d, s%d, s%d" % (S_T2, S_T2, S_COL0),
          "s_mul_i32 s%d, s%d, 192" % (S_T2, S_T2),
          "s_mul_i32 s%d, s%d, 5120" % (S_T3, S_HH),
          "s_add_u32 s%d, s%d, s%d" % (S_T2, S_T2, S_T3),
          "v_lshlrev_b32 v5, 4, v2",
          "v_add_u32 v%d, s%d, v5" % (V_OA, S_T2),
          "s_add_u32 s%d, s36, 4096\n    s_addc_u32 s%d, s37, 0" % (S_O2, S_O2+1),
          "s_and_b32 s%d, s%d, 0xffff" % (S_O2+1, S_O2+1),
          "s_mov_b32 s%d, 0" % (S_O2+2),
          "s_mov_b32 s%d, 0x20000" % (S_O2+3),
          "s_cmp_eq_u32 s%d, 0\n    s_cselect_b32 s%d, %d, 0" % (S_HH, S_O2N, X_BYTES - 4096)]
    if DIRECT:
        L += ["v_mul_u32_u24 v5, 192, v4", "v_mul_u32_u24 v6, 24, v3",
              "s_mul_i32 s%d, s%d, %d" % (S_T3, S_HH, 96 - 5120),
              "s_add_u32 s%d, s%d, s%d" % (S_T2, S_T2, S_T3),
              "v_add3_u32 v%d, v5, v6, s%d" % (V_SR, S_T2),
              "v_add_u32 v%d, 6144, v%d" % (V_SR+1, V_SR)]
    return L

left_dma = []
left_setup = []
def prologue():
    e("s_cmp_ge_u32 s2, 256")
    e("s_cbranch_scc1 L_end")
    stamp()
    if SK:
        e("s_memrealtime s[64:65]")
        if SK == 1: e("s_memtime s[66:67]")
    if STAMP:
        e("s_memrealtime s[44:45]")
        e("s_waitcnt lgkmcnt(0)")
        e("s_mov_b32 s90, s44")
    e("s_load_dwordx4 s[4:7], s[0:1], 0")
    e("s_load_dwordx2 s[36:37], s[0:1], 16")
    if CPF:
        e("s_getpc_b64 s[54:55]")
        out.append("L_pc:")
        e("v_lshlrev_b32 v10, 7, v0")
        e("v_min_u32 v10, (L_end - L_pc), v10")
        e("v_mov_b32 v11, s55")
        e("v_add_co_u32 v10, vcc, s54, v10")
        e("v_addc_co_u32 v11, vcc, 0, v11, vcc")
        e("global_load_dword v63, v[10:11], off")
        vm.issue()
    for s in [
              "v_lshrrev_b32 v1, 6, v0",
              "v_and_b32 v2, 63, v0",
              "s_and_b32 s%d, s2, 7" % S_CS,
              "v_readfirstlane_b32 s%d, v1" % S_WAVE,
              "s_lshr_b32 s%d, s2, 3" % S_T0,
              "s_and_b32 s%d, s%d, 1" % (S_PAR, S_T0),
              "s_lshr_b32 s%d, s%d, 1" % (S_G, S_T0),
              "s_mul_i32 s%d, s%d, 48" % (S_COL0, S_CS),
              "s_and_b32 s%d, s%d, 1" % (S_HH, S_WAVE),
              "s_lshr_b32 s%d, s%d, 1" % (S_S, S_WAVE),
              "s_mul_i32 s%d, s%d, 320" % (S_T1, S_HH),
              "v_add_u32 v3, s%d, v2" % S_T1,
              "v_mov_b32 v9, v0",
              "v_bfrev_b32 v8, 1",
              "s_mul_i32 s%d, s%d, 24" % (S_T0, S_G),
              "s_add_u32 s%d, s%d, s%d" % (S_T0, S_T0, S_PAR),
              "s_mul_i32 s%d, s%d, 12" % (S_T1, S_S),
              "s_add_u32 s%d, s%d, s%d" % (S_T0, S_T0, S_T1),
              "s_sub_u32 s%d, s%d, 2" % (S_T0, S_T0),
              "s_mul_i32 s%d, s%d, 384" % (S_T0, S_T0),
              "s_add_u32 s%d, s%d, s%d" % (S_T0, S_T0, S_COL0),
              "s_sub_u32 s%d, s%d, 2" % (S_T0, S_T0),
              "s_mul_i32 s%d, s%d, 192" % (S_XBASE, S_T0),
              "s_cmp_eq_u32 s%d, 0" % S_CS,
              "s_cselect_b32 s%d, 2, 0" % S_LO,
              "s_cmp_eq_u32 s%d, 7" % S_CS,
              "s_cselect_b32 s%d, 50, 52" % S_N,
              "s_sub_u32 s%d, s%d, s%d" % (S_N, S_N, S_LO),
              "s_mul_i32 s%d, s%d, 5120" % (S_XM0, S_WAVE),
              "s_lshl_b32 s%d, s%d, 10" % (S_WM0, S_WAVE)]: e(s)
    for s in woff_calc(0): e(s)
    for s in xoff_calc(0): e(s)
    for s in ["s_mov_b32 s%d, %d" % (S_X+2, X_BYTES),
              "s_mov_b32 s%d, 0x20000" % (S_X+3),
              "s_mov_b32 s%d, %d" % (S_Wd+2, W_BYTES),
              "s_mov_b32 s%d, 0x20000" % (S_Wd+3),
              "s_waitcnt lgkmcnt(0)",
              "s_mov_b32 s%d, s4" % S_X,
              "s_and_b32 s%d, s5, 0xffff" % (S_X+1),
              "s_mov_b32 s%d, s6" % S_Wd,
              "s_and_b32 s%d, s7, 0xffff" % (S_Wd+1)]: e(s)
    stamp()
    def wpf():
        e("s_lshr_b32 s%d, s2, 3" % S_TMP)
        e("s_and_b32 s%d, s%d, 7" % (S_TMP, S_TMP))
        e("s_mul_i32 s%d, s%d, 20736" % (S_TMP, S_TMP))
        e("v_lshlrev_b32 v15, 7, v0")
        e("v_add_u32 v15, s%d, v15" % S_TMP)
        e("buffer_load_dword v15, v15, s[%d:%d], 0 offen" % (S_Wd, S_Wd+3))
        vm.issue()
    S = []; need = {}
    if ORD == 0:
        seq = [('x',0,0), ('w',0,0), ('x',0,1), ('w',0,1), ('x',0,2), ('w',0,2), ('x',0,3), ('w',0,3), ('x',0,4), ('w',0,4)]
        seq += [('w',0,k) for k in range(5, 14)]
    elif ORD == 1:
        seq = [('w',0,k) for k in range(14)] + [('x',0,t) for t in range(5)]
    elif ORD == 2:
        seq = [('w',0,k) for k in range(5)] + [('x',0,t) for t in range(5)] + [('w',0,k) for k in range(5, 14)]
    elif ORD == 3:
        seq = [('x',0,t) for t in range(5)] + [('w',0,k) for k in range(14)]
    elif ORD == 4:
        seq = [('w',0,k) for k in range(9)] + [('x',0,t) for t in range(5)] + [('w',0,k) for k in range(9, 14)]
    if ORD == 8:
        seq = []
        for u in range(2):
            for k in range(14):
                if k % XIL == 0 and k // XIL < 5: seq.append(('x', u, k // XIL))
                seq.append(('w', u, k))
    elif ORD == 5:
        seq = [('x',0,0), ('w',0,0), ('x',0,1), ('w',0,1), ('x',0,2), ('w',0,2), ('x',0,3), ('w',0,3), ('x',0,4), ('w',0,4)]
        seq += [('w',0,5), ('x',1,0), ('w',0,6), ('w',0,7), ('x',1,1), ('w',0,8), ('w',0,9), ('x',1,2), ('w',0,10), ('w',0,11), ('x',1,3), ('w',0,12), ('w',0,13), ('x',1,4)]
        seq += [('w',1,k) for k in range(14)]
    elif ORD == 6:
        seq = [('x',0,0), ('w',0,0), ('x',0,1), ('w',0,1), ('x',0,2), ('w',0,2), ('x',0,3), ('w',0,3), ('x',0,4), ('w',0,4)]
        seq += [('w',0,5), ('w',0,6), ('w',0,7), ('w',0,8), ('x',1,0), ('w',0,9), ('x',1,1), ('w',0,10), ('x',1,2), ('w',0,11), ('x',1,3), ('w',0,12), ('x',1,4), ('w',0,13)]
        seq += [('w',1,k) for k in range(14)]
    elif ORD == 7:
        seq = [('x',0,0), ('w',0,0), ('x',0,1), ('w',0,1), ('x',0,2), ('w',0,2), ('x',0,3), ('w',0,3), ('x',0,4), ('w',0,4)]
        seq += [('w',0,k) for k in range(5, 14)]
        seq += [('x',1,0), ('w',1,0), ('x',1,1), ('w',1,1), ('x',1,2), ('w',1,2), ('x',1,3), ('w',1,3), ('x',1,4), ('w',1,4)] + [('w',1,k) for k in range(5, 14)]
    else:
        seq += [('x',1,t) for t in range(5)] + [('w',1,k) for k in range(14)]
    w13 = ["s_add_u32 s%d, s%d, %d" % (S_W2L, S_WM0, WA + 13*4096),
          "s_add_u32 s%d, s%d, %d" % (S_W2L1, S_WM0, WB1 + 13*4096),
          "s_cmp_ge_u32 s%d, 2\n    s_cselect_b32 s%d, %d, s%d\n    s_cselect_b32 s%d, %d, s%d" % (S_WAVE, S_W2L, SPARE, S_W2L, S_W2L1, SPARE, S_W2L1)]
    for d in seq:
        if d[1] != 0: continue
        if d[0] == 'x' and d[2] > 0: S += xoff_calc(d[2]); need[d] = len(S)
        if d[0] == 'w' and d[2] in (1, 2): S += woff_calc(d[2]); need[d] = len(S)
        if d == ('w',0,13): S += w13; need[d] = len(S)
    S += must_setup(); nmust = len(S)
    S += later_setup()
    pos = 0
    for di, d in enumerate(seq):
        us = x_units(d[1], d[2]) if d[0] == 'x' else w_units(d[2], d[1])
        if di >= PRO:
            left_dma.append((d, us)); continue
        tgt = max(need.get(d, 0), min(len(S), pos + (QUO if di >= 2 else 0)))
        if d in (('w',0,13), ('xa',1,0)):
            while pos < need[d]: e(S[pos]); pos += 1
        us[0]()
        while pos < tgt: e(S[pos]); pos += 1
        us[1](); us[2]()
        if WPF and di == WPF - 1: wpf()
    while pos < nmust: e(S[pos]); pos += 1
    for s in S[pos:]: left_setup.append(lambda s=s: e(s))
    stamp()

wid = {}
def tr_units(f):
    ks_l = (f // 3) % 9
    tp = f % 3
    us = []
    for hf in range(2):
        def u(hf=hf):
            off = ks_l*6144 + hf*768
            e("ds_read_b64_tr_b16 %s, v%d offset:%d" % (wfrag_half(f, hf), (V_WTR1 if f // 27 == 1 else V_WTR) + tp, off))
            i = lg.issue()
            if hf == 1: wid[f] = i
        us.append(u)
    return us
def triple(ks):
    us = []
    for tp in range(3): us += tr_units(ks*3 + tp)
    return us

swid = {}
def epi_units(t, m):
    if DIRECT:
        acc = V_ACC + 72 + 12*m
        pk = 4 + 6*(m % 2)
        us = [(lambda d=d: e("v_cvt_pk_bf16_f32 v%d, v%d, v%d" % (pk+d, acc+2*d, acc+2*d+1))) for d in range(6)]
        def s4():
            e("buffer_store_dwordx4 %s, v%d, s[%d:%d], 0 offen offset:%d %s" % (vr(pk, 4), V_SR + (m // 2), S_O, S_O+3, (m % 2)*3072, SNT)); vm.issue()
        def s2():
            e("buffer_store_dwordx2 %s, v%d, s[%d:%d], 0 offen offset:%d %s" % (vr(pk+4, 2), V_SR + (m // 2), S_O, S_O+3, (m % 2)*3072 + 16, SNT)); vm.issue()
        us.insert(4, s4); us.append(s2)
        if m == 2:
            us += [lambda: e("v_add_u32 v%d, %d, v%d" % (V_SR, 2*ROWB, V_SR)), lambda: e("v_add_u32 v%d, %d, v%d" % (V_SR+1, 2*ROWB, V_SR+1)), lambda: e("s_mov_b32 s%d, %d" % (S_O+2, X_BYTES))]
        swid[t] = None
        return us
    if NOEPI:
        swid[t] = None
        return []
    acc = V_ACC + 72 + 12*m
    pk = V_PK
    us = []
    for d in range(3):
        us.append(lambda d=d: e("v_cvt_pk_bf16_f32 v%d, v%d, v%d" % (pk+2*d, acc+4*d, acc+4*d+1)))
        us.append(lambda d=d: e("v_cvt_pk_bf16_f32 v%d, v%d, v%d" % (pk+2*d+1, acc+4*d+2, acc+4*d+3)))
        def w(d=d):
            e("ds_write_b64 v%d, %s offset:%d" % (V_SW, vr(pk+2*d, 2), m*2*OPITCH + 8*d))
            swid[t] = lg.issue()
        us.append(w)
    return us

def readback_units(t, part=False):
    if NORB or DIRECT: return []
    us = []
    rid = {}
    for i in range(5):
        def r(i=i):
            e("ds_read_b128 %s, v%d" % (vr(4 + 4*(i % 3), 4), V_SR + i))
            rid[i] = lg.issue()
        def s(i=i):
            if NOST: return
            lg.wait(rid[i])
            if i < 4: e("buffer_store_dwordx4 %s, v%d, s[%d:%d], 0 offen offset:%d %s" % (vr(4 + 4*(i % 3), 4), (22 if part and i > 0 else V_OA), S_O, S_O+3, 1024*i, SNT))
            else: e("buffer_store_dwordx4 %s, v%d, s[%d:%d], 0 offen %s" % (vr(4 + 4*(i % 3), 4), V_OA, S_O2, S_O2+3, SNT))
            vm.issue()
        us.append((r, s))
    adv = [lambda: e("v_add_u32 v%d, %d, v%d" % (V_OA, 2*ROWB, V_OA)), lambda: e("s_mov_b32 s%d, s%d" % (S_O2+2, S_O2N)), lambda: e("s_mov_b32 s%d, %d" % (S_O+2, X_BYTES))]
    tog = [lambda i=i: e("v_add_u32 v%d, s%d, v%d" % (V_SR+i, S_TG, V_SR+i)) for i in range(5)]
    tog += [lambda: e("v_add_u32 v%d, s%d, v%d" % (V_SW, S_TG, V_SW)), lambda: e("s_sub_u32 s%d, 0, s%d" % (S_TG, S_TG))]
    tog = []
    if part: return [us[0][0], us[1][0], us[2][0], us[0][1], us[3][0], us[1][1], us[4][0], us[2][1], us[3][1], us[4][1]]
    return [(0, [us[0][0], us[1][0], us[2][0]]), (SSP, [us[0][1], us[3][0]]), (2*SSP, [us[1][1], us[4][0]]), (3*SSP, [us[2][1]] + tog), (4*SSP, [us[3][1]]), (5*SSP, [us[4][1]] + adv)]

def main_loop():
    items = []; Fq = []
    for q in range(8):
        Fq.append(len(items))
        if q < 2:
            for kq in range(9):
                for a in range(3): items.append((q, a + kq // 3, kq % 3, [(a, kq // 3)]))
        else:
            for b in range(5):
                for kk in range(3): items.append((q, b, kk, [(a, b - a) for a in range(3) if 0 <= b - a <= 2]))
    N = len(items); Fq.append(N)
    lastb = {}
    for n, it in enumerate(items): lastb[(it[0], it[1])] = n
    lastb = set(lastb.values())
    ev = {}; evm = {}
    def at(n, fn): ev.setdefault(max(n, 0), []).append(fn)
    def atq(n, units): at(n, lambda: fq.extend(units))
    def atm(q, k, units): evm.setdefault((q, k), []).append(units)
    F = lambda q: Fq[q]
    E = lambda q: F(q+1) - D
    ldid = {}
    GRP = [0, 1, 2, 0, 1]
    def bufof(n): return 3*GRP[items[n][1]] + items[n][2]
    first = {}
    for n in range(N): first.setdefault(items[n][:3], n)
    src_of = lambda n: first[items[n][:3]]
    lastb = set(n for n in first.values() if items[n][2] == 2)
    LOFF = {0: [-3, -2, -1], 1: [0, 0, 0], 2: LB2, 3: [3, 4, 5], 4: [9, 9, 10]}
    lsched = {}
    for n in range(N):
        q, b, kk, _ = items[n]
        if first[(q, b, kk)] != n: continue
        if q < 2: p = n - D
        else:
            p = F(q) + LOFF[b][kk]
        lsched.setdefault(max(p, -1), []).append(n)
    def load_units(n):
        q, b, kk, _ = items[n]
        def u():
            e("ds_read_b128 %s, v%d offset:%d" % (vr(V_B + 4*bufof(n), 4), BA[b], kk*64))
            ldid[n] = lg.issue()
        us = [u]
        if n in lastb and q < 7: us.append(lambda: e("v_add_u32 v%d, s%d, v%d" % (BA[b], S_DL, BA[b])))
        if q >= 2 and q <= 5 and (b, kk) == (4, 2): us += dl_units()
        return us
    def loads_at(p):
        us = []
        for n in lsched.get(p, []):
            if items[n][0] < 2:
                for u in load_units(n): u()
            else: us += load_units(n)
        fq.extendleft(reversed(us))
    def dl_units():
        return [lambda: e("s_lshr_b32 s%d, s%d, 4" % (S_RT, S_RT)),
                lambda: e("s_and_b32 s%d, s%d, 15" % (S_TMP, S_RT)),
                lambda: e("s_mul_i32 s%d, s%d, 10240" % (S_TMP, S_TMP)),
                lambda: e("s_sub_u32 s%d, s%d, s%d" % (S_DL, S_TMP, S_CUR)),
                lambda: e("s_mov_b32 s%d, s%d" % (S_CUR, S_TMP))]
    def dl_calc():
        e("s_lshr_b32 s%d, s%d, 4" % (S_RT, S_RT))
        e("s_and_b32 s%d, s%d, 15" % (S_TMP, S_RT))
        e("s_mul_i32 s%d, s%d, 10240" % (S_TMP, S_TMP))
        e("s_sub_u32 s%d, s%d, s%d" % (S_DL, S_TMP, S_CUR))
        e("s_mov_b32 s%d, s%d" % (S_CUR, S_TMP))
    def barrier(vmids=(), lgids=(), dl=False):
        def fn():
            flush()
            if dl: dl_calc()
            for x in lgids: lg.wait(x())
            for x in vmids: vm.wait(x())
            e("s_barrier")
            stamp()
        return fn
    W = lambda i, k: (lambda: ids[('w', i, k)])
    X = lambda u: (lambda: ids.get(('x', u)))
    assert LQ == 2
    pos = 0
    for d, us in left_dma:
        atq(pos, us); pos += SPL
    atq(max(pos, 6), left_setup)
    for i in range(2):
        for kq in range(9):
            if i == 0 and kq < 2: continue
            p = F(i) + 3*(kq-1) - 1
            if kq == 3: at(p, barrier(vmids=[W(i,8)]))
            if kq == 6: at(p, barrier(vmids=[W(i,13)]))
            if i == 1 and kq == 0:
                assert p == E(0)
                at(p, barrier(vmids=[X(1), W(1, 4)], lgids=[lambda: wid[26], lambda: ldid[26]], dl=True))
                q = p + 1
                atq(q, xd_units())
                if XW2 == 0:
                    for tt in range(5): atq(q, x_units(2, tt, dyn=True)); q += SPW
                    for k in range(14): atq(q, w_units(k, 2)); q += SPW
                else:
                    for k in range(14):
                        if k % XW2 == 0 and k // XW2 < 5: atq(q, x_units(2, k // XW2, dyn=True)); q += SPW
                        atq(q, w_units(k, 2)); q += SPW
            atq(p, triple(9*i + kq))
    at(F(1) + W2B, barrier(vmids=[W(2,8)]))
    for kq in range(6): atq(F(1) + W2B + (kq*(E(1) - F(1) - W2B))//6, triple(18 + kq))
    at(E(1), barrier(vmids=[X(2), W(2, 13)], lgids=[lambda: wid[53], lambda: wid[23*3+2]], dl=True))
    for kq in range(6, 9): atq(E(1), triple(18 + kq))
    atq(E(1) + 1, xd_units())
    for tt in range(5): atq(E(1) + 1 + tt // 2, x_units(3, tt, dyn=True))
    for q in range(2, 8):
        b = F(q)
        ni = 3 if q <= 5 else 8 - q
        sc = lambda k: (k * ni) // 3
        atm(q, sc(6), epi_units(q-3, 2))
        if q <= 5:
            atm(q, sc(18), multi("s_cmp_eq_u32 s%d, 3\n    s_cselect_b32 s%d, s%d, %d\n    s_cmp_ge_u32 s%d, 5\n    s_cselect_b32 s%d, 0, %d" % (S_IT, S_XINC, S_XJ, 2*ROWB, S_IT, S_X+2, X_BYTES)))
            atm(q, sc(18), xd_units())
        sb = SB if q < 7 else SB + 1
        at(b + sb, barrier(lgids=[lambda q=q: swid[q-3]]))
        m0 = sc(27 + 18*(sb - 3)) + 1
        for o, u in readback_units(q-3): atm(q, m0 + sc(o*RSP), u)
        if q <= 5:
            for tt in range(5):
                if not NOXD: atm(q, m0 + sc((3*tt + 1)*RSP + 1), x_units(q+2, tt, dyn=True))
        atm(q, sc(162 + 9), epi_units(q-2, 0))
        atm(q, sc(E1M), epi_units(q-2, 1))
        at(F(q) + EP, barrier(vmids=([X(q+1)] if q <= 5 else [])))
    vm.wait(max(ids[('w',0,4)], ids[('x',0)]))
    e("s_barrier")
    stamp()
    dl_calc()
    for u in triple(0): u()
    loads_at(-1)
    for u in triple(1): u()
    marks = []
    def close_loop():
        flush()
        marks.append(len(out))
        inloop[0] = False
        bodies = [out[marks[k]:marks[k+1]] for k in range(6 - LQ)]
        assert all(len(bd) == len(bodies[0]) for bd in bodies), [len(bd) for bd in bodies]
        merged = []
        rx = re.compile(r"\s*s_waitcnt (\w+)\((\d+)\)")
        for lines in zip(*bodies):
            if all(l == lines[0] for l in lines):
                if ";opt" in lines[0]: continue
                merged.append(lines[0]); continue
            ms = [rx.match(l) for l in lines]
            assert all(ms) and len(set(mm.group(1) for mm in ms)) == 1, lines
            merged.append("    s_waitcnt %s(%d)" % (ms[0].group(1), min(int(mm.group(2)) for mm in ms)))
        del out[marks[0]:]
        out.append("L_loop:")
        k = len(merged)
        while merged[k-1].strip().startswith("v_mfma"): k -= 1
        assert len(merged) - k >= 4
        merged.insert(len(merged) - 1, "    s_cmp_lt_u32 s%d, 6" % S_IT)
        merged.insert(len(merged) - 3, "    s_add_u32 s%d, s%d, 1" % (S_IT, S_IT))
        out.extend(merged)
        e("s_cbranch_scc1 L_loop")
        stamp()
        if SK == 2:
            e("s_memrealtime s[70:71]"); e("s_waitcnt lgkmcnt(0)"); lg.clear()
    mc = 0
    for n in range(N):
        q, b_, kk, combos = items[n]
        if n == F(q): mc = 0
        if n == F(q) and LQ <= q <= 5:
            flush()
            if q == LQ:
                stamp()
                if SK == 2:
                    e("s_memrealtime s[66:67]"); e("s_waitcnt lgkmcnt(0)"); lg.clear()
            inloop[0] = True
            marks.append(len(out))
        if n == F(6): close_loop()
        for fn in ev.get(n, []): fn()
        iset = [i for i in (2, 1, 0) if 0 <= q - i <= 5]
        if q < 2:
            ops = [(a_, j, i, tp, kk, src_of(n)) for (a_, j) in combos for i in iset for tp in range(3)]
        else:
            a_ = [0, 0, 1, 2, 2][b_]
            bl = [[0], [1, 2], [1, 2, 3], [2, 3], [4]][b_]
            Lc = [(i, tp) for i in iset for tp in range(3)]
            m = len(Lc) // 3
            ops = [(a_, bb - a_, i, tp, k2, F(q) + 3*bb + k2) for (i, tp) in Lc[kk*m:(kk+1)*m] for bb in bl for k2 in range(3)]
        needw = [(9*i + 3*j + k2)*3 + tp for (a_, j, i, tp, k2, src) in ops]
        loads_at(n)
        while any(f not in wid for f in needw) or any(o[5] not in ldid for o in ops): fq.popleft()()
        if q < 2: lg.wait(max([ldid[src_of(n)]] + [wid[f] for f in needw]))
        elif kk > 0: lg.wait(max(wid[f] for f in needw))
        cnt = 0; tot = len(ops)
        for (a_, j, i, tp, k2, src) in ops:
            if q >= 2 and kk == 0 and cnt < 3*len(bl) and (cnt == 0 or (b_, (src - F(q)) // 3) in ((0,0), (1,1), (1,2), (2,3), (4,4))): lg.wait(max([ldid[src]] + [wid[f] for f in needw]))
            a = vr(V_ACC + 36*i + 12*a_ + 4*tp, 4)
            c = a if (j, k2) != (0, 0) else "0" if i == 0 else vr(V_ACC + 36*(i-1) + 12*a_ + 4*tp, 4)
            e("v_mfma_f32_16x16x32_bf16 %s, %s, %s, %s" % (a, wfrag((9*i+3*j+k2)*3+tp), vr(V_B + 4*bufof(src), 4), c))
            cnt += 1; mc += 1
            for us in evm.get((q, mc), []): fq.extend(us)
            if FM and q >= 2:
                cl = 3*len(bl)
                if cnt % cl == 0:
                    for _ in range(FK if cnt < tot else FKE):
                        if fq: fq.popleft()()
                elif FM == 2 and cnt % 3 == 0 and fq: fq.popleft()()
            else: fill(0 if (cnt == tot and tot > 3) else 1)
    flush()
    stamp()
    e("s_nop 7")
    e("s_nop 7")
    if TT:
        acc = V_ACC + 72 + 24
        for d in range(6): e("v_cvt_pk_bf16_f32 v%d, v%d, v%d" % (V_PK+d, acc+2*d, acc+2*d+1))
        e("buffer_store_dwordx4 %s, v21, s[%d:%d], 0 offen %s" % (vr(V_PK, 4), S_O, S_O+3, SNT))
        e("buffer_store_dwordx2 %s, v21, s[%d:%d], 0 offen offset:16 %s" % (vr(V_PK+4, 2), S_O, S_O+3, SNT))
    else:
        for u in epi_units(5, 2): u()
        if not DIRECT: barrier(lgids=[lambda: swid[5]])()
        for o, us in readback_units(5):
            for u in us: u()
    stamp()
    e("s_waitcnt vmcnt(0)")
    stamp()
    rstamp()
    if STAMP:
        e("s_mov_b32 s%d, s90" % (64 + nstamp[0])); nstamp[0] += 1
    dump_stamps()
    if SK:
        e("s_memrealtime s[68:69]")
        if SK == 1: e("s_memtime s[70:71]")
        e("s_load_dwordx2 s[46:47], s[0:1], 32")
        e("s_waitcnt lgkmcnt(0)")
        e("s_mov_b32 s48, s46")
        e("s_and_b32 s49, s47, 0xffff")
        e("s_mov_b32 s50, 65536")
        e("s_mov_b32 s51, 0x20000")
        e("s_lshl_b32 s53, s2, 2")
        e("s_add_u32 s53, s53, s%d" % S_WAVE)
        e("s_lshl_b32 s53, s53, 4")
        e("v_mov_b32 v1, s53")
        e("v_mov_b32 v4, s64")
        e("v_mov_b32 v5, s68")
        e("v_mov_b32 v6, s66")
        e("v_mov_b32 v7, s70")
        e("buffer_store_dwordx4 v[4:7], v1, s[48:51], 0 offen")
        e("s_waitcnt vmcnt(0)")

header()
prologue()
main_loop()
footer()
open(sys.argv[1], "w").write("\n".join(out) + "\n")
print("lines", len(out), "stamps", nstamp[0])
```
